```python
import torch

def _softmax(x, axis=-1):
    return torch.softmax(x, dim=axis)

def _gelu(x):
    return torch.nn.functional.gelu(x, approximate='tanh')

def _silu(x):
    return torch.nn.functional.silu(x)

def _sigmoid(x):
    return torch.sigmoid(x)

def _layernorm(x, axis=-1, eps=1e-05):
    m = x.mean(dim=axis, keepdim=True)
    v = x.var(dim=axis, keepdim=True, unbiased=False)
    return (x - m) / torch.sqrt(v + eps)

def _scatter_add(tgt, idx, src, axis=0):
    return tgt.clone().index_add_(axis, idx, src)

def _segment_sum(src, seg, n):
    out = torch.zeros((n,) + src.shape[1:], dtype=src.dtype)
    return out.index_add_(0, seg, src)

def _pad(x, pw):
    flat = tuple((v for pair in reversed(pw) for v in pair))
    return torch.nn.functional.pad(x, flat)
kernel_name = 'adaLN_cond__sliding_block_cached__geglu_ffn__prompt'

def setup_inputs():

    _w = lambda a: (lambda t: t.to(torch.bfloat16) if t.is_floating_point() else t)(torch.as_tensor(a))

    def _A_setup():
        B, Sq, D = (1, 2048, 512)
        Hq, Hkv, Sk, Dh = (32, 8, 2048, 128)
        assert Hq % Hkv == 0, (Hq, Hkv)
        return {'x': _w((lambda *s: torch.randn(*s, dtype=torch.bfloat16) * 0.1)(B, Sq, D)), 'k_cache': _w((lambda *s: torch.randn(*s, dtype=torch.bfloat16) * 0.8)(B, Hkv, Sk, Dh)), 'v_cache': _w((lambda *s: torch.randn(*s, dtype=torch.bfloat16) * 1.6)(B, Hkv, Sk, Dh)), 'wq': _w((lambda *s: torch.randn(*s, dtype=torch.bfloat16) * 0.8)(D, Hq * Dh) * D ** (-0.5)), 'wo': _w((lambda *s: torch.randn(*s, dtype=torch.bfloat16) * 1.6)(Hq * Dh, D) * (Hq * Dh) ** (-0.5))}
    _A_in = _A_setup()

    def _B_setup():
        B, S, D, F = (1, 2048, 512, 1792)
        return {'x': _w((lambda *s: torch.randn(*s, dtype=torch.bfloat16) * 0.1)(B, S, D)), 'w_gate': _w((lambda *s: torch.randn(*s, dtype=torch.bfloat16) * 0.2)(D, F)), 'w_up': _w((lambda *s: torch.randn(*s, dtype=torch.bfloat16) * 0.2)(D, F)), 'w_down': _w((lambda *s: torch.randn(*s, dtype=torch.bfloat16) * 0.2)(F, D))}
    _B_in = _B_setup()
    return {'A_x': _A_in['x'], 'A_k_cache': _A_in['k_cache'], 'A_v_cache': _A_in['v_cache'], 'A_wq': _A_in['wq'], 'A_wo': _A_in['wo'], 'B_x': _B_in['x'], 'B_w_gate': _B_in['w_gate'], 'B_w_up': _B_in['w_up'], 'B_w_down': _B_in['w_down'], 'c': _w((lambda *s: torch.randn(*s, dtype=torch.bfloat16) * 0.8)(1, 512) * 8.0), 'w_mod': _w((lambda *s: torch.randn(*s, dtype=torch.bfloat16) * 0.8)(512, 6 * 512) * 512 ** (-0.5) * 8.0)}

def reference(A_x, A_k_cache, A_v_cache, A_wq, A_wo, B_x, B_w_gate, B_w_up, B_w_down, c, w_mod):

    def _A_ref(x, k_cache, v_cache, wq, wo):
        B, Sq, D = x.shape
        Hq, Dh = (32, 128)
        Hkv, Sk = (k_cache.shape[1], k_cache.shape[2])
        W = min(4096, max(256, Sk // 4))
        rep = Hq // Hkv
        q = (lambda x, *d: x.permute(*d))((x @ wq).reshape(B, Sq, Hq, Dh), 0, 2, 1, 3)
        k = (lambda x, n, axis: torch.repeat_interleave(x, n, dim=axis))(k_cache[:, :, Sk - W:, :], rep, axis=1)
        v = (lambda x, n, axis: torch.repeat_interleave(x, n, dim=axis))(v_cache[:, :, Sk - W:, :], rep, axis=1)
        scores = torch.einsum('bhqd,bhkd->bhqk', q, k) * Dh ** (-0.5)
        p = _softmax(scores, axis=-1)
        o = torch.einsum('bhqk,bhkd->bhqd', p, v)
        return (lambda x, *d: x.permute(*d))(o, 0, 2, 1, 3).reshape(B, Sq, Hq * Dh) @ wo

    def _B_ref(x, w_gate, w_up, w_down):
        return _gelu(x @ w_gate) * (x @ w_up) @ w_down
    x = A_x
    mod = (_silu(c) @ w_mod).reshape(c.shape[0], 6, 1, -1)
    sa, ca, ga, sb, cb, gb = (mod[:, 0].clone(), mod[:, 1].clone(), mod[:, 2].clone(), mod[:, 3].clone(), mod[:, 4].clone(), mod[:, 5].clone())
    h = _layernorm(x, axis=-1) * (1 + ca) + sa
    x = x + ga * _A_ref(h, A_k_cache, A_v_cache, A_wq, A_wo)
    h = _layernorm(x, axis=-1) * (1 + cb) + sb
    x = x + gb * _B_ref(h, B_w_gate, B_w_up, B_w_down)
    return x
```

```python
import sys
from common import *
HEADER = open('adaLN_cond__sliding_block_cached__geglu_ffn__prompt.s.ref').read().split("; Override launch geometry")[0]
def build(kernels, path):
    s = HEADER
    for name, grid, block, lds, _ in kernels:
        s += f"; @launch kernel={name} grid=({grid},1,1) block=({block},1,1) lds={lds}\n"
    s += '.amdgcn_target "amdgcn-amd-amdhsa--gfx950"\n'
    seen = set()
    for name, _, _, _, text in kernels:
        if name in seen: continue
        seen.add(name)
        s += text
    s += ".text\nCODE_END:\n    s_endpgm\n"
    open(path, "w").write(s)
if __name__ == "__main__":
    import k1, ka, k3, k4, k5, os
    ka.STAMP = bool(os.environ.get('STAMP'))
    ks = [("k1_prep_kernel", k1.K1_GRID, 512, k1.K1_LDS, k1.gen_k1()),
          ("ka_attn_kernel", 256, 256, ka.KA_LDS, ka.gen_ka()),
          ("k3_ln2_kernel", 256, 512, 1024, k3.gen_k3()),
          ("k4_gu_kernel", 224, 256, k4.K4_LDS, k4.gen_k4()),
          ("k5_down_kernel", 256, 256, k5.K5_LDS, k5.gen_k5())]
    build(ks, sys.argv[1] if len(sys.argv) > 1 else "out.s")
```

```python
WS_MOD  = 0x000000
WS_KV   = 0x040000
WS_H    = 0x300000
WS_X1   = 0x500000
WS_H2   = 0x700000
WS_G    = 0x900000
WS_PART = 0x1000000
WS_SIZE = 0x10000000

KARG = dict(x=0, k=8, v=16, wq=24, wo=32, bx=40, wg=48, wu=56, wd=64, c=72, wmod=80, out=88, dbg=96, ws=104)

class Asm:
    def __init__(self):
        self.lines = []
    def __call__(self, s):
        for l in s.strip("\n").split("\n"):
            l = l.strip()
            if l:
                self.lines.append(("" if l.endswith(":") else "    ") + l)
    def text(self):
        return "\n".join(self.lines) + "\n"

def kernel_text(name, body, vgpr, accum, sgpr=102):
    return f""".text
.globl {name}
.p2align 8
.type {name},@function
{name}:
{body}
.section .rodata,"a"
.p2align 6
.amdhsa_kernel {name}
  .amdhsa_next_free_vgpr {vgpr}
  .amdhsa_next_free_sgpr {sgpr}
  .amdhsa_accum_offset {accum}
  .amdhsa_group_segment_fixed_size 0
  .amdhsa_kernarg_size 112
  .amdhsa_user_sgpr_count 2
  .amdhsa_user_sgpr_kernarg_segment_ptr 1
  .amdhsa_system_sgpr_workgroup_id_x 1
.end_amdhsa_kernel
"""

def srd(a, d, b, nbytes, off=0):
    if off:
        a(f"s_add_u32 s{d}, s{b}, {hex(off)}")
        a(f"s_addc_u32 s{d+1}, s{b+1}, 0")
    else:
        a(f"s_mov_b32 s{d}, s{b}")
        a(f"s_mov_b32 s{d+1}, s{b+1}")
    a(f"s_mov_b32 s{d+2}, {hex(nbytes)}")
    a(f"s_mov_b32 s{d+3}, 0x20000")

def srd_dyn(a, d, b, soff, nbytes, off=0):
    a(f"s_add_u32 s{d}, s{b}, s{soff}")
    a(f"s_addc_u32 s{d+1}, s{b+1}, 0")
    if off:
        a(f"s_add_u32 s{d}, s{d}, {hex(off)}")
        a(f"s_addc_u32 s{d+1}, s{d+1}, 0")
    a(f"s_mov_b32 s{d+2}, {hex(nbytes)}")
    a(f"s_mov_b32 s{d+3}, 0x20000")

import struct
def f32(x):
    return hex(struct.unpack("<I", struct.pack("<f", x))[0])
def vr(base, n=1, f="v"):
    return f"{f}{base}" if n == 1 else f"{f}[{base}:{base+n-1}]"
def ar(base, n=1):
    return vr(base, n, "a")

import os
RT = bool(os.environ.get('RT'))
def rt_begin(a):
    if RT: a("s_memrealtime s[96:97]")
def rt_end(a, kidx, srd_ws):
    if not RT: return
    a(f"""
    s_waitcnt vmcnt(0)
    s_memrealtime s[98:99]
    s_getreg_b32 s101, hwreg(HW_REG_HW_ID, 0, 6)
    s_lshl_b32 s101, s101, 3
    s_lshl_b32 s100, s2, 9
    s_add_u32 s100, s100, s101
    s_add_u32 s100, s100, {hex(0x3100000 + kidx*0x40000)}
    s_waitcnt lgkmcnt(0)
    v_mov_b32 v0, s96
    v_mov_b32 v1, s98
    v_mov_b32 v2, 0
    s_mov_b64 exec, 1
    buffer_store_dwordx2 v[0:1], v2, s[{srd_ws}:{srd_ws+3}], s100 offen
    """)

WS_FLAG = 0x20000
```

```python
from common import *
def mfma(d, a_, b_, c):
    return f"v_mfma_f32_32x32x16_bf16 {d}, {a_}, {b_}, {c}"
def emit(a, mf, gaps):
    assert len(mf) == len(gaps)
    for m_, g in zip(mf, gaps):
        a(m_)
        for x in g: a(x)

class VQ:
    def __init__(self): self.q = []; self.done = 0
    def issue(self, tag, n=1): self.q += [tag]*n
    def need(self, tag):
        last = max(i for i, t in enumerate(self.q) if t == tag)
        n = len(self.q) - 1 - last
        self.done = max(self.done, last + 1)
        return n
    def landed(self, tag):
        idx = [i for i, t in enumerate(self.q) if t == tag]
        return bool(idx) and max(idx) < self.done

class Gemm:
    def __init__(self, tag, R, ACC, AA, AB, VB, S_CNT, reads, w_dma, aux=None, P=0, naux=0, nh=16, nsteps=32):
        self.__dict__.update(locals())
    def step(self, a, vq, s, body_base, first=False, ex=()):
        R = self.R; buf = s & 1
        mf = []
        for i in range(4):
            for th in range(2):
                d = vr(self.ACC + (i*2+th)*16, 16)
                mf.append(mfma(d, ar(self.AA+16*buf+4*i,4), ar(self.AB+8*buf+4*th,4), "0" if first else d))
        gaps = [[] for _ in range(8)]
        sig = []
        if s + 1 < self.nsteps:
            vm = vq.need(('W', s+1)); sig.append(vm)
            rd = self.reads(buf ^ 1, (s+1) % R, (s+1-body_base)*2048)
            ra = [x for x in rd if 'tr_b16' in x]; rb = [x for x in rd if 'tr_b16' not in x]
            bar = self.aux is not None and s % 2 == 0 and (s+2)//2 < self.nh and s > 0
            if bar:
                assert vq.landed(('A', min((s+2)//2, self.nh-1))), (self.tag, s)
                gaps[0] = [f"s_waitcnt vmcnt({vm})", "s_barrier"]
                gaps[1] = ra[0:2] + rb[0:1]; gaps[2] = ra[2:4] + rb[1:2]; gaps[3] = ra[4:8]
            else:
                gaps[0] = [f"s_waitcnt vmcnt({vm})"] + rb[0:1] + ra[0:2]
                gaps[1] = rb[1:2] + ra[2:4]; gaps[2] = ra[4:6]; gaps[3] = ra[6:8]
            sig.append(bar)
        if s + R < self.nsteps:
            pre, d, post = self.w_dma(s % R)
            gaps[3] = pre + gaps[3]
            gaps[4] = d[0:2]; gaps[5] = d[2:3]; gaps[6] = d[3:4] + list(post)
            vq.issue(('W', s+R), 4)
        if self.aux is not None and self.auxn < self.naux and (s % 2 == 0 or s + R >= self.nsteps):
            pre, d, post = self.aux()
            gaps[6] = gaps[6] + pre
            gaps[7] = d + post
            vq.issue(('A', self.auxn)); self.auxn += 1
            sig.append('aux')
        if s + 1 < self.nsteps:
            gaps[7] = ["s_waitcnt lgkmcnt(0)"] + gaps[7]
        gaps[7] += list(ex)
        if a is not None: emit(a, mf, gaps)
        return sig
    def run(self, a, vq, nfirst, body, niter, stamp=lambda k: None):
        self.auxn = self.P
        assert nfirst + body*niter + self.R == self.nsteps or True
        vm = vq.need(('W', 0))
        if self.aux is not None:
            vm = min(vm, vq.need(('A', 1)))
        a(f"s_waitcnt vmcnt({vm})")
        if self.aux is not None: a("s_barrier")
        for x in self.reads(0, 0, 0): a(x)
        a("s_waitcnt lgkmcnt(0)")
        stamp(0)
        s = 0
        for k in range(nfirst):
            ex = [f"v_add_u32 v{self.VB}, {nfirst*2048}, v{self.VB}", f"s_mov_b32 s{self.S_CNT}, {niter}"] if k == nfirst-1 else ()
            self.step(a, vq, s, 0, first=(s == 0), ex=ex); s += 1
        stamp(1)
        a(f"{self.tag}_LOOP:")
        sigs = None
        for it in range(niter):
            base = s; sg = []
            for k in range(body):
                ex = ()
                if k == body-1:
                    ex = [f"v_add_u32 v{self.VB}, {body*2048}, v{self.VB}", f"s_sub_u32 s{self.S_CNT}, s{self.S_CNT}, 1", f"s_cmp_lg_u32 s{self.S_CNT}, 0"]
                sg.append(self.step(a if it == 0 else None, vq, s, base, ex=ex)); s += 1
            if sigs is None: sigs = sg
            assert sg == sigs, (self.tag, it, sg, sigs)
        a(f"s_cbranch_scc1 {self.tag}_LOOP")
        stamp(2)
        base = s
        while s < self.nsteps:
            self.step(a, vq, s, base); s += 1
```

```python
from common import *
import math
QS = math.log2(math.e) / math.sqrt(128.0)
K1_GRID = 384
K1_LDS = 8192 + 16384
def silu_pack(a, src, n, t0, t1, dst):
    for i in range(n):
        a(f"v_lshlrev_b32 v{t0+2*i}, 16, v{src+i}")
        a(f"v_and_b32 v{t0+2*i+1}, 0xffff0000, v{src+i}")
    for i in range(2*n): a(f"v_mul_f32 v{t1+i}, {f32(-math.log2(math.e))}, v{t0+i}")
    for i in range(2*n): a(f"v_exp_f32 v{t1+i}, v{t1+i}")
    a("s_nop 0")
    for i in range(2*n): a(f"v_add_f32 v{t1+i}, 1.0, v{t1+i}")
    for i in range(2*n): a(f"v_rcp_f32 v{t1+i}, v{t1+i}")
    a("s_nop 0")
    for i in range(2*n): a(f"v_mul_f32 v{t0+i}, v{t0+i}, v{t1+i}")
    for i in range(n): a(f"v_cvt_pk_bf16_f32 v{dst+i}, v{t0+2*i}, v{t0+2*i+1}")

def gen_k1(code_kb=16):
    a = Asm()
    a(f"""
    s_cmp_ge_u32 s2, {K1_GRID}
    s_cbranch_scc1 K1_END
    {"s_memrealtime s[96:97]" if RT else ""}
    s_load_dwordx2 s[4:5], s[0:1], {KARG['x']}
    s_load_dwordx4 s[8:11], s[0:1], {KARG['c']}      ; c, wmod
    s_load_dwordx2 s[6:7], s[0:1], {KARG['ws']}
    s_load_dwordx4 s[60:63], s[0:1], {KARG['k']}     ; k, v
    s_load_dwordx2 s[68:69], s[0:1], {KARG['wq']}
    v_and_b32 v1, 63, v0
    v_lshrrev_b32 v7, 6, v0
    v_lshrrev_b32 v2, 3, v1
    v_and_b32 v3, 7, v1
    v_readfirstlane_b32 s28, v7
    s_mov_b32 s64, 0x05040100
    s_mov_b32 s65, 0x07060302
    s_cmp_lt_u32 s2, 128
    s_cbranch_scc1 K1_KV
    s_sub_u32 s3, s2, 128
    s_and_b32 s29, s3, 7
    s_lshl_b32 s29, s29, 2
    s_bfe_u32 s30, s3, 0x20003
    s_add_u32 s29, s29, s30          ; tb
    s_lshr_b32 s30, s3, 5            ; cs
    s_lshl_b32 s31, s30, 7
    s_add_u32 s32, s31, 1024
    """)
    for i in range(8):
        a(f"s_add_u32 s{36+i}, s31, {i*6144}")
        a(f"s_add_u32 s{44+i}, s32, {i*6144}")
    a(f"""
    v_lshlrev_b32 v5, 6, v7
    v_lshl_add_u32 v5, v2, 3, v5      ; 64v+8r
    v_mul_u32_u24 v4, 6144, v5
    v_lshl_add_u32 v4, v3, 4, v4
    v_lshlrev_b32 v5, 1, v5
    s_waitcnt lgkmcnt(0)
    """)
    srd(a, 16, 10, 512*3072*2)
    srd(a, 20, 8, 1024)
    a("buffer_load_dwordx4 v[8:11], v5, s[20:23], 0 offen")
    for i in range(8):
        a(f"buffer_load_dwordx4 v[{16+4*i}:{19+4*i}], v4, s[16:19], s{36+i} offen")
    for i in range(8):
        a(f"buffer_load_dwordx4 v[{48+4*i}:{51+4*i}], v4, s[16:19], s{44+i} offen")
    srd(a, 12, 4, 2048*512*2)
    srd(a, 24, 6, WS_SIZE)
    srd(a, 72, 68, 512*4096*2)
    a(f"""
    v_lshl_add_u32 v6, v7, 3, v2
    s_lshl_b32 s35, s29, 16
    v_lshlrev_b32 v5, 10, v6
    v_lshl_add_u32 v5, v3, 4, v5
    v_add_u32 v5, s35, v5
    """)
    for i in range(8):
        a(f"s_add_u32 s{52+i}, s30, {i}")
        a(f"s_and_b32 s{52+i}, s{52+i}, 7")
        a(f"s_lshl_b32 s{52+i}, s{52+i}, 7")
    for i in range(8):
        a(f"buffer_load_dwordx4 v[{80+4*i}:{83+4*i}], v5, s[12:15], s{52+i} offen")
    NPF = 2
    a(f"""
    v_lshlrev_b32 v4, 4, v1
    s_lshr_b32 s33, s3, 3
    s_lshl_b32 s33, s33, 17
    s_lshl_b32 s34, s28, 14
    s_add_u32 s33, s33, s34
    s_and_b32 s34, s3, 7
    s_lshl_b32 s34, s34, 10
    s_add_u32 s33, s33, s34
    s_lshl_b32 s34, s28, 11
    s_add_u32 m0, s34, 8192
    s_add_u32 s34, s33, {8192-1024}
    buffer_load_dwordx4 v4, s[72:75], s33 offen lds
    buffer_load_dwordx4 v4, s[72:75], s34 offen offset:1024 lds
    s_waitcnt vmcnt({24+NPF})
    """)
    silu_pack(a, 8, 4, 112, 120, 12)
    for i in range(16):
        a(f"v_mov_b32 v{112+i}, 0")
    for g in range(2):
        for p in range(4):
            remaining = (16 - (8*g + 2*p + 2)) + 8 + NPF
            a(f"s_waitcnt vmcnt({remaining})")
            r0 = 16 + 32*g + 8*p; r1 = r0 + 4
            for d in range(4):
                a(f"v_perm_b32 v{8+d}, v{r1+d}, v{r0+d}, s64")
                a(f"v_perm_b32 v{r0+d}, v{r1+d}, v{r0+d}, s65")
            for d in range(4):
                a(f"v_dot2_f32_bf16 v{112+8*g+2*d}, v{8+d}, v{12+p}, v{112+8*g+2*d}")
                a(f"v_dot2_f32_bf16 v{113+8*g+2*d}, v{r0+d}, v{12+p}, v{113+8*g+2*d}")
    a("s_nop 2")
    for j in range(8):
        a(f"v_permlane32_swap_b32 v{112+j}, v{120+j}")
    a("s_nop 0")
    for j in range(8):
        a(f"v_add_f32 v{112+j}, v{112+j}, v{120+j}")
    a("s_nop 1")
    for j in range(4):
        a(f"v_permlane16_swap_b32 v{112+j}, v{116+j}")
    a("s_nop 0")
    for j in range(4):
        a(f"v_add_f32 v{112+j}, v{112+j}, v{116+j}")
    a("s_nop 1")
    for j in range(4):
        a(f"v_add_f32_dpp v{112+j}, v{112+j}, v{112+j} row_ror:8 row_mask:0xf bank_mask:0xf")
    a("""
    v_lshrrev_b32 v48, 5, v1
    v_lshlrev_b32 v48, 8, v48
    v_lshl_add_u32 v48, v7, 9, v48
    v_lshl_add_u32 v48, v3, 5, v48
    v_and_b32 v49, 16, v1
    v_add_u32 v48, v48, v49
    ds_write_b128 v48, v[112:115]
    v_mov_b32 v116, 0
    v_mov_b32 v117, 0
    s_mov_b32 s66, 0x3f803f80
    s_waitcnt lgkmcnt(0)
    s_barrier
    s_cmp_ge_u32 s28, 2
    s_cbranch_scc1 K1_S2DONE
    v_lshlrev_b32 v48, 2, v0
    """)
    for v in range(8):
        a(f"ds_read_b32 v{52+v}, v48 offset:{v*512}")
    a("s_waitcnt lgkmcnt(0)")
    for v in range(1, 8):
        a(f"v_add_f32 v52, v52, v{52+v}")
    a(f"""
    v_cvt_pk_bf16_f32 v52, v52, v52
    v_and_b32 v52, 0xffff0000, v52
    s_cmp_eq_u32 s28, 0
    s_cbranch_scc1 K1_S2SA
    v_add_f32 v52, 1.0, v52
    v_cvt_pk_bf16_f32 v52, v52, v52
    v_and_b32 v52, 0xffff0000, v52
    K1_S2SA:
    v_mul_f32 v52, {f32(QS)}, v52
    ds_write_b32 v48, v52 offset:4096
    K1_S2DONE:
    """)
    for i in range(8):
        a(f"s_waitcnt vmcnt({7-i+NPF})")
        for d in range(4):
            a(f"v_dot2_f32_bf16 v116, v{80+4*i+d}, s66, v116")
            a(f"v_dot2_f32_bf16 v117, v{80+4*i+d}, v{80+4*i+d}, v117")
    a("s_nop 2")
    for mod in ("quad_perm:[1,0,3,2]", "quad_perm:[2,3,0,1]", "row_half_mirror"):
        a(f"v_add_f32_dpp v116, v116, v116 {mod} row_mask:0xf bank_mask:0xf")
        a(f"v_add_f32_dpp v117, v117, v117 {mod} row_mask:0xf bank_mask:0xf")
        a("s_nop 0")
    a(f"""
    v_mul_f32 v116, {f32(1/512)}, v116        ; mean
    v_mul_f32 v117, {f32(1/512)}, v117
    v_fma_f32 v117, -v116, v116, v117         ; var
    v_max_f32 v117, 0, v117
    v_add_f32 v117, {f32(1e-5)}, v117
    v_rsq_f32 v117, v117                      ; rstd
    v_lshlrev_b32 v48, 5, v3
    v_mul_f32 v116, v116, v117                ; mean*rstd
    s_waitcnt lgkmcnt(0)
    s_barrier
    ds_read_b128 v[16:19], v48 offset:4096
    ds_read_b128 v[20:23], v48 offset:4112
    ds_read_b128 v[24:27], v48 offset:4352
    ds_read_b128 v[28:31], v48 offset:4368
    """)
    for d in range(4):
        a(f"v_lshlrev_b32 v{32+2*d}, 16, v{80+d}")
        a(f"v_and_b32 v{33+2*d}, 0xffff0000, v{80+d}")
    for j in range(8):
        a(f"v_fma_f32 v{32+j}, v{32+j}, v117, -v116")
    a(f"""
    v_lshrrev_b32 v40, 1, v3
    v_lshlrev_b32 v40, 11, v40
    v_and_b32 v41, 1, v3
    v_lshl_add_u32 v40, v41, 9, v40
    v_lshrrev_b32 v41, 5, v6
    v_lshl_add_u32 v40, v41, 10, v40
    v_and_b32 v41, 31, v6
    v_lshl_add_u32 v40, v41, 4, v40
    s_lshl_b32 s35, s29, 16
    s_lshl_b32 s36, s30, 13
    s_add_u32 s35, s35, s36
    s_add_u32 s35, s35, {hex(WS_H)}
    s_waitcnt lgkmcnt(0)
    """)
    for j in range(8):
        a(f"v_fma_f32 v{32+j}, v{32+j}, v{24+j}, v{16+j}")
    for d in range(4):
        a(f"v_cvt_pk_bf16_f32 v{44+d}, v{32+2*d}, v{33+2*d}")
    a("buffer_store_dwordx4 v[44:47], v40, s[24:27], s35 offen")
    rt_end(a, 0, 24)
    a("s_endpgm")
    a(f"""
    K1_KV:
    s_and_b32 s30, s2, 7              ; g
    s_bfe_u32 s29, s2, 0x40003        ; tile
    s_lshl_b32 s31, s30, 19           ; g*2048*256
    s_lshl_b32 s32, s29, 13           ; tile*32*256
    s_add_u32 s31, s31, s32
    s_add_u32 s31, s31, {1536*256}
    s_lshl_b32 s33, s30, 17
    s_add_u32 s33, s33, s32
    s_lshl_b32 s33, s33, 1            ; (g*16+tile)*16384
    s_lshl_b32 s36, s30, 9
    s_lshl_b32 s37, s29, 5
    s_add_u32 s36, s36, s37
    s_add_u32 s36, s36, 2048
    s_add_u32 s37, s36, 6144
    v_lshrrev_b32 v40, 1, v0
    v_mul_u32_u24 v41, {2*6144}, v40
    v_and_b32 v42, 1, v0
    v_lshl_add_u32 v41, v42, 4, v41
    v_lshlrev_b32 v40, 2, v40
    s_getpc_b64 s[38:39]
    K1_PC:
    s_add_u32 s38, s38, ka_attn_kernel-K1_PC
    s_addc_u32 s39, s39, 0
    s_waitcnt lgkmcnt(0)
    """)
    srd(a, 44, 10, 512*3072*2)
    srd(a, 20, 8, 1024)
    a("""
    buffer_load_dword v48, v40, s[20:23], 0 offen
    buffer_load_dwordx4 v[52:55], v41, s[44:47], s36 offen
    buffer_load_dwordx4 v[56:59], v41, s[44:47], s37 offen
    """)
    srd(a, 12, 60, 8*2048*128*2)
    srd(a, 16, 62, 8*2048*128*2)
    srd(a, 24, 6, WS_SIZE)
    a(f"""
    v_and_b32 v4, 31, v1
    v_lshrrev_b32 v5, 5, v1           ; hi
    v_lshlrev_b32 v6, 8, v4
    v_lshl_add_u32 v6, v5, 4, v6
    v_lshl_add_u32 v6, v7, 5, v6
    buffer_load_dwordx4 v[16:19], v6, s[12:15], s31 offen
    v_and_b32 v8, 0x13, v4
    v_and_b32 v9, 4, v4
    v_lshl_or_b32 v8, v9, 1, v8
    v_and_b32 v9, 8, v4
    v_lshrrev_b32 v9, 1, v9
    v_or_b32 v8, v8, v9               ; pi(m)
    v_and_b32 v9, 3, v7
    v_lshl_add_u32 v8, v9, 5, v8      ; d
    v_lshlrev_b32 v8, 1, v8
    v_lshrrev_b32 v9, 2, v7
    v_lshl_add_u32 v8, v9, 12, v8     ; + kk*16*256
    v_lshl_add_u32 v8, v5, 10, v8     ; + 4hi*256
    """)
    for j in range(8):
        key = (j & 3) + 8*(j >> 2)
        a(f"buffer_load_ushort v{24+j}, v8, s[16:19], s31 offen offset:{key*256}")
    a(f"""
    v_lshlrev_b32 v11, 3, v0
    s_lshl_b32 s40, s29, 12
    v_add_u32 v11, s40, v11
    v_min_u32 v11, CODE_END-ka_attn_kernel-4, v11
    global_load_dword v33, v11, s[38:39]
    v_lshlrev_b32 v10, 4, v0
    s_add_u32 s34, s33, {hex(WS_KV)}
    s_add_u32 s35, s33, {hex(WS_KV+8192)}
    s_waitcnt vmcnt(12)
    """)
    silu_pack(a, 48, 1, 60, 62, 49)
    a("s_waitcnt vmcnt(10)")
    for d in range(4):
        a(f"v_perm_b32 v{60+2*d}, v{56+d}, v{52+d}, s64")
        a(f"v_perm_b32 v{61+2*d}, v{56+d}, v{52+d}, s65")
    for j in range(8):
        a(f"v_dot2_f32_bf16 v{68+j}, v{60+j}, v49, 0")
    a("s_waitcnt vmcnt(9)")
    a("buffer_store_dwordx4 v[16:19], v10, s[24:27], s34 offen")
    a("s_nop 1")
    for j in range(4): a(f"v_permlane32_swap_b32 v{68+j}, v{72+j}")
    a("s_nop 0")
    for j in range(4): a(f"v_add_f32 v{68+j}, v{68+j}, v{72+j}")
    a("s_nop 1")
    for j in range(2): a(f"v_permlane16_swap_b32 v{68+j}, v{70+j}")
    a("s_nop 0")
    for j in range(2): a(f"v_add_f32 v{68+j}, v{68+j}, v{70+j}")
    for r in (8, 4, 2):
        a("s_nop 1")
        for j in range(2): a(f"v_add_f32_dpp v{68+j}, v{68+j}, v{68+j} row_ror:{r} row_mask:0xf bank_mask:0xf")
    a("""
    v_lshlrev_b32 v43, 6, v7
    v_lshl_add_u32 v43, v42, 5, v43
    v_lshl_add_u32 v43, v5, 4, v43
    v_bfe_u32 v44, v1, 4, 1
    v_lshl_add_u32 v43, v44, 3, v43
    ds_write_b64 v43, v[68:69]
    s_waitcnt vmcnt(2)
    """)
    for d in range(4):
        a(f"v_lshl_or_b32 v{20+d}, v{25+2*d}, 16, v{24+2*d}")
    a(f"""
    buffer_store_dwordx4 v[20:23], v10, s[24:27], s35 offen
    s_cmp_ge_u32 s2, 6
    s_cbranch_scc1 K1_NOZ
    v_mov_b32 v45, 0
    v_lshlrev_b32 v46, 2, v0
    s_lshl_b32 s41, s2, 11
    s_add_u32 s41, s41, {hex(WS_FLAG)}
    buffer_store_dword v45, v46, s[24:27], s41 offen
    K1_NOZ:
    s_waitcnt lgkmcnt(0)
    s_barrier
    s_cmp_lg_u32 s28, 0
    s_cbranch_scc1 K1_END2
    v_and_b32 v43, 15, v0
    v_lshlrev_b32 v43, 2, v43
    """)
    for v in range(8):
        a(f"ds_read_b32 v{52+v}, v43 offset:{v*64}")
    a("s_waitcnt lgkmcnt(0)")
    for v in range(1, 8):
        a(f"v_add_f32 v52, v52, v{52+v}")
    a(f"""
    v_cvt_pk_bf16_f32 v52, v52, v52
    v_and_b32 v52, 0xffff0000, v52
    s_lshl_b32 s36, s36, 1
    buffer_store_dword v52, v43, s[24:27], s36 offen
    K1_END2:
    """)
    rt_end(a, 0, 24)
    a("K1_END:")
    a("s_endpgm")
    return kernel_text("k1_prep_kernel", a.text(), 128, 128)
```

```python
from common import *
def gen_k3():
    a = Asm()
    a(f"""
    s_cmp_ge_u32 s2, 256
    s_cbranch_scc1 K3_END
    {"s_memrealtime s[96:97]" if RT else ""}
    s_load_dwordx2 s[4:5], s[0:1], {KARG['x']}
    s_load_dwordx2 s[6:7], s[0:1], {KARG['ws']}
    s_and_b32 s20, s2, 7
    s_lshl_b32 s20, s20, 5
    s_lshr_b32 s21, s2, 3
    s_add_u32 s20, s20, s21              ; oct
    v_lshlrev_b32 v1, 4, v0              ; tid*16
    v_and_b32 v2, 7, v0                  ; t
    v_lshrrev_b32 v3, 3, v0              ; L
    v_lshlrev_b32 v4, 10, v2
    v_lshl_add_u32 v4, v3, 4, v4         ; t*1024 + L*16
    v_lshlrev_b32 v5, 5, v3
    s_lshl_b32 s21, s20, 13              ; oct*8192
    s_add_u32 s22, s21, {hex(WS_PART)}
    s_waitcnt lgkmcnt(0)
    """)
    srd(a, 8, 4, 2048*512*2)
    srd(a, 12, 6, WS_SIZE)
    for g in range(8):
        a(f"buffer_load_dwordx4 v[{16+4*g}:{19+4*g}], v1, s[12:15], s22 offen")
        if g < 7: a(f"s_add_u32 s22, s22, 0x200000")
    a(f"""
    buffer_load_dwordx4 v[48:51], v4, s[8:11], s21 offen
    s_mov_b32 s23, {WS_MOD + 2*2048}
    s_mov_b32 s24, {WS_MOD + 4*2048}
    buffer_load_dwordx4 v[52:55], v5, s[12:15], s23 offen
    buffer_load_dwordx4 v[56:59], v5, s[12:15], s23 offen offset:16
    buffer_load_dwordx4 v[60:63], v5, s[12:15], s23 offen offset:2048
    buffer_load_dwordx4 v[64:67], v5, s[12:15], s23 offen offset:2064
    buffer_load_dwordx4 v[68:71], v5, s[12:15], s24 offen
    buffer_load_dwordx4 v[72:75], v5, s[12:15], s24 offen offset:16
    """)
    for g in range(8):
        a(f"s_waitcnt vmcnt({14-g})")
        for d in range(4):
            if g == 0:
                a(f"v_lshlrev_b32 v{80+2*d}, 16, v{16+d}")
                a(f"v_and_b32 v{81+2*d}, 0xffff0000, v{16+d}")
            else:
                a(f"v_lshlrev_b32 v{88+2*d}, 16, v{16+4*g+d}")
                a(f"v_and_b32 v{89+2*d}, 0xffff0000, v{16+4*g+d}")
        if g:
            for j in range(0, 8, 2):
                a(f"v_pk_add_f32 v[{80+j}:{81+j}], v[{80+j}:{81+j}], v[{88+j}:{89+j}]")
    a("s_waitcnt vmcnt(4)")
    for d in range(4):
        a(f"v_lshlrev_b32 v{88+2*d}, 16, v{48+d}")
        a(f"v_and_b32 v{89+2*d}, 0xffff0000, v{48+d}")
    for j in range(8):
        a(f"v_fma_f32 v{80+j}, v{80+j}, v{52+j}, v{88+j}")
    for d in range(4):
        a(f"v_cvt_pk_bf16_f32 v{48+d}, v{80+2*d}, v{81+2*d}")
    a(f"s_add_u32 s25, s21, {hex(WS_X1)}")
    a("buffer_store_dwordx4 v[48:51], v4, s[12:15], s25 offen")
    for d in range(4):
        a(f"v_lshlrev_b32 v{80+2*d}, 16, v{48+d}")
        a(f"v_and_b32 v{81+2*d}, 0xffff0000, v{48+d}")
    a("v_add_f32 v6, v80, v81")
    a("v_mul_f32 v7, v80, v80")
    a("v_fmac_f32 v7, v81, v81")
    for j in range(2, 8):
        a(f"v_add_f32 v6, v6, v{80+j}")
        a(f"v_fmac_f32 v7, v{80+j}, v{80+j}")
    a(f"""
    s_nop 1
    v_permlane32_swap_b32 v6, v7
    s_nop 0
    v_add_f32 v6, v6, v7
    v_mov_b32 v7, v6
    s_nop 1
    v_permlane16_swap_b32 v6, v7
    s_nop 0
    v_add_f32 v6, v6, v7
    s_nop 1
    v_add_f32_dpp v6, v6, v6 row_ror:8 row_mask:0xf bank_mask:0xf
    v_and_b32 v8, 32, v0
    v_lshlrev_b32 v8, 3, v8
    v_lshl_add_u32 v8, v2, 5, v8
    v_lshrrev_b32 v9, 6, v0
    v_lshl_add_u32 v8, v9, 2, v8
    ds_write_b32 v8, v6
    v_lshlrev_b32 v8, 5, v2
    v_lshrrev_b32 v10, 1, v3
    v_lshlrev_b32 v10, 11, v10
    v_and_b32 v11, 1, v3
    v_lshl_add_u32 v10, v11, 9, v10
    v_lshl_add_u32 v10, v2, 4, v10
    s_lshr_b32 s26, s20, 3
    s_lshl_b32 s26, s26, 16
    s_bfe_u32 s27, s20, 0x10002
    s_lshl_b32 s27, s27, 10
    s_add_u32 s26, s26, s27
    s_and_b32 s27, s20, 3
    s_lshl_b32 s27, s27, 7
    s_add_u32 s26, s26, s27
    s_add_u32 s26, s26, {hex(WS_H2)}
    s_waitcnt lgkmcnt(0)
    s_barrier
    ds_read_b128 v[16:19], v8
    ds_read_b128 v[20:23], v8 offset:16
    ds_read_b128 v[24:27], v8 offset:256
    ds_read_b128 v[28:31], v8 offset:272
    s_waitcnt vmcnt(1)
    """)
    for j in range(8):
        a(f"v_add_f32 v{68+j}, 1.0, v{68+j}")
    for d in range(4):
        a(f"v_cvt_pk_bf16_f32 v{32+d}, v{68+2*d}, v{69+2*d}")
    for d in range(4):
        a(f"v_lshlrev_b32 v{68+2*d}, 16, v{32+d}")
        a(f"v_and_b32 v{69+2*d}, 0xffff0000, v{32+d}")
    a("s_waitcnt lgkmcnt(0)")
    for j in range(1, 8):
        a(f"v_add_f32 v16, v16, v{16+j}")
        a(f"v_add_f32 v24, v24, v{24+j}")
    a(f"""
    v_mul_f32 v16, {f32(1/512)}, v16
    v_mul_f32 v24, {f32(1/512)}, v24
    v_fma_f32 v24, -v16, v16, v24
    v_max_f32 v24, 0, v24
    v_add_f32 v24, {f32(1e-5)}, v24
    v_rsq_f32 v24, v24
    s_nop 0
    v_mul_f32 v16, v16, v24
    """)
    for j in range(8):
        a(f"v_fma_f32 v{80+j}, v{80+j}, v24, -v16")
    for j in range(8):
        a(f"v_fma_f32 v{80+j}, v{80+j}, v{68+j}, v{60+j}")
    for d in range(4):
        a(f"v_cvt_pk_bf16_f32 v{32+d}, v{80+2*d}, v{81+2*d}")
    a("""
    buffer_store_dwordx4 v[32:35], v10, s[12:15], s26 offen
    """)
    rt_end(a, 2, 12)
    a("K3_END:")
    a("s_endpgm")
    return kernel_text("k3_ln2_kernel", a.text(), 96, 96)
```

```python
from common import *
import math
from gemm import *
from ka import ACC, VLIN, VTR, VDMA, VB, VT, AA, AB, HB
WR = 65536
K4_LDS = 163840
R = 6
S_AM0, S_AOFF = 34, 35
SG, SU, SWS = 8, 12, 16
S_W, S_WOFF, S_RING, S_CNT = 20, 21, 23, 24
STRIDE = 3584

def reads(buf, slot, kofs):
    A = lambda i: AA + 16*buf + 4*i
    B = lambda th: AB + 8*buf + 4*th
    rb = lambda th: f"ds_read_b128 {ar(B(th),4)}, v{VB} offset:{kofs + th*1024}"
    ra = lambda i, h: f"ds_read_b64_tr_b16 {ar(A(i)+2*h,2)}, v{VTR+(i&1)} offset:{slot*4096 + (i>>1)*2048 + h*512}"
    return [rb(0), ra(0,0), ra(0,1), rb(1), ra(1,0), ra(1,1), ra(2,0), ra(2,1), ra(3,0), ra(3,1)]
def w_dma(slot):
    r = [f"s_add_u32 m0, s{S_RING}, {slot*4096}"]
    d = [f"buffer_load_dwordx4 v{VDMA+(j&1)}, s[{SG if j < 2 else SU}:{(SG if j < 2 else SU)+3}], s{S_WOFF} offen offset:{j*1024} lds" for j in range(4)]
    return r, d, [f"s_add_u32 s{S_WOFF}, s{S_WOFF}, {16*STRIDE}"]

def aux_dma():
    pre = [f"s_mov_b32 m0, s{S_AM0}"]
    d = [f"buffer_load_dwordx4 v{VLIN}, s[{SWS}:{SWS+3}], s{S_AOFF} offen lds"]
    post = [f"s_add_u32 s{S_AM0}, s{S_AM0}, 4096", f"s_add_u32 s{S_AOFF}, s{S_AOFF}, 4096"]
    return pre, d, post

def gen_k4():
    a = Asm()
    a(f"""
    s_cmp_ge_u32 s2, 224
    s_cbranch_scc1 K4_END
    {"s_memrealtime s[96:97]" if RT else ""}
    s_load_dwordx4 s[4:7], s[0:1], {KARG['wg']}
    s_load_dwordx2 s[40:41], s[0:1], {KARG['ws']}
    v_and_b32 v{VT}, 63, v0
    v_lshrrev_b32 v{VT+1}, 6, v0
    v_lshlrev_b32 v{VLIN}, 4, v{VT}
    v_readfirstlane_b32 s{S_W}, v{VT+1}
    s_and_b32 s43, s2, 7
    s_lshl_b32 s43, s43, 2
    s_bfe_u32 s42, s2, 0x20003
    s_add_u32 s43, s43, s42                 ; tb
    s_lshr_b32 s42, s2, 5                   ; fb
    v_lshrrev_b32 v{VT+2}, 3, v{VT}
    v_and_b32 v{VT+3}, 7, v{VT}
    v_bfe_u32 v{VT+4}, v{VT}, 4, 1
    v_lshlrev_b32 v{VT+4}, 2, v{VT+4}
    v_xor_b32 v{VT+3}, v{VT+3}, v{VT+4}
    v_mul_u32_u24 v{VDMA}, {STRIDE}, v{VT+2}
    v_lshl_add_u32 v{VDMA}, v{VT+3}, 4, v{VDMA}
    v_add_u32 v{VDMA+1}, {8*STRIDE-1024}, v{VDMA}
    s_mul_i32 s{S_RING}, s{S_W}, {R*4096}
    s_add_u32 s{S_RING}, s{S_RING}, {WR}
    s_lshl_b32 s44, s42, 9
    s_lshl_b32 s45, s{S_W}, 7
    s_add_u32 s{S_WOFF}, s44, s45
    s_waitcnt lgkmcnt(0)
    """)
    srd(a, SG, 4, 512*STRIDE)
    a(f"""
    s_sub_u32 s{SU}, s6, 2048
    s_subb_u32 s{SU+1}, s7, 0
    s_mov_b32 s{SU+2}, {512*STRIDE + 2048}
    s_mov_b32 s{SU+3}, 0x20000
    """)
    srd(a, SWS, 40, WS_SIZE)
    a(f"""
    s_lshl_b32 s44, s43, 16
    s_lshl_b32 s{S_AM0}, s{S_W}, 10
    s_add_u32 s{S_AOFF}, s44, s{S_AM0}
    s_add_u32 s{S_AOFF}, s{S_AOFF}, {hex(WS_H2)}
    """)
    vq = VQ()
    def pro_aux(j):
        pre, d, post = aux_dma()
        for x in pre + ["s_nop 0"] + d + post: a(x)
        vq.issue(('A', j))
    def pro_w(s_):
        pre, d, post = w_dma(s_)
        for x in pre + ["s_nop 0"] + d + post: a(x)
        vq.issue(('W', s_), 4)
    pro_aux(0); pro_aux(1); pro_w(0); pro_aux(2); pro_w(1); pro_w(2); pro_aux(3); pro_w(3); pro_w(4); pro_aux(4); pro_w(5)
    PA = 5
    a(f"""
    v_lshrrev_b32 v{VT+2}, 5, v{VT}
    v_lshlrev_b32 v{VT+2}, 10, v{VT+2}        ; hi*8*128
    v_bfe_u32 v{VT+3}, v{VT}, 2, 2            ; r
    v_lshl_add_u32 v{VT+2}, v{VT+3}, 7, v{VT+2}
    v_and_b32 v{VT+4}, 16, v{VT}
    v_lshl_add_u32 v{VT+2}, v{VT+4}, 1, v{VT+2}
    v_and_b32 v{VT+4}, 1, v{VT}
    v_lshl_add_u32 v{VT+2}, v{VT+4}, 4, v{VT+2}
    v_and_b32 v{VT+4}, 2, v{VT}
    v_lshl_add_u32 v{VT+2}, v{VT+4}, 2, v{VT+2}
    v_add_u32 v{VT+2}, s{S_RING}, v{VT+2}
    v_lshrrev_b32 v{VT+3}, 1, v{VT+3}         ; r>>1
    v_lshl_add_u32 v{VTR}, v{VT+3}, 6, v{VT+2}
    v_xor_b32 v{VT+3}, 1, v{VT+3}
    v_lshl_add_u32 v{VTR+1}, v{VT+3}, 6, v{VT+2}
    v_mov_b32 v{VB}, v{VLIN}
    """)
    Gemm("K4", R, ACC, AA, AB, VB, S_CNT, reads, w_dma, aux=aux_dma, P=PA, naux=16).run(a, vq, 2, 6, 3)
    a(f"""
    s_mul_i32 s44, s43, {112*2048}
    s_lshl_b32 s45, s42, 15
    s_add_u32 s44, s44, s45
    s_lshl_b32 s45, s{S_W}, 13              ; w*4 ksteps
    s_add_u32 s44, s44, s45
    s_add_u32 s44, s44, {hex(WS_G)}
    s_add_u32 s45, s44, 4096
    s_mov_b32 s46, {f32(-2*math.log2(math.e)*math.sqrt(2/math.pi)*0.044715)}
    s_nop 7
    """)
    c1 = f32(-2*math.log2(math.e)*math.sqrt(2/math.pi))
    a(f"v_mov_b32 v{VT+8}, {c1}")
    n = 0
    for i in range(2):
        for th in range(2):
            for sub in range(2):
                g = ACC + (i*2+th)*16 + 8*sub
                u = ACC + ((i+2)*2+th)*16 + 8*sub
                t = 128 + 8*(n & 1)
                o = 144 + 4*(n % 8); n += 1
                for j in range(8): a(f"v_mul_f32 v{t+j}, v{g+j}, v{g+j}")
                for j in range(8): a(f"v_fma_f32 v{t+j}, v{t+j}, s46, v{VT+8}")
                for j in range(8): a(f"v_mul_f32 v{t+j}, v{t+j}, v{g+j}")
                for j in range(8): a(f"v_exp_f32 v{t+j}, v{t+j}")
                for j in range(8): a(f"v_mul_f32 v{g+j}, v{g+j}, v{u+j}")
                for j in range(8): a(f"v_add_f32 v{t+j}, 1.0, v{t+j}")
                for j in range(8): a(f"v_rcp_f32 v{t+j}, v{t+j}")
                a("s_nop 0")
                for j in range(8): a(f"v_mul_f32 v{g+j}, v{g+j}, v{t+j}")
                for d in range(4): a(f"v_cvt_pk_bf16_f32 v{o+d}, v{g+2*d}, v{g+2*d+1}")
                a(f"buffer_store_dwordx4 {vr(o,4)}, v{VLIN}, s[{SWS}:{SWS+3}], s{44+i} offen offset:{sub*2048 + th*1024}")
    rt_end(a, 3, SWS)
    a("K4_END:")
    a("s_endpgm")
    return kernel_text("k4_gu_kernel", a.text(), 512, 256)
```

```python
from common import *
from gemm import mfma
K5_LDS = 65536
D = 7
SWD, SWS, SOUT = 8, 12, 16
S_W, S_WOFF, S_GOFF, S_RING = 20, 21, 22, 23
ACC = 0
VLIN, VTR, VDMA, VT = 64, 65, 67, 70
AB = 0
AA = 64
def gen_k5():
    a = Asm()
    a(f"""
    s_cmp_ge_u32 s2, 256
    s_cbranch_scc1 K5_END
    {"s_memrealtime s[96:97]" if RT else ""}
    s_load_dwordx2 s[4:5], s[0:1], {KARG['wd']}
    s_load_dwordx2 s[6:7], s[0:1], {KARG['out']}
    s_load_dwordx2 s[40:41], s[0:1], {KARG['ws']}
    v_and_b32 v{VT}, 63, v0
    v_lshrrev_b32 v{VT+1}, 6, v0
    v_lshlrev_b32 v{VLIN}, 4, v{VT}
    v_readfirstlane_b32 s{S_W}, v{VT+1}
    s_and_b32 s43, s2, 7
    s_lshl_b32 s43, s43, 2
    s_bfe_u32 s42, s2, 0x20003
    s_add_u32 s43, s43, s42                 ; tb
    s_lshr_b32 s42, s2, 5                   ; nb
    v_lshrrev_b32 v{VT+2}, 3, v{VT}
    v_and_b32 v{VT+3}, 7, v{VT}
    v_bfe_u32 v{VT+4}, v{VT}, 4, 1
    v_lshlrev_b32 v{VT+4}, 2, v{VT+4}
    v_xor_b32 v{VT+3}, v{VT+3}, v{VT+4}
    v_lshlrev_b32 v{VDMA}, 10, v{VT+2}
    v_lshl_add_u32 v{VDMA}, v{VT+3}, 4, v{VDMA}
    v_add_u32 v{VDMA+1}, {8*1024-1024}, v{VDMA}
    s_lshl_b32 s{S_RING}, s{S_W}, 14
    s_mul_i32 s44, s{S_W}, {28*16*1024}
    s_lshl_b32 s45, s42, 7
    s_add_u32 s{S_WOFF}, s44, s45
    s_mul_i32 s44, s43, {112*2048}
    s_mul_i32 s45, s{S_W}, {28*2048}
    s_add_u32 s{S_GOFF}, s44, s45
    s_add_u32 s{S_GOFF}, s{S_GOFF}, {hex(WS_G)}
    s_waitcnt lgkmcnt(0)
    """)
    srd(a, SWD, 4, 1792*1024)
    srd(a, SWS, 40, WS_SIZE)
    srd(a, SOUT, 6, 2048*1024)
    def loads(s):
        slot = s % D
        r = [f"s_add_u32 m0, s{S_RING}, {slot*2048}",
             f"buffer_load_dwordx4 {ar(AB+8*slot,4)}, v{VLIN}, s[{SWS}:{SWS+3}], s{S_GOFF} offen",
             f"buffer_load_dwordx4 v{VDMA}, s[{SWD}:{SWD+3}], s{S_WOFF} offen lds",
             f"buffer_load_dwordx4 v{VDMA+1}, s[{SWD}:{SWD+3}], s{S_WOFF} offen offset:1024 lds",
             f"buffer_load_dwordx4 {ar(AB+8*slot+4,4)}, v{VLIN}, s[{SWS}:{SWS+3}], s{S_GOFF} offen offset:1024",
             f"s_add_u32 s{S_WOFF}, s{S_WOFF}, {16*1024}",
             f"s_add_u32 s{S_GOFF}, s{S_GOFF}, 2048"]
        return r
    def areads(s):
        slot = s % D; buf = s & 1
        return [f"ds_read_b64_tr_b16 {ar(AA+8*buf+4*i+2*h,2)}, v{VTR+i} offset:{slot*2048 + h*512}" for i in range(2) for h in range(2)]
    for s in range(D):
        for x in loads(s): a(x)
    a(f"""
    v_lshrrev_b32 v{VT+2}, 5, v{VT}
    v_lshlrev_b32 v{VT+2}, 10, v{VT+2}
    v_bfe_u32 v{VT+3}, v{VT}, 2, 2
    v_lshl_add_u32 v{VT+2}, v{VT+3}, 7, v{VT+2}
    v_and_b32 v{VT+4}, 16, v{VT}
    v_lshl_add_u32 v{VT+2}, v{VT+4}, 1, v{VT+2}
    v_and_b32 v{VT+4}, 1, v{VT}
    v_lshl_add_u32 v{VT+2}, v{VT+4}, 4, v{VT+2}
    v_and_b32 v{VT+4}, 2, v{VT}
    v_lshl_add_u32 v{VT+2}, v{VT+4}, 2, v{VT+2}
    v_add_u32 v{VT+2}, s{S_RING}, v{VT+2}
    v_lshrrev_b32 v{VT+3}, 1, v{VT+3}
    v_lshl_add_u32 v{VTR}, v{VT+3}, 6, v{VT+2}
    v_xor_b32 v{VT+3}, 1, v{VT+3}
    v_lshl_add_u32 v{VTR+1}, v{VT+3}, 6, v{VT+2}
    s_waitcnt vmcnt({4*(D-1)})
    """)
    for x in areads(0): a(x)
    for s in range(28):
        slot = s % D; buf = s & 1
        if s + 1 < 28:
            younger = min(s + D - 1, 27) - (s + 1)
            a(f"s_waitcnt vmcnt({4*younger}) lgkmcnt(0)")
            for x in areads(s+1): a(x)
        else:
            a("s_waitcnt lgkmcnt(0)")
        for i in range(2):
            for th in range(2):
                d = vr(ACC + (i*2+th)*16, 16)
                a(mfma(d, ar(AA+8*buf+4*i,4), ar(AB+8*slot+4*th,4), "0" if s == 0 else d))
        if s + D < 28:
            for x in loads(s + D): a(x)
    a(f"""
    v_and_b32 v{VT+2}, 31, v{VT}
    v_lshlrev_b32 v{VT+2}, 10, v{VT+2}
    v_lshrrev_b32 v{VT+3}, 5, v{VT}
    v_lshl_add_u32 v{VT+2}, v{VT+3}, 4, v{VT+2}      ; t*1024 + hi*16
    v_lshlrev_b32 v{VT+3}, 5, v{VT+3}
    s_lshr_b32 s44, s{S_W}, 1                        ; i
    s_and_b32 s45, s{S_W}, 1                         ; th
    s_lshl_b32 s46, s43, 16
    s_lshl_b32 s47, s45, 15
    s_add_u32 s46, s46, s47
    s_lshl_b32 s47, s42, 7
    s_add_u32 s46, s46, s47
    s_lshl_b32 s48, s44, 6
    s_add_u32 s46, s46, s48
    s_add_u32 s49, s46, {hex(WS_X1)}
    s_add_u32 s47, s47, s48
    s_lshl_b32 s47, s47, 1
    s_add_u32 s47, s47, {WS_MOD + 5*2048}
    buffer_load_dwordx4 v[80:83], v{VT+2}, s[{SWS}:{SWS+3}], s49 offen
    buffer_load_dwordx4 v[84:87], v{VT+2}, s[{SWS}:{SWS+3}], s49 offen offset:32
    buffer_load_dwordx4 v[88:91], v{VT+3}, s[{SWS}:{SWS+3}], s47 offen
    buffer_load_dwordx4 v[92:95], v{VT+3}, s[{SWS}:{SWS+3}], s47 offen offset:16
    buffer_load_dwordx4 v[96:99], v{VT+3}, s[{SWS}:{SWS+3}], s47 offen offset:64
    buffer_load_dwordx4 v[100:103], v{VT+3}, s[{SWS}:{SWS+3}], s47 offen offset:80
    v_add_u32 v{VT+4}, s{S_RING}, v{VLIN}
    s_lshl_b32 s50, s{S_W}, 12
    v_add_u32 v{VT+5}, s50, v{VLIN}
    """)
    for q in range(16):
        a(f"ds_write_b128 v{VT+4}, {vr(ACC+4*q,4)} offset:{q*1024}")
    a("s_waitcnt lgkmcnt(0)")
    a("s_barrier")
    for w in range(4):
        for q in range(4):
            a(f"ds_read_b128 {vr(ACC+16*w+4*q,4)}, v{VT+5} offset:{w*16384 + q*1024}")
    a("s_waitcnt lgkmcnt(0)")
    for k in range(0, 16, 2):
        a(f"v_pk_add_f32 v[{k}:{k+1}], v[{k}:{k+1}], v[{16+k}:{17+k}]")
        a(f"v_pk_add_f32 v[{32+k}:{33+k}], v[{32+k}:{33+k}], v[{48+k}:{49+k}]")
    for k in range(0, 16, 2):
        a(f"v_pk_add_f32 v[{k}:{k+1}], v[{k}:{k+1}], v[{32+k}:{33+k}]")
    a("s_waitcnt vmcnt(0)")
    for d in range(8):
        a(f"v_lshlrev_b32 v{16+2*d}, 16, v{80+d}")
        a(f"v_and_b32 v{17+2*d}, 0xffff0000, v{80+d}")
    for k in range(16):
        a(f"v_fma_f32 v{k}, v{k}, v{88+k}, v{16+k}")
    for d in range(8):
        a(f"v_cvt_pk_bf16_f32 v{32+d}, v{2*d}, v{2*d+1}")
    a(f"""
    buffer_store_dwordx4 v[32:35], v{VT+2}, s[{SOUT}:{SOUT+3}], s46 offen
    buffer_store_dwordx4 v[36:39], v{VT+2}, s[{SOUT}:{SOUT+3}], s46 offen offset:32
    """)
    rt_end(a, 4, SWS)
    a("K5_END:")
    a("s_endpgm")
    return kernel_text("k5_down_kernel", a.text(), 104+80, 104)
```

```python
from common import *
from gemm import *
ACC = 0
S = [128, 144]
M = [160, 176]
P = [192, 200]
E = 208
L = [216, 217]
LT = [218, 219]
VLIN = 220
VTR = 221
VDMA = 225
VB = 229
VKV = 230
VT = 232
VWO = 248
AQ = 0
AK = 64
AV = 128
AA = 192
AB = 224
HB = 0
KVD = 65536
WR = 98304
KA_LDS = 163840
SW = 8
SWS = 12
SWO = 16
S_W = 20
S_WOFF = 21
S_WSTEP = 22
S_RING = 23
S_CNT = 24
S_RSLOT = 25
S_DSLOT = 26
S_DOFF = 27
S_RET = 28
S_T0 = 30
BIAS = 60.0
THR = 2.0**60

def gemm_reads(buf, slot, kofs):
    r = []
    A = lambda i: AA + 16*buf + 4*i
    B = lambda th: AB + 8*buf + 4*th
    rb = lambda th: f"ds_read_b128 {ar(B(th),4)}, v{VB} offset:{kofs + th*1024}"
    ra = lambda i, h: f"ds_read_b64_tr_b16 {ar(A(i)+2*h,2)}, v{VTR+i} offset:{slot*4096 + h*1024}"
    return [rb(0), ra(0,0), ra(0,1), rb(1), ra(1,0), ra(1,1), ra(2,0), ra(2,1), ra(3,0), ra(3,1)]

def w_dma(slot):
    r = [f"s_add_u32 m0, s{S_RING}, {slot*4096}"]
    d = [f"buffer_load_dwordx4 v{VDMA+j}, s[{SW}:{SW+3}], s{S_WOFF} offen offset:{j*1024} lds" for j in range(4)]
    return r, d, [f"s_add_u32 s{S_WOFF}, s{S_WOFF}, s{S_WSTEP}"]

S_AM0 = 34
S_AOFF = 35
def aux_dma():
    pre = [f"s_mov_b32 m0, s{S_AM0}"]
    d = [f"buffer_load_dwordx4 v{VLIN}, s[{SWS}:{SWS+3}], s{S_AOFF} offen lds"]
    post = [f"s_add_u32 s{S_AM0}, s{S_AM0}, 4096", f"s_add_u32 s{S_AOFF}, s{S_AOFF}, 4096",
            f"s_cmp_eq_u32 s{S_AM0}, s{S_AM0+2}", f"s_cselect_b32 s{S_AOFF}, s{S_AM0+3}, s{S_AOFF}"]
    return pre, d, post

def kv_dma():
    pre = [f"s_mov_b32 m0, s{S_DSLOT}"]
    d = [f"buffer_load_dwordx4 v{VDMA+j}, s[{SW}:{SW+3}], s{S_DOFF} offen offset:{j*1024} lds" for j in range(4)]
    return pre, d

def exp_stream(h):
    st = []
    e = lambda k: f"v{E + (k % 8)}"
    ex = lambda k: (f"v_exp_f32 {e(k)}, v{S[h]+k}", 8)
    lt = f"v{LT[h]}"
    seq = []
    for k in range(16):
        seq.append(ex(k))
        if k >= 2 and k % 2 == 0:
            j = k - 2
            if j == 0: seq.append((f"v_add_f32 {lt}, {e(0)}, {e(1)}", 4))
            else:
                seq.append((f"v_add_f32 {lt}, {lt}, {e(j)}", 4))
                seq.append((f"v_add_f32 {lt}, {lt}, {e(j+1)}", 4))
        if k >= 3 and k % 2 == 1:
            j = k - 3
            seq.append((f"v_cvt_pk_bf16_f32 v{P[h]+j//2}, {e(j)}, {e(j+1)}", 5))
    seq.append((f"v_add_f32 {lt}, {lt}, {e(14)}", 4))
    seq.append((f"v_add_f32 {lt}, {lt}, {e(15)}", 4))
    seq.append((f"v_cmp_lt_f32 vcc, s{S_T0}, {lt}", 4))
    seq.append((f"v_cvt_pk_bf16_f32 v{P[h]+7}, {e(14)}, {e(15)}", 5))
    return seq

def spread(gaps, fixed_cost, stream, g0, g1, budget=24):
    total = sum(c for _, c in stream) + sum(fixed_cost[g0:g1+1])
    n = g1 - g0 + 1
    per = total / n
    it = 0; acc = 0.0
    for g in range(g0, g1+1):
        acc += fixed_cost[g]
        target = per * (g - g0 + 1)
        while it < len(stream) and (g == g1 or acc + stream[it][1]/2 <= target):
            gaps[g].append(stream[it][0]); acc += stream[it][1]; it += 1

site_counter = [0]
sites = {0: [], 1: []}
def check_site(h):
    k = site_counter[0]; site_counter[0] += 1
    sites[h].append(k)
    return [f"s_cbranch_vccnz KA_TR{k}", f"KA_RET{k}:", f"v_add_f32 v{L[h]}, v{L[h]}, v{LT[h]}"]

def qk_mf(h, buf, czero=False):
    return [mfma(vr(S[h],16), ar(AK+32*buf+4*ks,4), ar(AQ+(ks*2+h)*4,4),
                 ("0" if czero else vr(M[h],16)) if ks == 0 else vr(S[h],16)) for ks in range(8)]
def pv_mf(h, buf, czero=False):
    r = []
    for kk in range(2):
        for dt in range(4):
            d = vr(ACC + (dt*2+h)*16, 16)
            r.append(mfma(d, ar(AV+32*buf+(kk*4+dt)*4,4), vr(P[h]+4*kk,4), "0" if (czero and kk == 0) else d))
    return r
def k_reads(buf): return [f"ds_read_b128 {ar(AK+32*buf+4*j,4)}, v{VKV} offset:{j*1024}" for j in range(8)]
def v_reads(buf): return [f"ds_read_b128 {ar(AV+32*buf+4*j,4)}, v{VKV} offset:{8192+j*1024}" for j in range(8)]

def init_half(a, h):
    t = VT
    a(f"v_max3_f32 v{t}, v{S[h]}, v{S[h]+1}, v{S[h]+2}")
    for k in range(3, 15, 2):
        a(f"v_max3_f32 v{t}, v{t}, v{S[h]+k}, v{S[h]+k+1}")
    a(f"v_max_f32 v{t}, v{t}, v{S[h]+15}")
    a(f"v_mov_b32 v{t+1}, v{t}")
    a("s_nop 1")
    a(f"v_permlane32_swap_b32 v{t}, v{t+1}")
    a("s_nop 0")
    a(f"v_max_f32 v{t}, v{t}, v{t+1}")
    a(f"v_sub_f32 v{t}, {f32(-BIAS)}, v{t}")
    for k in range(16): a(f"v_add_f32 v{S[h]+k}, v{S[h]+k}, v{t}")
    for k in range(16): a(f"v_mov_b32 v{M[h]+k}, v{t}")
    a(f"v_mov_b32 v{L[h]}, 0")

def period(a, par, kind="mid", pend1=None):
    last = kind == "last"
    mf = qk_mf(0, par) + pv_mf(1, par ^ 1) + qk_mf(1, par) + pv_mf(0, par)
    gaps = [[] for _ in range(32)]
    cost = [0]*32
    def put(g, instrs, c=None):
        gaps[g] += instrs
        cost[g] += (4*len(instrs) if c is None else c)
    if not last:
        put(0, ["s_waitcnt vmcnt(12)", "s_barrier"], 24)
        put(1, [f"s_add_u32 s{S_RSLOT}, s{S_RSLOT}, 16384", f"s_cmp_eq_u32 s{S_RSLOT}, 98304", f"s_cselect_b32 s{S_RSLOT}, 0, s{S_RSLOT}",
                f"v_add_u32 v{VKV}, s{S_RSLOT}, v{VLIN}"], 12)
        kr = k_reads(par ^ 1); vr_ = v_reads(par ^ 1)
        put(7, kr[0:1]); put(8, kr[1:5]); put(9, kr[5:8])
        put(23, vr_[0:1]); put(24, vr_[1:5]); put(25, vr_[5:8])
        pre, d = kv_dma()
        put(11, pre, 0); put(12, [d[0]], 8); put(14, [d[1]], 8); put(16, [d[2]], 8); put(18, [d[3]], 8)
        put(19, [f"s_add_u32 s{S_DOFF}, s{S_DOFF}, s{S_WSTEP}"], 0)
        put(20, [f"s_add_u32 s{S_DSLOT}, s{S_DSLOT}, s{S_T0+1}"], 0)
        put(21, [f"s_cmp_ge_u32 s{S_DSLOT}, s{S_T0+2}"], 0)
        put(22, [f"s_cselect_b32 s{S_DSLOT}, s{S_T0+3}, s{S_DSLOT}"], 0)
        put(31, ["s_waitcnt lgkmcnt(0)"], 0)
    else:
        put(0, ["s_barrier"], 24)
        for g_ in (8, 9, 24, 25): put(g_, ["s_nop 3"], 16)
    spread(gaps, cost, pend1, 1 if not last else 1, 6)
    gaps[7] = check_site(1) + gaps[7]
    st0 = exp_stream(0)
    spread(gaps, cost, st0, 10, 22)
    gaps[23] = check_site(0) + gaps[23]
    st1 = exp_stream(1)
    tot = sum(c for _, c in st1); accu = 0; cut = 0
    while accu + st1[cut][1] <= tot*0.52: accu += st1[cut][1]; cut += 1
    spread(gaps, cost, st1[:cut], 26, 31)
    emit(a, mf, gaps)
    return st1[cut:]

STAMP = False
def stamp(a, k):
    if STAMP: a(f"s_memtime s[{60+2*k}:{61+2*k}]")
def gen_ka():
    site_counter[0] = 0; sites[0].clear(); sites[1].clear()
    a = Asm()
    a(f"""
    s_cmp_ge_u32 s2, 256
    s_cbranch_scc1 KA_END
    {"s_memrealtime s[96:97]" if RT else ""}
    {"s_memrealtime s[80:81]" if STAMP else ""}
    {"s_memtime s[60:61]" if STAMP else ""}
    s_load_dwordx4 s[4:7], s[0:1], {KARG['wq']}
    s_load_dwordx2 s[40:41], s[0:1], {KARG['ws']}
    v_and_b32 v{VT}, 63, v0                 ; lane
    v_lshrrev_b32 v{VT+1}, 6, v0
    v_lshlrev_b32 v{VLIN}, 4, v{VT}
    v_readfirstlane_b32 s{S_W}, v{VT+1}
    s_and_b32 s42, s2, 7                    ; g
    s_lshr_b32 s43, s2, 3                   ; tb
    v_lshrrev_b32 v{VT+2}, 4, v{VT}
    v_and_b32 v{VT+3}, 15, v{VT}
    v_lshlrev_b32 v{VT+4}, 2, v{VT+2}
    v_xor_b32 v{VT+3}, v{VT+3}, v{VT+4}
    v_lshlrev_b32 v{VT+3}, 4, v{VT+3}
    v_lshl_add_u32 v{VDMA}, v{VT+2}, 13, v{VT+3}
    v_lshl_add_u32 v{VWO}, v{VT+2}, 10, v{VT+3}
    """)
    for j in range(1, 4):
        a(f"v_add_u32 v{VDMA+j}, {j*(4*8192-1024)}, v{VDMA}")
        a(f"v_add_u32 v{VWO+j}, {j*(4*1024-1024)}, v{VWO}")
    a(f"""
    s_lshl_b32 s{S_RING}, s{S_W}, 14
    s_add_u32 s{S_RING}, s{S_RING}, {WR}
    s_lshl_b32 s44, s42, 10
    s_lshl_b32 s45, s{S_W}, 8
    s_add_u32 s{S_WOFF}, s44, s45
    s_mov_b32 s{S_WSTEP}, {16*8192}
    s_lshl_b32 s44, s42, 19                 ; g*512*1024
    s_waitcnt lgkmcnt(0)
    """)
    srd(a, SW, 4, 512*4096*2)
    srd(a, SWS, 40, WS_SIZE)
    srd_dyn(a, SWO, 6, 44, 512*1024)
    a(f"""
    s_lshl_b32 s44, s43, 16
    s_lshl_b32 s{S_AM0}, s{S_W}, 10
    s_add_u32 s{S_AOFF}, s44, s{S_AM0}
    s_add_u32 s{S_AOFF}, s{S_AOFF}, {hex(WS_H)}
    s_add_u32 s{S_AM0+2}, s{S_AM0}, {KVD}
    s_lshl_b32 s44, s42, 18
    s_add_u32 s{S_AM0+3}, s44, s{S_AM0}
    s_add_u32 s{S_AM0+3}, s{S_AM0+3}, {hex(WS_KV)}
    """)
    vq = VQ()
    PA = 6
    def pro_aux(j):
        pre, d, post = aux_dma()
        for x in pre + ["s_nop 0"] + d + post[:2]: a(x)
        vq.issue(('A', j))
    def pro_w(s_):
        pre, d, post = w_dma(s_)
        for x in pre + ["s_nop 0"] + d + post: a(x)
        vq.issue(('W', s_), 4)
    pro_aux(0); pro_aux(1); pro_w(0); pro_w(1); pro_aux(2); pro_w(2); pro_aux(3); pro_w(3); pro_aux(4); pro_aux(5)
    a(f"""
    v_lshrrev_b32 v{VT+2}, 5, v{VT}
    v_lshlrev_b32 v{VT+2}, 11, v{VT+2}        ; hi*8*256
    v_bfe_u32 v{VT+3}, v{VT}, 2, 2            ; r
    v_lshl_add_u32 v{VT+2}, v{VT+3}, 8, v{VT+2}
    v_and_b32 v{VT+4}, 16, v{VT}
    v_lshl_add_u32 v{VT+2}, v{VT+4}, 1, v{VT+2}   ; + mhalf*32
    v_and_b32 v{VT+4}, 1, v{VT}
    v_lshl_add_u32 v{VT+2}, v{VT+4}, 4, v{VT+2}   ; c bit0 -> 16
    v_and_b32 v{VT+4}, 2, v{VT}
    v_lshl_add_u32 v{VT+2}, v{VT+4}, 2, v{VT+2}   ; c bit1 -> 8
    v_add_u32 v{VT+2}, s{S_RING}, v{VT+2}
    """)
    for i in range(4):
        a(f"v_xor_b32 v{VT+4}, {i}, v{VT+3}")
        a(f"v_lshl_add_u32 v{VTR+i}, v{VT+4}, 6, v{VT+2}")
    a(f"""
    v_mov_b32 v{VB}, v{VLIN}
    s_mov_b32 s{S_T0}, {f32(THR)}
    s_lshl_b32 s44, s42, 18
    s_lshl_b32 s45, s{S_W}, 12
    s_add_u32 s{S_DOFF}, s44, s45
    s_add_u32 s{S_DOFF}, s{S_DOFF}, {hex(WS_KV + 2*16384)}
    s_mov_b32 s{S_T0+1}, 16384
    s_add_u32 s{S_T0+2}, s45, 98304
    s_mov_b32 s{S_T0+3}, s45
    """)
    stamp(a, 1)
    Gemm("KA_Q", 4, ACC, AA, AB, VB, S_CNT, gemm_reads, w_dma, aux=aux_dma, P=PA, naux=24).run(a, vq, 4, 4, 6)
    assert vq.q.count(('A', 23)) == 1
    stamp(a, 2)
    a(f"""
    s_mov_b32 s{SW}, s{SWS}
    s_mov_b32 s{SW+1}, s{SWS+1}
    s_mov_b32 s{SW+2}, s{SWS+2}
    s_mov_b32 s{S_WSTEP}, 16384
    s_mov_b32 s{S_DSLOT}, s{S_T0+3}
    s_mov_b32 s{S_RSLOT}, {KVD}
    """)
    for j in range(4): a(f"v_mov_b32 v{VDMA+j}, v{VLIN}")
    a(f"v_add_u32 v{VKV}, {KVD}, v{VLIN}")
    a(f"s_waitcnt vmcnt({vq.need(('A', 19))})")
    a("s_barrier")
    for x in k_reads(0): a(x)
    for t in range(3):
        pre, d = kv_dma()
        for x in pre: a(x)
        a("s_nop 0")
        for x in d: a(x)
        a(f"s_add_u32 s{S_DOFF}, s{S_DOFF}, 16384")
        a(f"s_add_u32 s{S_DSLOT}, s{S_DSLOT}, 16384")
    for x in v_reads(0): a(x)
    for th in range(2):
        for i in range(4):
            for sub in range(2):
                base = ACC + (i*2+th)*16 + 8*sub
                for d in range(4):
                    a(f"v_cvt_pk_bf16_f32 v{VT+d}, v{base+2*d}, v{base+2*d+1}")
                for d in range(4):
                    a(f"v_accvgpr_write_b32 a{AQ + ((2*i+sub)*2+th)*4 + d}, v{VT+d}")
    a("s_waitcnt lgkmcnt(0)")
    for x in qk_mf(0, 0, czero=True): a(x)
    a("s_waitcnt vmcnt(12)")
    a("s_barrier")
    a(f"s_add_u32 s{S_RSLOT}, s{S_RSLOT}, 16384")
    a(f"v_add_u32 v{VKV}, s{S_RSLOT}, v{VLIN}")
    mf = qk_mf(1, 0, czero=True)
    kr = k_reads(1); vr_ = v_reads(1)
    for j in range(8):
        a(mf[j]); a(kr[j]); a(vr_[j])
    pre, d = kv_dma()
    for x in pre: a(x)
    a("s_nop 0")
    for x in d: a(x)
    a(f"s_add_u32 s{S_DOFF}, s{S_DOFF}, 16384")
    a(f"s_add_u32 s{S_DSLOT}, s{S_DSLOT}, 16384")
    a(f"""
    s_lshl_b32 s44, s43, 14
    s_lshl_b32 s45, s{S_W}, 12
    s_add_u32 s44, s44, s45
    """)
    for j in range(4):
        a(f"buffer_load_dwordx4 {ar(240+4*j,4)}, v{VLIN}, s[{SWO}:{SWO+3}], s44 offen offset:{j*1024}")
    init_half(a, 0)
    for x, _ in exp_stream(0): a(x)
    a(f"v_mov_b32 v{L[0]}, v{LT[0]}")
    init_half(a, 1)
    st1 = exp_stream(1)
    gaps = [[] for _ in range(8)]
    tot = sum(c for _, c in st1); accu = 0; cut = 0
    while accu + st1[cut][1] <= tot*0.52: accu += st1[cut][1]; cut += 1
    spread(gaps, [0]*8, st1[:cut], 0, 7)
    gaps[7].append("s_waitcnt lgkmcnt(0)")
    emit(a, pv_mf(0, 0, czero=True), gaps)
    pend = st1[cut:]
    for dt in range(4):
        for k in range(16): a(f"v_mov_b32 v{ACC + (dt*2+1)*16 + k}, 0")
    a(f"s_mov_b32 s{S_CNT}, 7")
    stamp(a, 3)
    a("KA_ALOOP:")
    p2 = period(a, 1, pend1=pend)
    assert p2 == pend
    period(a, 0, pend1=pend)
    a(f"""
    s_sub_u32 s{S_CNT}, s{S_CNT}, 1
    s_cmp_lg_u32 s{S_CNT}, 2
    s_cbranch_scc1 KA_NOSW
    s_mov_b32 s{SW}, s{SWO}
    s_mov_b32 s{SW+1}, s{SWO+1}
    s_mov_b32 s{SW+2}, s{SWO+2}
    s_lshl_b32 s{S_DOFF}, s{S_W}, 8
    s_mov_b32 s{S_WSTEP}, {16*1024}
    s_mov_b32 s{S_DSLOT}, s{S_RING}
    s_mov_b32 s{S_T0+1}, 4096
    s_mov_b32 s{S_T0+2}, -1
    """)
    for j in range(4): a(f"v_mov_b32 v{VDMA+j}, v{VWO+j}")
    a(f"""
    KA_NOSW:
    s_cmp_lg_u32 s{S_CNT}, 0
    s_cbranch_scc1 KA_ALOOP
    """)
    pend = period(a, 1, kind="last", pend1=pend)
    for x, _ in pend: a(x)
    a("s_nop 4")
    for x in check_site(1): a(x)
    for x in pv_mf(1, 1): a(x)
    a(f"s_mov_b32 s{S_WOFF}, s{S_DOFF}")
    stamp(a, 4)
    a(f"s_lshl_b32 s44, s{S_W}, 14")
    a(f"v_add_u32 v{VT+8}, s44, v{VLIN}")
    for h in range(2):
        a(f"v_mov_b32 v{VT+9}, v{L[h]}")
        a("s_nop 1")
        a(f"v_permlane32_swap_b32 v{L[h]}, v{VT+9}")
        a("s_nop 0")
        a(f"v_add_f32 v{L[h]}, v{L[h]}, v{VT+9}")
        a(f"v_rcp_f32 v{L[h]}, v{L[h]}")
        a("s_nop 0")
        if h == 1: a("s_nop 7")
        for dt in range(4):
            base = ACC + (dt*2+h)*16
            for k in range(16): a(f"v_mul_f32 v{base+k}, v{base+k}, v{L[h]}")
            for sub in range(2):
                t = VT + 4*sub
                for d in range(4):
                    a(f"v_cvt_pk_bf16_f32 v{t+d}, v{base+8*sub+2*d}, v{base+8*sub+2*d+1}")
                a(f"ds_write_b128 v{VT+8}, {vr(t,4)} offset:{HB + (2*dt+sub)*2048 + h*1024}")
    a(f"""
    v_mov_b32 v{VB}, v{VLIN}
    s_waitcnt lgkmcnt(0)
    s_barrier
    """)
    stamp(a, 5)
    vq = VQ()
    for s_ in range(4): vq.issue(('W', s_), 4)
    Gemm("KA_O", 4, ACC, AA, AB, VB, S_CNT, gemm_reads, w_dma).run(a, vq, 4, 4, 6)
    stamp(a, 6)
    a(f"""
    v_lshrrev_b32 v{VT+8}, 4, v{VLIN}          ; lane
    v_bfe_u32 v{VT+9}, v{VT+8}, 3, 2
    v_lshlrev_b32 v{VT+9}, 13, v{VT+9}
    v_lshrrev_b32 v{VT+10}, 5, v{VT+8}
    v_lshl_add_u32 v{VT+9}, v{VT+10}, 7, v{VT+9}
    v_and_b32 v{VT+10}, 7, v{VT+8}
    v_lshl_add_u32 v{VT+9}, v{VT+10}, 4, v{VT+9}
    s_lshl_b32 s44, s42, 21
    s_lshl_b32 s45, s43, 16
    s_add_u32 s44, s44, s45
    s_lshl_b32 s45, s{S_W}, 11
    s_add_u32 s44, s44, s45
    s_add_u32 s44, s44, {hex(WS_PART)}
    s_add_u32 s45, s44, 32768
    s_nop 7
    """)
    n = 0
    for i in range(4):
        for th in range(2):
            for sub in range(2):
                base = ACC + (i*2+th)*16 + 8*sub
                t = S[0] + 4*(n % 8); n += 1
                for d in range(4):
                    a(f"v_cvt_pk_bf16_f32 v{t+d}, v{base+2*d}, v{base+2*d+1}")
                a(f"buffer_store_dwordx4 {vr(t,4)}, v{VT+9}, s[{SWS}:{SWS+3}], s{44+th} offen offset:{(4*i+2*sub)*128}")
    if STAMP:
        a("s_waitcnt vmcnt(0)")
        stamp(a, 7)
        a("s_memrealtime s[82:83]")
        a("s_waitcnt lgkmcnt(0)")
        for k in range(8): a(f"v_mov_b32 v{k}, s{60+2*k}")
        a("v_mov_b32 v8, s80")
        a("v_mov_b32 v9, s82")
        a(f"s_lshl_b32 s44, s2, 8")
        a(f"s_lshl_b32 s45, s{S_W}, 6")
        a("s_add_u32 s44, s44, s45")
        a("s_add_u32 s44, s44, 0x3000000")
        a("v_mov_b32 v10, 0")
        a(f"buffer_store_dwordx4 v[0:3], v10, s[{SWS}:{SWS+3}], s44 offen")
        a(f"buffer_store_dwordx4 v[4:7], v10, s[{SWS}:{SWS+3}], s44 offen offset:16")
        a(f"buffer_store_dwordx2 v[8:9], v10, s[{SWS}:{SWS+3}], s44 offen offset:32")
    rt_end(a, 1, SWS)
    a("KA_END:")
    a("s_endpgm")
    for h in range(2):
        for k in sites[h]:
            a(f"KA_TR{k}:")
            a(f"s_mov_b32 s{S_RET}, {k}")
            a(f"s_branch KA_SLOW{h}")
    for h in range(2):
        t = VT
        a(f"KA_SLOW{h}:")
        a("s_nop 7")
        a("s_nop 7")
        a(f"v_max3_f32 v{t}, v{S[h]}, v{S[h]+1}, v{S[h]+2}")
        for k in range(3, 15, 2):
            a(f"v_max3_f32 v{t}, v{t}, v{S[h]+k}, v{S[h]+k+1}")
        a(f"v_max_f32 v{t}, v{t}, v{S[h]+15}")
        a(f"v_mov_b32 v{t+1}, v{t}")
        a("s_nop 1")
        a(f"v_permlane32_swap_b32 v{t}, v{t+1}")
        a("s_nop 0")
        a(f"v_max_f32 v{t}, v{t}, v{t+1}")
        a(f"v_add_f32 v{t}, {f32(BIAS)}, v{t}")
        a(f"v_max_f32 v{t}, 0, v{t}")
        a(f"v_exp_f32 v{t+1}, -v{t}")
        for k in range(16): a(f"v_sub_f32 v{S[h]+k}, v{S[h]+k}, v{t}")
        for k in range(16): a(f"v_sub_f32 v{M[h]+k}, v{M[h]+k}, v{t}")
        a(f"v_mul_f32 v{L[h]}, v{L[h]}, v{t+1}")
        for dt in range(4):
            for k in range(16):
                r = ACC + (dt*2+h)*16 + k
                a(f"v_mul_f32 v{r}, v{r}, v{t+1}")
        for k in range(0, 16, 2):
            a(f"v_exp_f32 v{t+2}, v{S[h]+k}")
            a(f"v_exp_f32 v{t+3}, v{S[h]+k+1}")
            a("s_nop 0")
            if k == 0: a(f"v_add_f32 v{LT[h]}, v{t+2}, v{t+3}")
            else:
                a(f"v_add_f32 v{LT[h]}, v{LT[h]}, v{t+2}")
                a(f"v_add_f32 v{LT[h]}, v{LT[h]}, v{t+3}")
            a(f"v_cvt_pk_bf16_f32 v{P[h]+k//2}, v{t+2}, v{t+3}")
        a("s_nop 1")
        for k in sites[h][:-1]:
            a(f"s_cmp_eq_u32 s{S_RET}, {k}")
            a(f"s_cbranch_scc1 KA_RET{k}")
        a(f"s_branch KA_RET{sites[h][-1]}")
    return kernel_text("ka_attn_kernel", a.text(), 512, 256)
```

```python
from common import *
from gemm import *
import math
ACC = 0
S = [128, 144]
M = [160, 176]
P = [192, 200]
E = 208
L = [216, 217]
LT = [218, 219]
VLIN = 220
VTR = 221
VDMA = 225
VB = 229
VKV = 230
VT = 232
VWO = 248
VT2 = 252
VST = 255
FA = 128
AQ, AK, AV, AA, AB = 0, 64, 128, 192, 224
HB, KVD, WR = 0, 65536, 98304
KM_LDS = 163840
SW, SWS, SX = 8, 12, 16
S_W, S_WOFF, S_WSTEP, S_RING, S_CNT, S_RSLOT, S_DSLOT, S_DOFF, S_RET = 20, 21, 22, 23, 24, 25, 26, 27, 28
S_T0 = 30
S_AM0, S_AOFF = 34, 35
S_G, S_TB = 38, 39
S_AG, S_ATB = 3, 37
PX, PK, PV_, PWQ, PWO, PBX, PWG, PWU, PWD, PC, PWM, POUT, PDBG, PWS = 64, 66, 68, 70, 72, 74, 76, 78, 80, 82, 84, 86, 88, 90
TAG = 4
KNAME = 'adaLN_cond__sliding_block_cached__geglu_ffn__prompt_kernel'
QS = math.log2(math.e) / math.sqrt(128.0)
WS_EPOCH = WS_FLAG + 0x1C000
FP, FH, FG, FA_, MODG = WS_FLAG, WS_FLAG + 0x8000, WS_FLAG + 0x10000, WS_FLAG + 0x18000, WS_FLAG + 0x1A000
BIAS = 60.0
THR = 2.0**60
FUSED = True
STAMP = False
SPIN_MAX = 1 << 15
import os
SLEEP0 = int(os.environ.get('SLEEP0', '8'))
SLEEP1 = int(os.environ.get('SLEEP1', '0'))
SPF = 48
S_PFO, S_PFS, S_PF2 = 52, 53, 54
VPF = 243

def sc(): return " sc1" if FUSED else ""
def stamp(a, k):
    if STAMP:
        a("s_memtime s[94:95]")
        a("s_waitcnt lgkmcnt(0)")
        a(f"v_writelane_b32 v{VST}, s94, {k}")
def stamp_out(a):
    if STAMP:
        a(f"""
        s_lshl_b32 s44, s2, 9
        s_lshl_b32 s45, s{S_W}, 7
        s_add_u32 s44, s44, s45
        s_add_u32 s44, s44, 0x3000000
        v_lshrrev_b32 v0, 2, v{VLIN}
        s_mov_b64 exec, 0xffffffff
        buffer_store_dword v{VST}, v0, s[{SWS}:{SWS+3}], s44 offen
        s_mov_b64 exec, -1
        """)

def setup(a, name, nwg):
    a(f"""
    s_cmp_ge_u32 s2, {nwg}
    s_cbranch_scc1 {name}_END
    {"s_memrealtime s[96:97]" if RT else ""}
    {"s_memtime s[92:93]" if STAMP else ""}
    s_load_dwordx16 s[64:79], s[0:1], 0
    s_load_dwordx8 s[80:87], s[0:1], 64
    s_load_dwordx4 s[88:91], s[0:1], {KARG['dbg']}
    v_and_b32 v{VT}, 63, v0
    v_lshrrev_b32 v{VT+1}, 6, v0
    v_lshlrev_b32 v{VLIN}, 4, v{VT}
    v_readfirstlane_b32 s{S_W}, v{VT+1}
    s_and_b32 s{S_G}, s2, 7
    s_lshr_b32 s{S_TB}, s2, 3
    s_and_b32 s{S_AG}, s2, 6
    s_and_b32 s44, s{S_TB}, 1
    s_add_u32 s{S_AG}, s{S_AG}, s44
    s_and_b32 s{S_ATB}, s2, 1
    s_lshl_b32 s{S_ATB}, s{S_ATB}, 4
    s_lshr_b32 s44, s2, 4
    s_add_u32 s{S_ATB}, s{S_ATB}, s44
    v_lshrrev_b32 v{VT+2}, 5, v{VT}
    v_lshlrev_b32 v{VT+2}, 10, v{VT+2}
    v_bfe_u32 v{VT+3}, v{VT}, 2, 2
    v_lshl_add_u32 v{VT+2}, v{VT+3}, 7, v{VT+2}
    v_and_b32 v{VT+4}, 16, v{VT}
    v_lshl_add_u32 v{VT+2}, v{VT+4}, 1, v{VT+2}
    v_and_b32 v{VT+4}, 1, v{VT}
    v_lshl_add_u32 v{VT+2}, v{VT+4}, 4, v{VT+2}
    v_and_b32 v{VT+4}, 2, v{VT}
    v_lshl_add_u32 v{VT+2}, v{VT+4}, 2, v{VT+2}
    v_lshrrev_b32 v{VT+3}, 1, v{VT+3}
    v_lshl_add_u32 v{VT2}, v{VT+3}, 6, v{VT+2}
    v_xor_b32 v{VT+3}, 1, v{VT+3}
    v_lshl_add_u32 v{VT2+1}, v{VT+3}, 6, v{VT+2}
    v_lshrrev_b32 v{VT+2}, 3, v{VT}
    v_and_b32 v{VT+3}, 7, v{VT}
    v_bfe_u32 v{VT+4}, v{VT}, 4, 1
    v_lshlrev_b32 v{VT+4}, 2, v{VT+4}
    v_xor_b32 v{VT+3}, v{VT+3}, v{VT+4}
    v_lshlrev_b32 v{VT+3}, 4, v{VT+3}
    v_lshl_add_u32 v{VWO}, v{VT+2}, 10, v{VT+3}
    """)
    for j in range(1, 4):
        a(f"v_add_u32 v{VWO+j}, {j*(8*1024-1024)}, v{VWO}")
    if STAMP: a(f"v_mov_b32 v{VST}, 0")

def setup2(a):
    a("s_waitcnt lgkmcnt(0)")
    a(f"s_load_dwordx2 s[{TAG}:{TAG+1}], s[{PWS}:{PWS+1}], {hex(WS_EPOCH)}")
    srd(a, SWS, PWS, WS_SIZE)

def poll(a, tag, soff, nflags, dma=False, stride=128):
    sh = {128: "v_lshlrev_b32 v%d, 3, v%d", 64: "v_lshlrev_b32 v%d, 2, v%d", 8: "v_lshrrev_b32 v%d, 1, v%d"}[stride] % (VT+13, VLIN)
    a(f"""
    {sh}
    v_min_u32 v{VT+13}, {stride*(nflags-1)}, v{VT+13}
    s_mov_b32 s47, {SPIN_MAX}
    {tag}_POLL:
    buffer_load_dwordx2 v[{VT+14}:{VT+15}], v{VT+13}, s[{SWS}:{SWS+3}], s{soff} offen sc1
    s_sub_u32 s47, s47, 1
    s_waitcnt vmcnt(0)
    v_cmp_ne_u64 vcc, s[{TAG}:{TAG+1}], v[{VT+14}:{VT+15}]
    s_cbranch_vccz {tag}_GO
    s_cmp_eq_u32 s47, 0
    s_cbranch_scc1 {tag}_GO
    """)
    if SLEEP1: a(f"s_sleep {SLEEP1}")
    if dma:
        a(f"""
        s_cmp_ge_u32 s{S_DM0}, 131072
        s_cbranch_scc1 {tag}_POLL
        """)
        for _ in range(8):
            for x in d_wdma(): a(x)
    a(f"""
    s_branch {tag}_POLL
    {tag}_GO:
    """)

def flag_store(a, tag, soff):
    a(f"""
    s_cmp_lg_u32 s{S_W}, 0
    s_cbranch_scc1 {tag}_PUB
    v_mov_b32 v{VT+13}, 0
    v_mov_b32 v{VT+14}, s{TAG}
    v_mov_b32 v{VT+15}, s{TAG+1}
    s_mov_b64 exec, 1
    buffer_store_dwordx2 v[{VT+14}:{VT+15}], v{VT+13}, s[{SWS}:{SWS+3}], s{soff} offen sc1
    s_mov_b64 exec, -1
    {tag}_PUB:
    """)
def publish(a, tag, soff):
    a("s_waitcnt vmcnt(0) lgkmcnt(0)")
    a("s_barrier")
    flag_store(a, tag, soff)

def gemm_reads(buf, slot, kofs):
    A = lambda i: AA + 16*buf + 4*i
    B = lambda th: AB + 8*buf + 4*th
    rb = lambda th: f"ds_read_b128 {ar(B(th),4)}, v{VB} offset:{kofs + th*1024}"
    ra = lambda i, h: f"ds_read_b64_tr_b16 {ar(A(i)+2*h,2)}, v{VTR+i} offset:{slot*4096 + h*1024}"
    return [rb(0), ra(0,0), ra(0,1), rb(1), ra(1,0), ra(1,1), ra(2,0), ra(2,1), ra(3,0), ra(3,1)]
def w_dma(slot):
    r = [f"s_add_u32 m0, s{S_RING}, {slot*4096}"]
    d = [f"buffer_load_dwordx4 v{VDMA+j}, s[{SW}:{SW+3}], s{S_WOFF} offen offset:{j*1024} lds" for j in range(4)]
    return r, d, [f"s_add_u32 s{S_WOFF}, s{S_WOFF}, s{S_WSTEP}"]
def aux_dma():
    pre = [f"s_mov_b32 m0, s{S_AM0}"]
    d = [f"buffer_load_dwordx4 v{VLIN}, s[{SWS}:{SWS+3}], s{S_AOFF} offen lds"]
    post = [f"s_add_u32 s{S_AM0}, s{S_AM0}, 4096", f"s_add_u32 s{S_AOFF}, s{S_AOFF}, 4096",
            f"s_cmp_eq_u32 s{S_AM0}, s{S_AM0+2}", f"s_cselect_b32 s{S_AOFF}, s{S_AM0+3}, s{S_AOFF}"]
    return pre, d, post
def kv_dma():
    pre = [f"s_mov_b32 m0, s{S_DSLOT}"]
    d = [f"buffer_load_dwordx4 v{VDMA+j}, s[{SW}:{SW+3}], s{S_DOFF} offen offset:{j*1024} sc1 lds" for j in range(4)]
    return pre, d

def exp_stream(h):
    e = lambda k: f"v{E + (k % 8)}"
    lt = f"v{LT[h]}"
    seq = []
    for k in range(16):
        seq.append((f"v_exp_f32 {e(k)}, v{S[h]+k}", 8))
        if k >= 2 and k % 2 == 0:
            j = k - 2
            if j == 0: seq.append((f"v_add_f32 {lt}, {e(0)}, {e(1)}", 4))
            else:
                seq.append((f"v_add_f32 {lt}, {lt}, {e(j)}", 4))
                seq.append((f"v_add_f32 {lt}, {lt}, {e(j+1)}", 4))
        if k >= 3 and k % 2 == 1:
            j = k - 3
            seq.append((f"v_cvt_pk_bf16_f32 v{P[h]+j//2}, {e(j)}, {e(j+1)}", 5))
    seq.append((f"v_add_f32 {lt}, {lt}, {e(14)}", 4))
    seq.append((f"v_add_f32 {lt}, {lt}, {e(15)}", 4))
    seq.append((f"v_cmp_lt_f32 vcc, s{S_T0}, {lt}", 4))
    seq.append((f"v_cvt_pk_bf16_f32 v{P[h]+7}, {e(14)}, {e(15)}", 5))
    return seq

def spread(gaps, fixed_cost, stream, g0, g1):
    total = sum(c for _, c in stream) + sum(fixed_cost[g0:g1+1])
    per = total / (g1 - g0 + 1)
    it = 0; acc = 0.0
    for g in range(g0, g1+1):
        acc += fixed_cost[g]
        target = per * (g - g0 + 1)
        while it < len(stream) and (g == g1 or acc + stream[it][1]/2 <= target):
            gaps[g].append(stream[it][0]); acc += stream[it][1]; it += 1

site_counter = [0]
sites = {0: [], 1: []}
def check_site(h):
    k = site_counter[0]; site_counter[0] += 1
    sites[h].append(k)
    return [f"s_cbranch_vccnz KA_TR{k}", f"KA_RET{k}:", f"v_add_f32 v{L[h]}, v{L[h]}, v{LT[h]}"]

def qk_mf(h, buf, czero=False):
    return [mfma(vr(S[h],16), ar(AK+32*buf+4*ks,4), ar(AQ+(ks*2+h)*4,4),
                 ("0" if czero else vr(M[h],16)) if ks == 0 else vr(S[h],16)) for ks in range(8)]
def pv_mf(h, buf, czero=False):
    r = []
    for kk in range(2):
        for dt in range(4):
            d = vr(ACC + (dt*2+h)*16, 16)
            r.append(mfma(d, ar(AV+32*buf+(kk*4+dt)*4,4), vr(P[h]+4*kk,4), "0" if (czero and kk == 0) else d))
    return r
def k_reads(buf): return [f"ds_read_b128 {ar(AK+32*buf+4*j,4)}, v{VKV} offset:{j*1024}" for j in range(8)]
def v_reads(buf): return [f"ds_read_b128 {ar(AV+32*buf+4*j,4)}, v{VKV} offset:{8192+j*1024}" for j in range(8)]

def init_stream(h):
    t = VT + 4 + 2*h
    r = [f"v_max3_f32 v{t}, v{S[h]}, v{S[h]+1}, v{S[h]+2}"]
    for k in range(3, 15, 2): r.append(f"v_max3_f32 v{t}, v{t}, v{S[h]+k}, v{S[h]+k+1}")
    r += [f"v_max_f32 v{t}, v{t}, v{S[h]+15}", f"v_mov_b32 v{t+1}, v{t}", "s_nop 1", f"v_permlane32_swap_b32 v{t}, v{t+1}", "s_nop 0",
          f"v_max_f32 v{t}, v{t}, v{t+1}", f"v_sub_f32 v{t}, {f32(-BIAS)}, v{t}"]
    r += [f"v_add_f32 v{S[h]+k}, v{S[h]+k}, v{t}" for k in range(16)]
    return [(x, 4) for x in r], [(f"v_mov_b32 v{M[h]+k}, v{t}", 4) for k in range(16)]

def cvtq_stream(th):
    r = []
    n = 0
    for i in range(4):
        for sub in range(2):
            base = ACC + (i*2+th)*16 + 8*sub
            t = E + 4*(n & 1); n += 1
            for d in range(4): r.append((f"v_cvt_pk_bf16_f32 v{t+d}, v{base+2*d}, v{base+2*d+1}", 5))
            for d in range(4): r.append((f"v_accvgpr_write_b32 a{AQ + ((2*i+sub)*2+th)*4 + d}, v{t+d}", 5))
    return r

def split_st1(st1):
    tot = sum(c for _, c in st1); accu = 0; cut = 0
    while accu + st1[cut][1] <= tot*0.52: accu += st1[cut][1]; cut += 1
    return st1[:cut], st1[cut:]

pcount = [0]
def period(a, par, npf, kind="mid", pend1=None):
    last = kind == "last"
    mf = qk_mf(0, par) + pv_mf(1, par ^ 1) + qk_mf(1, par) + pv_mf(0, par)
    gaps = [[] for _ in range(32)]
    cost = [0]*32
    def put(g, instrs, c=None):
        gaps[g] += instrs
        cost[g] += (4*len(instrs) if c is None else c)
    if not last:
        put(0, ["s_waitcnt vmcnt(12)", "s_barrier"], 24)
        put(3, [f"buffer_load_dwordx4 {ar(240,4)}, v{VPF}, s[{SPF}:{SPF+3}], s{S_PFO} offen"], 8)
        put(5, [f"buffer_load_dwordx4 {ar(240,4)}, v{VPF+1}, s[{SPF}:{SPF+3}], s{S_PFO} offen"], 8)
        put(6, [f"s_add_u32 s{S_PFO}, s{S_PFO}, s{S_PFS}"], 0)
        put(1, [f"s_add_u32 s{S_RSLOT}, s{S_RSLOT}, 16384", f"s_cmp_eq_u32 s{S_RSLOT}, 98304", f"s_cselect_b32 s{S_RSLOT}, 0, s{S_RSLOT}",
                f"v_add_u32 v{VKV}, s{S_RSLOT}, v{VLIN}"], 12)
        kr = k_reads(par ^ 1); vr_ = v_reads(par ^ 1)
        put(7, kr[0:1]); put(8, kr[1:5]); put(9, kr[5:8])
        put(23, vr_[0:1]); put(24, vr_[1:5]); put(25, vr_[5:8])
        pre, d = kv_dma()
        put(11, pre, 0); put(12, [d[0]], 8); put(14, [d[1]], 8); put(16, [d[2]], 8); put(18, [d[3]], 8)
        put(19, [f"s_add_u32 s{S_DOFF}, s{S_DOFF}, s{S_WSTEP}"], 0)
        put(20, [f"s_add_u32 s{S_DSLOT}, s{S_DSLOT}, s{S_T0+1}"], 0)
        put(21, [f"s_cmp_ge_u32 s{S_DSLOT}, s{S_T0+2}"], 0)
        put(22, [f"s_cselect_b32 s{S_DSLOT}, s{S_T0+3}, s{S_DSLOT}"], 0)
        put(31, ["s_waitcnt lgkmcnt(0)"], 0)
    else:
        put(0, ["s_barrier"], 24)
        for g_ in (8, 9, 24, 25): put(g_, ["s_nop 3"], 16)
    spread(gaps, cost, pend1, 1, 6)
    gaps[7] = check_site(1) + gaps[7]
    spread(gaps, cost, exp_stream(0), 10, 22)
    gaps[23] = check_site(0) + gaps[23]
    h1, h2 = split_st1(exp_stream(1))
    spread(gaps, cost, h1, 26, 31)
    emit(a, mf, gaps)
    return h2

def norm_stream(h, pk):
    r = []
    n = 0
    for dt in range(4):
        base = ACC + (dt*2+h)*16
        for sub in range(2):
            b = base + 8*sub
            t = VT + 4*(n & 1); n += 1
            if pk:
                for k in range(0, 8, 2): r.append((f"v_pk_mul_f32 v[{b+k}:{b+k+1}], v[{b+k}:{b+k+1}], v[{LT[0]}:{LT[1]}] op_sel:[0,{h}] op_sel_hi:[1,{h}]", 4))
            else:
                for k in range(8): r.append((f"v_mul_f32 v{b+k}, v{b+k}, v{LT[h]}", 4))
            for d in range(4): r.append((f"v_cvt_pk_bf16_f32 v{t+d}, v{b+2*d}, v{b+2*d+1}", 5))
            r.append((f"ds_write_b128 v{VT+8}, {vr(t,4)} offset:{HB + (2*dt+sub)*2048 + h*1024}", 20))
    return r
def linv(h):
    return [f"v_mov_b32 v{VT+9}, v{L[h]}", "s_nop 1", f"v_permlane32_swap_b32 v{L[h]}, v{VT+9}", "s_nop 0",
            f"v_add_f32 v{L[h]}, v{L[h]}, v{VT+9}", f"v_rcp_f32 v{LT[h]}, v{L[h]}", "s_nop 0"]

def rb_unit(a, u, areads_next, head, mid, fill, acc_base, first, uu=None):
    buf = u & 1; ku = (u % 16 if uu is None else uu) * 2
    mf = []
    for kk in range(2):
        for i in range(2):
            for th in range(2):
                d = vr(acc_base + (i*2+th)*16, 16)
                mf.append(mfma(d, vr(FA + 16*buf + (kk*2+i)*4, 4), ar(((ku+kk)*2+th)*4, 4), "0" if (first and kk == 0) else d))
    gaps = [[] for _ in range(8)]; cost = [0]*8
    gaps[0] += head
    n = len(areads_next); per = -(-n // 4) if n else 0
    for g in range(4):
        x = areads_next[g*per:(g+1)*per]; gaps[g] += x; cost[g] += 4*len(x)
    for g, x in mid.items():
        gaps[g] += x; cost[g] += 6*len(x)
    if n: gaps[7] = ["s_waitcnt lgkmcnt(0)"] + gaps[7]
    if fill: spread(gaps, cost, fill, 0, 7)
    emit(a, mf, gaps)

def take(stream, frac_cost):
    out = []; c = 0
    while stream and c + stream[0][1]/2 <= frac_cost:
        x = stream.pop(0); out.append(x); c += x[1]
    return out


def silu_pack(a, src, n, t0, t1, dst):
    for i in range(n):
        a(f"v_lshlrev_b32 v{t0+2*i}, 16, v{src+i}")
        a(f"v_and_b32 v{t0+2*i+1}, 0xffff0000, v{src+i}")
    for i in range(2*n): a(f"v_mul_f32 v{t1+i}, {f32(-math.log2(math.e))}, v{t0+i}")
    for i in range(2*n): a(f"v_exp_f32 v{t1+i}, v{t1+i}")
    a("s_nop 0")
    for i in range(2*n): a(f"v_add_f32 v{t1+i}, 1.0, v{t1+i}")
    for i in range(2*n): a(f"v_rcp_f32 v{t1+i}, v{t1+i}")
    a("s_nop 0")
    for i in range(2*n): a(f"v_mul_f32 v{t0+i}, v{t0+i}, v{t1+i}")
    for i in range(n): a(f"v_cvt_pk_bf16_f32 v{dst+i}, v{t0+2*i}, v{t0+2*i+1}")

PRE = [14, 24]
RING = [k for k in range(32) if k not in PRE]
STG = [24576, 24576+4096]
VTK = [128, 129, 130, 131]
XP = 128
VBQ = 192
VHW = 196
VMA = 197
VSTAT = 198
VTSL = [232, 233, 234, 235]
VFL = 202
MB = [208, 236]
MT = 216
SCR = WR + 3*4096
MSC = HB + 7*8192
VTS2 = 246

def wq_dma(k, m0):
    pre = [f"s_add_u32 m0, s{m0[0]}, {m0[1]}", f"s_add_u32 s{S_WSTEP}, s{S_WOFF}, {k*16*8192}", f"s_and_b32 s{S_WSTEP}, s{S_WSTEP}, 0x3fffff"]
    d = [f"buffer_load_dwordx4 v{VDMA+j}, s[{SW}:{SW+3}], s{S_WSTEP} offen offset:{j*1024} lds" for j in range(4)]
    return pre, d

def x_loads(a):
    for rg in range(2):
        for i in range(8):
            a(f"buffer_load_dwordx4 {vr(XP+(rg*8+i)*4,4)}, v{208+i}, s[{SX}:{SX+3}], s{40+rg} offen")

def front(a):
    a(f"""
    v_lshrrev_b32 v{VT+2}, 4, v{VT}
    v_and_b32 v{VT+3}, 15, v{VT}
    v_lshlrev_b32 v{VT+4}, 2, v{VT+2}
    v_xor_b32 v{VT+3}, v{VT+3}, v{VT+4}
    v_lshlrev_b32 v{VT+3}, 4, v{VT+3}
    v_lshl_add_u32 v{VDMA}, v{VT+2}, 13, v{VT+3}
    """)
    for j in range(1, 4):
        a(f"v_add_u32 v{VDMA+j}, {j*(4*8192-1024)}, v{VDMA}")
    a(f"""
    s_movk_i32 s60, 0x3ff
    v_lshrrev_b32 v{VT+6}, 3, v{VT}             ; r
    v_and_b32 v{VT+7}, 7, v{VT}                 ; ch
    v_lshlrev_b32 v{VT+5}, 10, v{VT+6}
    s_bfe_u32 s43, s2, 0x30004                  ; rot
    s_lshl_b32 s44, s43, 7
    v_lshl_add_u32 v{VT+4}, v{VT+7}, 4, s44
    """)
    for i in range(8):
        a(f"v_add_u32 v{VT+3}, {i*128}, v{VT+4}")
        a(f"v_and_or_b32 v{208+i}, v{VT+3}, s60, v{VT+5}")
    a(f"""
    s_lshl_b32 s40, s{S_ATB}, 16
    s_lshl_b32 s41, s{S_W}, 14
    s_add_u32 s40, s40, s41
    s_add_u32 s41, s40, 8192
    s_lshl_b32 s{S_RING}, s{S_W}, 14
    s_add_u32 s{S_RING}, s{S_RING}, {WR}
    s_lshl_b32 s29, s{S_W}, 13
    s_lshl_b32 s44, s{S_AG}, 10
    s_lshl_b32 s45, s{S_W}, 8
    s_add_u32 s{S_WOFF}, s44, s45
    s_lshl_b32 s44, s43, 19
    s_add_u32 s{S_WOFF}, s{S_WOFF}, s44
    s_mov_b32 s62, 0x05040100
    s_mov_b32 s63, 0x07060302
    s_getpc_b64 s[6:7]
    KF_PC:
    s_sub_u32 s6, s6, KF_PC-{KNAME}
    s_subb_u32 s7, s7, 0
    v_lshlrev_b32 v{VT+8}, 3, v0
    s_lshl_b32 s44, s{S_TB}, 11
    v_add_u32 v{VT+8}, s44, v{VT+8}
    v_min_u32 v{VT+8}, CODE_END-{KNAME}-8, v{VT+8}
    global_load_dwordx2 a[240:241], v{VT+8}, s[6:7]
    s_cmp_ge_u32 s2, 192
    s_cbranch_scc1 KF_KV
    s_lshr_b32 s44, s{S_TB}, 2
    s_lshl_b32 s44, s44, 5
    s_lshl_b32 s45, s{S_G}, 2
    s_add_u32 s44, s44, s45
    s_and_b32 s45, s{S_TB}, 3
    s_add_u32 s44, s44, s45
    s_lshl_b32 s42, s44, 5
    s_mul_i32 s45, s{S_W}, {128*6144}
    s_add_u32 s30, s42, s45
    s_add_u32 s31, s30, 6144
    s_add_u32 s32, s30, {64*6144}
    s_add_u32 s33, s30, {65*6144}
    v_lshrrev_b32 v0, 1, v{VT}                  ; rr
    v_mul_u32_u24 v1, {2*6144}, v0
    v_and_b32 v2, 1, v{VT}
    v_lshl_add_u32 v1, v2, 4, v1
    v_lshlrev_b32 v0, 2, v0
    s_lshl_b32 s34, s{S_W}, 8
    """)
    setup2(a)
    stamp(a, 16)
    srd(a, 48, PWM, 512*6144)
    srd(a, 52, PC, 1024)
    a(f"""
    buffer_load_dword v4, v0, s[52:55], s34 offen
    buffer_load_dword v5, v0, s[52:55], s34 offen offset:128
    """)
    for q in range(4):
        a(f"buffer_load_dwordx4 {vr(8+4*q,4)}, v1, s[48:51], s{30+q} offen")
    srd(a, SX, PX, 2048*1024)
    a(f"s_cmp_lt_u32 s2, 64")
    a("s_cbranch_scc1 KF_W0")
    x_loads(a)
    a("s_branch KF_W1")
    a("KF_W0:")
    a("s_waitcnt vmcnt(0)")
    a("KF_W1:")
    stamp(a, 0)
    if STAMP: a(f"v_writelane_b32 v{VST}, s92, 27")
    a("s_waitcnt vmcnt(20)")
    silu_pack(a, 4, 2, 24, 28, 32)
    stamp(a, 17)
    for st in range(2):
        a(f"s_waitcnt vmcnt({18-2*st})")
        r0 = 8 + 8*st; r1 = r0 + 4
        for d in range(4):
            a(f"v_perm_b32 v{24+2*d}, v{r1+d}, v{r0+d}, s62")
            a(f"v_perm_b32 v{25+2*d}, v{r1+d}, v{r0+d}, s63")
        for j in range(8):
            a(f"v_dot2_f32_bf16 v{40+j}, v{24+j}, v{32+st}, {'0' if st == 0 else f'v{40+j}'}")
    stamp(a, 18)
    a("s_nop 2")
    for j in range(4): a(f"v_permlane32_swap_b32 v{40+j}, v{44+j}")
    a("s_nop 0")
    for j in range(4): a(f"v_add_f32 v{40+j}, v{40+j}, v{44+j}")
    a("s_nop 1")
    for j in range(2): a(f"v_permlane16_swap_b32 v{40+j}, v{42+j}")
    a("s_nop 0")
    for j in range(2): a(f"v_add_f32 v{40+j}, v{40+j}, v{42+j}")
    for r in (8, 4, 2):
        a("s_nop 1")
        for j in range(2): a(f"v_add_f32_dpp v{40+j}, v{40+j}, v{40+j} row_ror:{r} row_mask:0xf bank_mask:0xf")
    a(f"""
    v_lshlrev_b32 v34, 5, v2
    v_lshrrev_b32 v35, 5, v{VT}
    v_lshl_add_u32 v34, v35, 4, v34
    v_bfe_u32 v35, v{VT}, 4, 1
    v_lshl_add_u32 v34, v35, 3, v34
    s_lshl_b32 s45, s{S_W}, 6
    s_add_u32 s45, s45, {SCR}
    v_add_u32 v34, s45, v34
    ds_write_b64 v34, v[40:41]
    v_and_b32 v36, 15, v{VT}
    v_lshlrev_b32 v36, 2, v36
    v_add_u32 v37, {SCR}, v36
    s_waitcnt lgkmcnt(0)
    s_barrier
    s_cmp_lg_u32 s{S_W}, 0
    s_cbranch_scc1 KF_X1
    ds_read_b32 v40, v37
    ds_read_b32 v41, v37 offset:64
    ds_read_b32 v42, v37 offset:128
    ds_read_b32 v43, v37 offset:192
    s_lshl_b32 s42, s42, 1
    s_waitcnt lgkmcnt(0)
    v_add_f32 v40, v40, v41
    v_add_f32 v42, v42, v43
    v_add_f32 v40, v40, v42
    v_cvt_pk_bf16_f32 v40, v40, v40
    v_and_b32 v40, 0xffff0000, v40
    s_mov_b64 exec, 0xffff
    s_cmp_lt_u32 s2, 64
    s_cbranch_scc1 KF_CRIT
    buffer_store_dword v40, v36, s[{SWS}:{SWS+3}], s42 offen sc1
    s_mov_b64 exec, -1
    s_branch KF_JOIN
    KF_CRIT:
    s_add_u32 s45, s{TAG}, 1
    v_mov_b32 v41, s45
    v_lshlrev_b32 v36, 1, v36
    s_lshl_b32 s42, s42, 1
    s_add_u32 s42, s42, {hex(MODG)}
    buffer_store_dwordx2 v[40:41], v36, s[{SWS}:{SWS+3}], s42 offen sc1
    s_mov_b64 exec, -1
    KF_X1:
    s_cmp_ge_u32 s2, 64
    s_cbranch_scc1 KF_JOIN
    """)
    x_loads(a)
    a(f"""
    s_branch KF_JOIN
    KF_KV:
    s_sub_u32 s44, s{S_TB}, 24
    s_lshl_b32 s44, s44, 1
    s_lshr_b32 s45, s{S_W}, 1
    s_add_u32 s44, s44, s45                     ; tile
    s_and_b32 s45, s{S_W}, 1
    s_lshl_b32 s30, s{S_G}, 19
    s_lshl_b32 s31, s44, 13
    s_add_u32 s30, s30, s31
    s_add_u32 s30, s30, {1536*256}
    s_lshl_b32 s31, s45, 12
    s_add_u32 s31, s31, s30
    s_lshl_b32 s32, s45, 7
    s_add_u32 s30, s30, s32                     ; K source: + 4(w&1)*32
    s_lshl_b32 s32, s{S_G}, 18
    s_lshl_b32 s33, s44, 14
    s_add_u32 s32, s32, s33
    s_lshl_b32 s33, s45, 12
    s_add_u32 s32, s32, s33
    s_add_u32 s32, s32, {hex(WS_KV)}
    s_add_u32 s33, s32, 8192
    v_and_b32 v4, 31, v{VT}
    v_lshrrev_b32 v5, 5, v{VT}
    v_lshlrev_b32 v6, 8, v4
    v_lshl_add_u32 v6, v5, 4, v6
    v_and_b32 v0, 0x13, v4
    v_and_b32 v1, 4, v4
    v_lshl_or_b32 v0, v1, 1, v0
    v_and_b32 v1, 8, v4
    v_lshrrev_b32 v1, 1, v1
    v_or_b32 v0, v0, v1
    v_lshlrev_b32 v0, 1, v0
    v_lshl_add_u32 v0, v5, 10, v0
    """)
    setup2(a)
    srd(a, 48, PK, 8*2048*256)
    srd(a, 52, PV_, 8*2048*256)
    srd(a, SX, PX, 2048*1024)
    stamp(a, 0)
    if STAMP: a(f"v_writelane_b32 v{VST}, s92, 27")
    x_loads(a)
    for q in range(4):
        a(f"buffer_load_dwordx4 {vr(8+4*q,4)}, v6, s[48:51], s30 offen offset:{q*32}")
    for dt in range(4):
        for j in range(8):
            key = (j & 3) + 8*(j >> 2)
            a(f"buffer_load_ushort v{32+8*dt+j}, v0, s[52:55], s31 offen offset:{key*256 + dt*64}")
    a("s_waitcnt vmcnt(32)")
    for q in range(4):
        a(f"buffer_store_dwordx4 {vr(8+4*q,4)}, v{VLIN}, s[{SWS}:{SWS+3}], s32 offen offset:{q*1024} sc1")
    a("s_waitcnt vmcnt(4)")
    for dt in range(4):
        for d in range(4):
            a(f"v_lshl_or_b32 v{64+4*dt+d}, v{33+8*dt+2*d}, 16, v{32+8*dt+2*d}")
        a(f"buffer_store_dwordx4 {vr(64+4*dt,4)}, v{VLIN}, s[{SWS}:{SWS+3}], s33 offen offset:{dt*1024} sc1")
    a("KF_JOIN:")
    a("s_waitcnt lgkmcnt(0)")
    a(f"s_add_u32 s{TAG}, s{TAG}, 1")
    a(f"s_add_u32 s{TAG+1}, s{TAG+1}, 1")
    stamp(a, 28)
    srd(a, SW, PWQ, 512*4096*2)
    units = [wq_dma(RING[q], (S_RING, q*4096)) for q in range(4)]
    def unit():
        pre, d = units.pop(0)
        for x in pre + d: a(x)
    unit(); unit()
    a(f"""
    v_lshrrev_b32 v{VT+2}, 5, v{VT}
    v_lshlrev_b32 v{VT+2}, 11, v{VT+2}
    v_bfe_u32 v{VT+3}, v{VT}, 2, 2
    v_lshl_add_u32 v{VT+2}, v{VT+3}, 8, v{VT+2}
    v_and_b32 v{VT+4}, 16, v{VT}
    v_lshl_add_u32 v{VT+2}, v{VT+4}, 1, v{VT+2}
    v_and_b32 v{VT+4}, 1, v{VT}
    v_lshl_add_u32 v{VT+2}, v{VT+4}, 4, v{VT+2}
    v_and_b32 v{VT+4}, 2, v{VT}
    v_lshl_add_u32 v{VT+2}, v{VT+4}, 2, v{VT+2}
    """)
    for i in range(4):
        a(f"v_xor_b32 v{VT+4}, {i}, v{VT+3}")
        a(f"v_lshl_add_u32 v{VT+4}, v{VT+4}, 6, v{VT+2}")
        a(f"v_add_u32 v{VTR+i}, s{S_RING}, v{VT+4}")
    a(f"v_lshrrev_b32 v{VT+2}, 5, v{VT}")
    for m in range(4):
        a(f"v_or_b32 v{VT+3}, {2*m}, v{VT+2}")
        a(f"v_xor_b32 v{VT+3}, v{VT+3}, v{VT}")
        a(f"v_lshlrev_b32 v{VBQ+m}, 4, v{VT+3}")
    a(f"""
    v_xor_b32 v{VT+2}, v{VT+6}, v{VT+7}
    v_lshlrev_b32 v{VT+2}, 4, v{VT+2}
    v_lshrrev_b32 v{VT+3}, 1, v{VT+7}
    v_lshl_add_u32 v{VT+2}, v{VT+3}, 11, v{VT+2}
    v_and_b32 v{VT+3}, 1, v{VT+7}
    v_lshl_add_u32 v{VT+2}, v{VT+3}, 9, v{VT+2}
    s_lshr_b32 s44, s{S_W}, 1
    s_lshl_b32 s44, s44, 10
    s_and_b32 s45, s{S_W}, 1
    s_lshl_b32 s45, s45, 8
    s_add_u32 s44, s44, s45
    v_add_u32 v{VHW}, s44, v{VT+2}
    s_mov_b32 s61, 0x3f803f80
    s_waitcnt vmcnt(8)
    """)
    stamp(a, 19)
    st = VSTAT
    for rg in range(2):
        for k in range(32):
            x = XP + rg*32 + k
            a(f"v_dot2_f32_bf16 v{st+2*rg}, v{x}, s61, {'0' if k == 0 else f'v{st+2*rg}'}")
            a(f"v_dot2_f32_bf16 v{st+2*rg+1}, v{x}, v{x}, {'0' if k == 0 else f'v{st+2*rg+1}'}")
            if k == 15: unit()
    stamp(a, 20)
    for mod in ("quad_perm:[1,0,3,2]", "quad_perm:[2,3,0,1]", "row_half_mirror"):
        for q in range(4):
            a(f"v_add_f32_dpp v{st+q}, v{st+q}, v{st+q} {mod} row_mask:0xf bank_mask:0xf")
    for rg in range(2):
        m_, q_ = st+2*rg, st+2*rg+1
        a(f"""
        v_mul_f32 v{VT+2}, {f32(1/512)}, v{m_}
        v_mul_f32 v{q_}, {f32(1/512)}, v{q_}
        v_fma_f32 v{q_}, -v{VT+2}, v{VT+2}, v{q_}
        v_max_f32 v{q_}, 0, v{q_}
        v_add_f32 v{q_}, {f32(1e-5)}, v{q_}
        v_rsq_f32 v{m_}, v{q_}
        s_nop 0
        v_mul_f32 v{q_}, v{VT+2}, v{m_}
        v_sub_f32 v{q_}, 0, v{q_}
        """)
    for rg in range(2):
        for d in range(4):
            a(f"v_lshlrev_b32 v{rg*8+2*d}, 16, v{XP+rg*32+d}")
            a(f"v_and_b32 v{rg*8+2*d+1}, 0xffff0000, v{XP+rg*32+d}")
        for k in range(0, 8, 2):
            y = rg*8 + k
            a(f"v_pk_fma_f32 v[{y}:{y+1}], v[{y}:{y+1}], v[{st+2*rg}:{st+2*rg+1}], v[{st+2*rg}:{st+2*rg+1}] op_sel:[0,0,1] op_sel_hi:[1,0,1]")
    assert not units
    a(f"s_lshl_b32 s44, s{S_AG}, 19")
    srd_dyn(a, SX, PWO, 44, 512*1024)
    a(f"""
    s_mov_b32 s{S_T0}, {f32(THR)}
    s_lshl_b32 s44, s{S_AG}, 18
    s_lshl_b32 s45, s{S_W}, 12
    s_add_u32 s{S_DOFF}, s44, s45
    s_add_u32 s{S_DOFF}, s{S_DOFF}, {hex(WS_KV)}
    s_mov_b32 s{S_T0+1}, 16384
    s_add_u32 s{S_T0+2}, s45, 98304
    s_mov_b32 s{S_T0+3}, s45
    s_mov_b32 s{S_DSLOT}, s45
    s_mov_b32 s{S_RSLOT}, {KVD}
    v_add_u32 v{VKV}, {KVD}, v{VLIN}
    s_lshl_b32 s34, s{S_AG}, 3
    s_add_u32 s34, s34, {hex(FA_ + 192*8)}
    s_mov_b32 s35, {hex(FA_ + 64*8)}
    s_mov_b32 s36, {hex(FA_ + 128*8)}
    v_lshlrev_b32 v{VT+12}, 2, v{VLIN}
    v_min_u32 v{VT+12}, {7*64}, v{VT+12}
    s_lshl_b32 s42, s2, 3
    s_add_u32 s42, s42, {hex(FA_)}
    """)
    stamp(a, 22)
    stamp(a, 29)
    a(f"""
    v_lshrrev_b32 v{VT+13}, 2, v{VLIN}
    s_mov_b32 s47, {SPIN_MAX}
    s_lshl_b32 s44, s{S_W}, 10
    v_add_u32 v{VT+2}, s44, v{VLIN}
    s_lshl_b32 s45, s43, 8
    v_subrev_u32 v{VT+3}, s45, v{VT+2}
    v_and_b32 v{VT+3}, 0x7ff, v{VT+3}
    v_and_b32 v{VT+2}, 0x800, v{VT+2}
    v_or_b32 v{VT+2}, v{VT+2}, v{VT+3}
    v_lshlrev_b32 v{VMA}, 5, v{VT+7}
    v_add_u32 v{VMA}, {MSC}, v{VMA}
    v_add_u32 v{VT+2}, {MSC}, v{VT+2}
    v_lshlrev_b32 v{VT+13}, 1, v{VLIN}
    s_lshl_b32 s44, s{S_W}, 11
    s_add_u32 s44, s44, {hex(MODG)}
    KF_POLL:
    buffer_load_dwordx4 v[40:43], v{VT+13}, s[{SWS}:{SWS+3}], s44 offen sc1
    buffer_load_dwordx4 v[44:47], v{VT+13}, s[{SWS}:{SWS+3}], s44 offen offset:16 sc1
    s_sub_u32 s47, s47, 1
    s_waitcnt vmcnt(0)
    v_xor_b32 v41, s{TAG}, v41
    v_xor_b32 v43, s{TAG}, v43
    v_xor_b32 v45, s{TAG}, v45
    v_xor_b32 v47, s{TAG}, v47
    v_or3_b32 v41, v41, v43, v45
    v_or_b32 v41, v41, v47
    v_cmp_ne_u32 vcc, 0, v41
    s_cbranch_vccz KF_GO
    s_sleep {SLEEP0}
    s_cmp_lg_u32 s47, 0
    s_cbranch_scc1 KF_POLL
    KF_GO:
    v_mov_b32 v32, v40
    v_mov_b32 v33, v42
    v_mov_b32 v34, v44
    v_mov_b32 v35, v46
    """)
    stamp(a, 30)
    a(f"""
    s_cmp_lt_u32 s{S_W}, 2
    s_cbranch_scc1 KF_SA
    """)
    for j in range(4): a(f"v_add_f32 v{32+j}, 1.0, v{32+j}")
    for d in range(2): a(f"v_cvt_pk_bf16_f32 v{36+d}, v{32+2*d}, v{33+2*d}")
    for d in range(2):
        a(f"v_lshlrev_b32 v{32+2*d}, 16, v{36+d}")
        a(f"v_and_b32 v{33+2*d}, 0xffff0000, v{36+d}")
    a("KF_SA:")
    stamp(a, 23)
    for j in range(4): a(f"v_mul_f32 v{32+j}, {f32(QS)}, v{32+j}")
    a(f"""
    ds_write_b128 v{VT+2}, v[32:35]
    """)
    for m in range(2):
        pre, d = wq_dma(RING[4+m], (29, KVD + m*4096))
        for x in pre + d: a(x)
    a(f"""
    s_sub_u32 s45, s29, s{S_RING}
    s_waitcnt lgkmcnt(0)
    s_barrier
    ds_read_b128 v[16:19], v{VMA}
    ds_read_b128 v[20:23], v{VMA} offset:16
    ds_read_b128 v[24:27], v{VMA} offset:2048
    ds_read_b128 v[28:31], v{VMA} offset:2064
    """)
    for x in hb_reads(0): a(x)
    flag_store(a, "KFA", 42)
    for i in range(4): a(f"v_add_u32 v{VTSL[i]}, s45, v{VTR+i}")
    for i in range(4): a(f"v_add_u32 v{VTK[i]}, {KVD}, v{VTSL[i]}")
    a("s_waitcnt lgkmcnt(2)")
    for rg in range(2):
        y = rg*8
        for k in range(0, 8, 2):
            a(f"v_pk_fma_f32 v[{y+k}:{y+k+1}], v[{y+k}:{y+k+1}], v[{24+k}:{25+k}], v[{16+k}:{17+k}]")
        for d in range(4):
            a(f"v_cvt_pk_bf16_f32 v{y+d}, v{y+2*d}, v{y+2*d+1}")
        a(f"ds_write_b128 v{VHW}, {vr(y,4)} offset:{HB + rg*128}")
    for m in range(2):
        pre, d = wq_dma(PRE[m], (29, STG[m]))
        for x in pre + d: a(x)
    a("s_waitcnt lgkmcnt(0)")
    a("s_barrier")

def hb_reads(n):
    i = 1 + n//2; hf = n & 1; b = MB[n & 1]
    return [f"ds_read_b128 {vr(b,4)}, v{VMA} offset:{i*256 + hf*16}", f"ds_read_b128 {vr(b+4,4)}, v{VMA} offset:{2048 + i*256 + hf*16}"]
def hb_valu(n, rg):
    i = 1 + n//2; hf = n & 1; b = MB[n & 1]
    x = XP + rg*32 + i*4 + hf*2
    r = []
    for d in range(2):
        r.append((f"v_lshlrev_b32 v{MT+2*d}, 16, v{x+d}", 4))
        r.append((f"v_and_b32 v{MT+2*d+1}, 0xffff0000, v{x+d}", 5))
    for k in range(4): r.append((f"v_fma_f32 v{MT+k}, v{MT+k}, v{VSTAT+2*rg}, v{VSTAT+2*rg+1}", 5))
    for k in range(4): r.append((f"v_fma_f32 v{MT+k}, v{MT+k}, v{b+4+k}, v{b+k}", 5))
    for d in range(2): r.append((f"v_cvt_pk_bf16_f32 v{x+d}, v{MT+2*d}, v{MT+2*d+1}", 5))
    return r
def hb_write(i, rg):
    return f"ds_write_b128 v{VHW}, {vr(XP + rg*32 + i*4, 4)} offset:{HB + i*8192 + rg*128}"

def qproj(a):
    vq = VQ()
    vq.issue(('W', RING[4]), 4); vq.issue(('W', RING[5]), 4)
    for m in range(2): vq.issue(('P', m), 4)
    slot = {RING[q]: q for q in range(6)}
    nextq = 6
    def areg(s_, i):
        if s_ in PRE: return ar(64 + 16*PRE.index(s_) + 4*i, 4)
        return ar(AA + 16*(RING.index(s_) & 1) + 4*i, 4)
    def a_reads(s_):
        q = RING.index(s_); sl = slot[s_]
        adr = (lambda i: VTR+i) if sl < 4 else (lambda i: VTK[i])
        return [f"ds_read_b64_tr_b16 {ar(AA+16*(q&1)+4*i+2*h,2)}, v{adr(i)} offset:{(sl&3)*4096 + h*1024}" for i in range(4) for h in range(2)]
    def b_reads(s_):
        return [f"ds_read_b128 {ar(AB+8*(s_&1)+4*th,4)}, v{VBQ+(s_&3)} offset:{HB + s_*2048 + th*1024}" for th in range(2)]
    for x in b_reads(0) + a_reads(0): a(x)
    a("s_waitcnt lgkmcnt(0)")
    pending_w = []
    for s_ in range(32):
        mf = []
        for i in range(4):
            for th in range(2):
                d = vr(ACC + (i*2+th)*16, 16)
                mf.append(mfma(d, areg(s_, i), ar(AB+8*(s_&1)+4*th,4), "0" if s_ == 0 else d))
        gaps = [[] for _ in range(8)]
        if s_ + 1 < 32:
            rb = b_reads(s_+1)
            if s_ + 1 in RING:
                ra = a_reads(s_+1)
                if ('W', s_+1) in vq.q: gaps[0].append(f"s_waitcnt vmcnt({vq.need(('W', s_+1))})")
                gaps[0] += rb[0:1] + ra[0:2]; gaps[1] = rb[1:2] + ra[2:4]; gaps[2] = ra[4:6]; gaps[3] = ra[6:8]
            else:
                gaps[0] += rb
        did = False
        if s_ in RING and nextq < len(RING) and not (slot[s_] >= 4 and RING[nextq] >= 28):
            sl = slot[s_]; k = RING[nextq]; slot[k] = sl; nextq += 1
            pre, d = wq_dma(k, (S_RING, sl*4096) if sl < 4 else (29, KVD + (sl-4)*4096))
            gaps[2] = pre[1:3] + gaps[2]; gaps[3] = pre[0:1] + gaps[3]
            for j in range(4): gaps[4+j].append(d[j])
            vq.issue(('W', k), 4); did = True
        prd = {5: 0, 6: 1}
        if s_ in prd:
            m = prd[s_]
            assert vq.landed(('P', m)), s_
            rr = [f"ds_read_b64_tr_b16 {ar(64+16*m+4*i+2*h,2)}, v{VTSL[i]} offset:{24576 + (m&1)*4096 + h*1024}" for i in range(4) for h in range(2)]
            for j in range(4): gaps[3+j] = rr[2*j:2*j+2] + gaps[3+j]
        if s_ == 14:
            gaps[4] = [f"buffer_load_dwordx2 v[{VFL}:{VFL+1}], v{VT+12}, s[{SWS}:{SWS+3}], s34 offen sc1"]
            gaps[5] = [f"buffer_load_dwordx4 v[{VFL+2}:{VFL+5}], v{VLIN}, s[{SWS}:{SWS+3}], s35 offen sc1"]
            vq.issue(('F', 0), 2)
        if s_ == 24:
            assert vq.landed(('F', 0))
            gaps[4] = [f"v_cmp_ne_u64 vcc, s[{TAG}:{TAG+1}], v[{VFL}:{VFL+1}]", f"v_cmp_ne_u64 s[44:45], s[{TAG}:{TAG+1}], v[{VFL+2}:{VFL+3}]",
                       f"v_cmp_ne_u64 s[46:47], s[{TAG}:{TAG+1}], v[{VFL+4}:{VFL+5}]"]
            gaps[5] = ["s_or_b64 s[44:45], s[44:45], s[46:47]", "s_or_b64 s[44:45], s[44:45], vcc", "s_cbranch_scc1 KQ_SLOW", "KQ_RET:"]
        if s_ in (28, 29):
            assert not did and nextq == len(RING)
            t = s_ - 28
            gaps[3] = [f"s_add_u32 m0, s{S_DSLOT}, {KVD + t*16384}"] + gaps[3]
            for j in range(4): gaps[4+j].append(f"buffer_load_dwordx4 v{VLIN}, s[{SWS}:{SWS+3}], s{S_DOFF} offen offset:{j*1024} sc1 lds")
            gaps[7].append(f"s_add_u32 s{S_DOFF}, s{S_DOFF}, 16384")
            vq.issue(('KV', t), 4)
        work = [(s_, 0), (s_, 1)] if s_ < 4 else ([(4 + (s_-4)//2, (s_-4) & 1)] if s_ < 24 else [])
        nxt = s_ + 1 if s_ < 4 else (5 + (s_-4)//2 if (s_-4) & 1 else None)
        if nxt is not None and nxt < 14: gaps[2] = gaps[2] + hb_reads(nxt)
        for wr in pending_w: gaps[1].append(wr)
        pending_w = [hb_write(1 + n//2, rg) for n, rg in work if n & 1]
        if s_ % 4 == 3 and s_ < 28: gaps[0] = ["s_barrier"] + gaps[0]
        if s_ + 1 < 32: gaps[7] = ["s_waitcnt lgkmcnt(0)"] + gaps[7]
        st_ = [x for n, rg in work for x in hb_valu(n, rg)]
        if st_:
            cost = [sum(12 if 'ds_write' in x else (6 if 'buffer' in x else (0 if x.startswith('s_') else 4)) for x in g) for g in gaps]
            spread(gaps, cost, st_, 0, 7)
        if s_ in (4, 8, 16, 24): stamp(a, {4: 21, 8: 24, 16: 25, 24: 26}[s_])
        emit(a, mf, gaps)
    return vq

def phaseB(a):
    site_counter[0] = 0; sites[0].clear(); sites[1].clear(); pcount[0] = 0
    front(a)
    stamp(a, 1)
    vq = qproj(a)
    stamp(a, 2)
    a(f"""
    s_mov_b32 s{SW}, s{SWS}
    s_mov_b32 s{SW+1}, s{SWS+1}
    s_mov_b32 s{SW+2}, s{SWS+2}
    s_mov_b32 s{S_WSTEP}, 16384
    s_waitcnt vmcnt({vq.need(('KV', 0))})
    s_barrier
    """)
    for x in k_reads(0): a(x)
    for j in range(4): a(f"v_mov_b32 v{VDMA+j}, v{VLIN}")
    def kv_issue():
        pre, d = kv_dma()
        return pre + ["s_nop 0"] + d + [f"s_add_u32 s{S_DOFF}, s{S_DOFF}, 16384", f"s_add_u32 s{S_DSLOT}, s{S_DSLOT}, 16384"]
    for x in kv_issue(): a(x)
    for x, _ in cvtq_stream(0): a(x)
    a("s_waitcnt lgkmcnt(0)")
    gaps = [[] for _ in range(8)]; cost = [0]*8
    vr0 = v_reads(0)
    for j in range(8): gaps[j].append(vr0[j]); cost[j] += 4
    spread(gaps, cost, cvtq_stream(1), 0, 7)
    emit(a, qk_mf(0, 0, czero=True), gaps)
    for x in kv_issue() + kv_issue(): a(x)
    a(f"""
    s_add_u32 s{S_RSLOT}, s{S_RSLOT}, 16384
    v_add_u32 v{VKV}, s{S_RSLOT}, v{VLIN}
    s_waitcnt vmcnt(12) lgkmcnt(0)
    s_barrier
    """)
    i0, m0 = init_stream(0)
    i1, m1 = init_stream(1)
    gaps = [[] for _ in range(8)]; cost = [0]*8
    kr = k_reads(1); vr1 = v_reads(1)
    for j in range(8): gaps[j] += [kr[j], vr1[j]]; cost[j] += 8
    spread(gaps, cost, i0, 0, 7)
    emit(a, qk_mf(1, 0, czero=True), gaps)
    for x in kv_issue(): a(x)
    npf = 0
    a(f"""
    s_lshr_b32 s44, s2, 4
    s_lshl_b32 s44, s44, 15
    s_lshl_b32 s45, s{S_W}, 13
    s_add_u32 s{S_PFO}, s44, s45
    s_mov_b32 s{S_PFS}, 2048
    s_mov_b32 s{SPF}, s{SX}
    s_mov_b32 s{SPF+1}, s{SX+1}
    s_mov_b32 s{SPF+2}, s{SX+2}
    s_mov_b32 s{SPF+3}, 0x20000
    v_mov_b32 v{VPF}, v{VLIN}
    v_add_u32 v{VPF+1}, 1024, v{VLIN}
    s_lshl_b32 s44, s{S_TB}, 2
    s_add_u32 s44, s44, s{S_W}
    s_mul_i32 s45, s44, {4*3584}
    s_lshr_b32 s46, s{S_G}, 1
    s_mul_i32 s46, s46, 896
    s_add_u32 s{S_PF2}, s45, s46
    s_mul_i32 s{S_PF2+1}, s44, {14*1024}
    """)
    for x, _ in exp_stream(0): a(x)
    a(f"v_mov_b32 v{L[0]}, v{LT[0]}")
    a(f"v_mov_b32 v{L[1]}, 0")
    for x, _ in i1: a(x)
    h1, pend = split_st1(exp_stream(1))
    zero1 = [(f"v_mov_b32 v{ACC + (dt*2+1)*16 + k}, 0", 4) for dt in range(4) for k in range(16)]
    gaps = [[] for _ in range(8)]
    spread(gaps, [0]*8, m0 + h1 + m1[:8], 0, 7)
    emit(a, pv_mf(0, 0, czero=True), gaps)
    for x, _ in m1[8:] + zero1: a(x)
    a("s_waitcnt lgkmcnt(0)")
    a(f"s_mov_b32 s{S_CNT}, 7")
    stamp(a, 3)
    a("KA_ALOOP:")
    p2 = period(a, 1, npf, pend1=pend)
    assert p2 == pend
    period(a, 0, npf, pend1=pend)
    a(f"""
    s_sub_u32 s{S_CNT}, s{S_CNT}, 1
    s_cmp_eq_u32 s{S_CNT}, 0
    s_cbranch_scc1 KA_AEND
    s_cmp_eq_u32 s{S_CNT}, 6
    s_cbranch_scc1 KA_ALOOP
    s_cmp_gt_u32 s{S_CNT}, 2
    s_cbranch_scc1 KA_PFSW
    s_cmp_lg_u32 s{S_CNT}, 2
    s_cbranch_scc1 KA_ALOOP
    s_mov_b32 s{SW}, s{SX}
    s_mov_b32 s{SW+1}, s{SX+1}
    s_mov_b32 s{SW+2}, s{SX+2}
    s_lshl_b32 s{S_DOFF}, s{S_W}, 8
    s_mov_b32 s{S_WSTEP}, {32*1024}
    s_mov_b32 s{S_DSLOT}, s{S_RING}
    s_mov_b32 s{S_T0+1}, 4096
    s_mov_b32 s{S_T0+2}, -1
    """)
    for j in range(4): a(f"v_mov_b32 v{VDMA+j}, v{VWO+j}")
    a(f"""
    s_branch KA_ALOOP
    KA_PFSW:
    s_cmp_eq_u32 s{S_CNT}, 3
    s_cbranch_scc1 KA_PFWD
    s_cmp_eq_u32 s{S_CNT}, 5
    s_cselect_b32 s{SPF}, s{PWG}, s{PWU}
    s_cselect_b32 s{SPF+1}, s{PWG+1}, s{PWU+1}
    s_mov_b32 s{SPF+2}, {512*3584}
    s_mov_b32 s{S_PFO}, s{S_PF2}
    s_mov_b32 s{S_PFS}, {2*3584}
    v_min_u32 v{VPF}, {55*16}, v{VLIN}
    v_add_u32 v{VPF+1}, 3584, v{VPF}
    s_branch KA_ALOOP
    KA_PFWD:
    s_mov_b32 s{SPF}, s{PWD}
    s_mov_b32 s{SPF+1}, s{PWD+1}
    s_mov_b32 s{SPF+2}, {1792*1024}
    s_mov_b32 s{S_PFO}, s{S_PF2+1}
    s_mov_b32 s{S_PFS}, 2048
    v_mov_b32 v{VPF}, v{VLIN}
    v_add_u32 v{VPF+1}, 1024, v{VLIN}
    s_branch KA_ALOOP
    KA_AEND:
    """)
    pend = period(a, 1, npf, kind="last", pend1=pend)
    for x, _ in pend: a(x)
    a(f"""
    s_mov_b32 s{S_WOFF}, s{S_DOFF}
    s_lshl_b32 s44, s{S_W}, 14
    v_add_u32 v{VT+8}, s44, v{VLIN}
    v_add_u32 v{VTR}, s{S_RING}, v{VT2}
    v_add_u32 v{VTR+1}, s{S_RING}, v{VT2+1}
    """)
    for x in check_site(1): a(x)
    for x in linv(0): a(x)
    n0 = norm_stream(0, False)
    gaps = [[] for _ in range(8)]
    spread(gaps, [0]*8, take(n0, 8*26), 0, 7)
    emit(a, pv_mf(1, 1), gaps)
    stamp(a, 4)
    for x, _ in n0: a(x)
    for x in linv(1): a(x)
    for x, _ in norm_stream(1, True): a(x)
    a(f"""
    v_lshrrev_b32 v{VT+8}, 4, v{VLIN}
    v_bfe_u32 v{VT+9}, v{VT+8}, 3, 2
    v_lshlrev_b32 v{VT+9}, 13, v{VT+9}
    v_lshrrev_b32 v{VT+10}, 5, v{VT+8}
    v_lshl_add_u32 v{VT+9}, v{VT+10}, 7, v{VT+9}
    v_and_b32 v{VT+10}, 7, v{VT+8}
    v_lshl_add_u32 v{VT+9}, v{VT+10}, 4, v{VT+9}
    s_lshl_b32 s44, s{S_AG}, 21
    s_lshl_b32 s45, s{S_ATB}, 16
    s_add_u32 s44, s44, s45
    s_lshl_b32 s45, s{S_W}, 11
    s_add_u32 s44, s44, s45
    s_add_u32 s44, s44, {hex(WS_PART)}
    s_add_u32 s45, s44, 32768
    s_waitcnt vmcnt(18) lgkmcnt(0)
    s_barrier
    """)
    stamp(a, 5)
    def ar_(u):
        buf = u & 1; slot = u & 3
        r = [f"ds_read_b64_tr_b16 {vr(FA+16*buf+(kk*2+i)*4+2*h,2)}, v{VTR+i} offset:{slot*4096 + kk*2048 + h*512}" for kk in range(2) for i in range(2) for h in range(2)]
        if u < 16:
            b = [f"ds_read_b128 {ar((2*u*2+q)*4,4)}, v{VLIN} offset:{HB + u*4096 + q*1024}" for q in range(4)]
            r = [b[0]] + r[0:2] + [b[1]] + r[2:4] + [b[2]] + r[4:6] + [b[3]] + r[6:8]
        return r
    def pstore(c):
        r = []; n = 0
        for i in range(2):
            for th in range(2):
                for sub in range(2):
                    base = ACC + 64*c + (i*2+th)*16 + 8*sub
                    t = base
                    for d in range(4): r.append((f"v_cvt_pk_bf16_f32 v{t+d}, v{base+2*d}, v{base+2*d+1}", 5))
                    r.append((f"buffer_store_dwordx4 {vr(t,4)}, v{VT+9}, s[{SWS}:{SWS+3}], s{44+th} offen offset:{(4*(2*c+i)+2*sub)*128}{sc()}", 12))
        return r
    vq = VQ()
    for u in range(4): vq.issue(('PF', u), 2); vq.issue(('W', u), 4)
    for x in ar_(0): a(x)
    a("s_waitcnt lgkmcnt(0)")
    st0 = pstore(0)
    tmp = Asm(); c_setup(tmp); srd(tmp, SX, PX, 2048*1024); d_setup(tmp); e_setup(tmp)
    tmp(f"s_cmp_ge_u32 s{S_TB}, 28")
    tmp(f"s_cselect_b32 s{S_DM0}, 131072, s{S_DM0}")
    misc = [l.strip() for l in tmp.lines]
    cl = c_loads()
    mchunks = [[]]
    for k, l in enumerate(misc):
        cons = l.startswith(("s_cselect", "s_addc"))
        if len(mchunks[-1]) >= 6 and not cons: mchunks.append([])
        mchunks[-1].append(l)
    assert len(mchunks) <= 11, len(mchunks)
    for u in range(32):
        head = []; nxt = []; mid = {}
        if u + 1 < 32:
            head = [f"s_waitcnt vmcnt({vq.need(('W', u+1))})"]
            nxt = ar_(u+1)
        if u + 4 < 32:
            pre, d, post = w_dma(u & 3)
            if u + 4 == 15: post = [f"s_lshl_b32 s{S_WOFF}, s{S_W}, 8", f"s_add_u32 s{S_WOFF}, s{S_WOFF}, 128"]
            mid = {3: pre, 4: d[0:1], 5: d[1:2], 6: d[2:3], 7: d[3:4] + post}
        fill = []
        if 18 <= u < 26:
            fill = st0[(u-18)*5:(u-18)*5+4]
        if 16 <= u < 16 + len(mchunks):
            mid[1] = mchunks[u-16]
        if u == 27:
            mid[7] = mid[7] + cl[0:2]
        if u >= 28:
            pass
        if u >= 28:
            k = 2 + 3*(u-28)
            mid = {3: cl[k:k+1], 4: [st0[(2*(u-28))*5+4][0]], 5: cl[k+1:k+3], 6: [st0[(2*(u-28)+1)*5+4][0]]}
            vq.issue(('S', u), 5)
        if u + 4 < 32: vq.issue(('W', u+4), 4)
        if u == 27: vq.issue(('C', u), 2)
        rb_unit(a, u, nxt, head, mid, fill, ACC + 64*(u // 16), u % 16 == 0)
    stamp(a, 6)
    a("s_nop 7")
    a("s_nop 3")
    for x, _ in pstore(1): a(x)
    a(f"""
    s_lshl_b32 s46, s{S_ATB}, 10
    s_lshl_b32 s47, s{S_AG}, 7
    s_add_u32 s46, s46, s47
    s_add_u32 s46, s46, {hex(FP)}
    """)
    publish(a, "KB", 46)
    stamp(a, 7)

def slow_paths(a):
    a("KQ_SLOW:")
    poll(a, "KQ1", 34, 8, stride=64)
    poll(a, "KQ2", 35, 64, stride=8)
    poll(a, "KQ3", 36, 64, stride=8)
    a("s_branch KQ_RET")
    for h in range(2):
        for k in sites[h]:
            a(f"KA_TR{k}:")
            a(f"s_mov_b32 s{S_RET}, {k}")
            a(f"s_branch KA_SLOW{h}")
    for h in range(2):
        t = VT
        a(f"KA_SLOW{h}:")
        a("s_nop 7")
        a("s_nop 7")
        a(f"v_max3_f32 v{t}, v{S[h]}, v{S[h]+1}, v{S[h]+2}")
        for k in range(3, 15, 2):
            a(f"v_max3_f32 v{t}, v{t}, v{S[h]+k}, v{S[h]+k+1}")
        a(f"v_max_f32 v{t}, v{t}, v{S[h]+15}")
        a(f"v_mov_b32 v{t+1}, v{t}")
        a("s_nop 1")
        a(f"v_permlane32_swap_b32 v{t}, v{t+1}")
        a("s_nop 0")
        a(f"v_max_f32 v{t}, v{t}, v{t+1}")
        a(f"v_add_f32 v{t}, {f32(BIAS)}, v{t}")
        a(f"v_max_f32 v{t}, 0, v{t}")
        a(f"v_exp_f32 v{t+1}, -v{t}")
        for k in range(16): a(f"v_sub_f32 v{S[h]+k}, v{S[h]+k}, v{t}")
        for k in range(16): a(f"v_sub_f32 v{M[h]+k}, v{M[h]+k}, v{t}")
        a(f"v_mul_f32 v{L[h]}, v{L[h]}, v{t+1}")
        for dt in range(4):
            for k in range(16):
                r = ACC + (dt*2+h)*16 + k
                a(f"v_mul_f32 v{r}, v{r}, v{t+1}")
        for k in range(0, 16, 2):
            a(f"v_exp_f32 v{t+2}, v{S[h]+k}")
            a(f"v_exp_f32 v{t+3}, v{S[h]+k+1}")
            a("s_nop 0")
            if k == 0: a(f"v_add_f32 v{LT[h]}, v{t+2}, v{t+3}")
            else:
                a(f"v_add_f32 v{LT[h]}, v{LT[h]}, v{t+2}")
                a(f"v_add_f32 v{LT[h]}, v{LT[h]}, v{t+3}")
            a(f"v_cvt_pk_bf16_f32 v{P[h]+k//2}, v{t+2}, v{t+3}")
        a("s_nop 1")
        for k in sites[h][:-1]:
            a(f"s_cmp_eq_u32 s{S_RET}, {k}")
            a(f"s_cbranch_scc1 KA_RET{k}")
        a(f"s_branch KA_RET{sites[h][-1]}")

SD = 48
S_DM0, S_DWO = 52, 53
S_TG, S_FB = 54, 55
VDW = 231
def d_setup(a):
    a(f"""
    s_and_b32 s46, s{S_G}, 1
    s_lshl_b32 s46, s46, 2
    s_and_b32 s47, s{S_TB}, 3
    s_add_u32 s{S_TG}, s46, s47
    s_lshr_b32 s46, s{S_G}, 1
    s_mul_i32 s46, s46, 7
    s_lshr_b32 s47, s{S_TB}, 2
    s_add_u32 s{S_FB}, s46, s47
    s_cmp_lt_u32 s{S_W}, 2
    s_cselect_b32 s{SD}, s{PWG}, s{PWU}
    s_cselect_b32 s{SD+1}, s{PWG+1}, s{PWU+1}
    s_mov_b32 s{SD+2}, {512*3584}
    s_mov_b32 s{SD+3}, 0x20000
    s_and_b32 s46, s{S_W}, 1
    s_mul_i32 s46, s46, {8*3584}
    s_lshl_b32 s47, s{S_FB}, 7
    s_add_u32 s{S_DWO}, s46, s47
    s_lshl_b32 s{S_DM0}, s{S_W}, 10
    v_lshrrev_b32 v{VT+4}, 10, v{VWO}
    v_mul_u32_u24 v{VDW}, 3584, v{VT+4}
    v_and_b32 v{VT+4}, 0x3ff, v{VWO}
    v_add_u32 v{VDW}, v{VDW}, v{VT+4}
    """)
def d_wdma():
    return [f"s_mov_b32 m0, s{S_DM0}", f"s_add_u32 s{S_DM0}, s{S_DM0}, 4096",
            f"buffer_load_dwordx4 v{VDW}, s[{SD}:{SD+3}], s{S_DWO} offen lds", f"s_add_u32 s{S_DWO}, s{S_DWO}, {16*3584}"]

CL = 131072
CX, CGA, CSB, CCB = 160, 168, 184, 200
def c_setup(a):
    a(f"""
    s_lshl_b32 s40, s{S_G}, 5
    s_add_u32 s40, s40, s{S_TB}           ; oct
    s_lshl_b32 s41, s40, 13
    s_lshl_b32 s46, s{S_W}, 11
    s_add_u32 s42, s41, s46
    s_add_u32 s42, s42, {hex(WS_PART)}
    v_bfe_u32 v{VT}, v{VLIN}, 4, 3        ; t
    v_lshrrev_b32 v{VT+1}, 7, v{VLIN}     ; Lq
    v_lshlrev_b32 v{VT+2}, 10, v{VT}
    v_lshl_add_u32 v{VT+2}, v{VT+1}, 4, v{VT+2}     ; t*1024 + Lq*16
    v_lshlrev_b32 v{VT+3}, 5, v{VT+1}               ; Lq*32
    s_lshl_b32 s46, s{S_W}, 8
    s_add_u32 s43, s41, s46
    s_lshl_b32 s46, s{S_W}, 9
    s_add_u32 s30, s46, {WS_MOD + 2*2048}
    s_add_u32 s31, s46, {WS_MOD + 4*2048}
    """)
def c_loads():
    r = []
    for q in range(2):
        r.append(f"buffer_load_dwordx4 {vr(CX+4*q,4)}, v{VT+2}, s[{SX}:{SX+3}], s43 offen offset:{q*128}")
    for q in range(2):
        for hh in range(2):
            r.append(f"buffer_load_dwordx4 {vr(CGA+8*q+4*hh,4)}, v{VT+3}, s[{SWS}:{SWS+3}], s30 offen offset:{q*256+hh*16} sc1")
            r.append(f"buffer_load_dwordx4 {vr(CSB+8*q+4*hh,4)}, v{VT+3}, s[{SWS}:{SWS+3}], s30 offen offset:{2048+q*256+hh*16} sc1")
            r.append(f"buffer_load_dwordx4 {vr(CCB+8*q+4*hh,4)}, v{VT+3}, s[{SWS}:{SWS+3}], s31 offen offset:{q*256+hh*16} sc1")
    return r

def phaseC(a):
    a(f"""
    s_lshr_b32 s44, s40, 3
    s_lshl_b32 s44, s44, 10
    s_add_u32 s44, s44, {hex(FP)}
    """)
    poll(a, "KC", 44, 8, dma=True)
    stamp(a, 8)
    for g in range(8):
        for q in range(2):
            a(f"buffer_load_dwordx4 {vr(8*g+4*q,4)}, v{VLIN}, s[{SWS}:{SWS+3}], s42 offen offset:{q*1024}{sc()}")
        if g < 7: a(f"s_add_u32 s42, s42, 0x200000")
    nd = 0
    for j in range(16): a(f"v_add_f32 v{CCB+j}, 1.0, v{CCB+j}")
    for d in range(8): a(f"v_cvt_pk_bf16_f32 v{144+d}, v{CCB+2*d}, v{CCB+1+2*d}")
    for d in range(8):
        a(f"v_lshlrev_b32 v{CCB+2*d}, 16, v{144+d}")
        a(f"v_and_b32 v{CCB+1+2*d}, 0xffff0000, v{144+d}")
    for d in range(8):
        a(f"v_lshlrev_b32 v{64+2*d}, 16, v{CX+d}")
        a(f"v_and_b32 v{65+2*d}, 0xffff0000, v{CX+d}")
    a(f"""
    s_add_u32 s43, s43, {hex(WS_X1)}
    v_lshrrev_b32 v80, 9, v{VLIN}
    v_lshlrev_b32 v80, 7, v80
    v_lshl_add_u32 v80, v{VT}, 4, v80
    s_lshl_b32 s44, s{S_W}, 2
    s_add_u32 s44, s44, {CL}
    v_add_u32 v80, s44, v80
    v_lshlrev_b32 v81, 4, v{VT}
    v_add_u32 v81, {CL}, v81
    v_lshrrev_b32 v82, 1, v{VT+1}
    v_lshlrev_b32 v82, 11, v82
    v_and_b32 v83, 1, v{VT+1}
    v_lshl_add_u32 v82, v83, 9, v82
    v_lshl_add_u32 v82, v{VT}, 4, v82
    s_lshr_b32 s44, s40, 3
    s_lshl_b32 s44, s44, 16
    s_bfe_u32 s45, s40, 0x10002
    s_lshl_b32 s45, s45, 10
    s_add_u32 s44, s44, s45
    s_and_b32 s45, s40, 3
    s_lshl_b32 s45, s45, 7
    s_add_u32 s44, s44, s45
    s_lshl_b32 s45, s{S_W}, 14
    s_add_u32 s44, s44, s45
    s_add_u32 s44, s44, {hex(WS_H2)}
    s_add_u32 s45, s44, 8192
    s_lshl_b32 s46, s40, 7
    s_add_u32 s46, s46, {hex(FH)}
    """)
    for g in range(8):
        a(f"s_waitcnt vmcnt({14-2*g})")
        for d in range(8):
            a(f"v_lshlrev_b32 v{144+2*d}, 16, v{8*g+d}")
            a(f"v_and_b32 v{145+2*d}, 0xffff0000, v{8*g+d}")
        for j in range(0, 16, 2): a(f"v_pk_fma_f32 v[{64+j}:{65+j}], v[{144+j}:{145+j}], v[{CGA+j}:{CGA+1+j}], v[{64+j}:{65+j}]")
    a("v_pk_add_f32 v[0:1], v[64:65], v[66:67]")
    a("v_pk_mul_f32 v[2:3], v[64:65], v[64:65]")
    a("v_pk_fma_f32 v[2:3], v[66:67], v[66:67], v[2:3]")
    for j in range(4, 16, 2):
        a(f"v_pk_add_f32 v[0:1], v[0:1], v[{64+j}:{65+j}]")
        a(f"v_pk_fma_f32 v[2:3], v[{64+j}:{65+j}], v[{64+j}:{65+j}], v[2:3]")
    a(f"""
    v_add_f32 v6, v0, v1
    v_add_f32 v7, v2, v3
    s_nop 1
    v_permlane32_swap_b32 v6, v7
    s_nop 0
    v_add_f32 v6, v6, v7
    v_mov_b32 v7, v6
    s_nop 1
    v_permlane16_swap_b32 v6, v7
    s_nop 0
    v_add_f32 v6, v6, v7
    s_nop 1
    v_add_f32_dpp v6, v6, v6 row_ror:8 row_mask:0xf bank_mask:0xf
    ds_write_b32 v80, v6
    """)
    for d in range(8): a(f"v_cvt_pk_bf16_f32 v{CX+d}, v{64+2*d}, v{65+2*d}")
    a("""
    s_waitcnt lgkmcnt(0)
    s_barrier
    ds_read_b128 v[16:19], v81
    ds_read_b128 v[20:23], v81 offset:128
    """)
    for q in range(2):
        a(f"buffer_store_dwordx4 {vr(CX+4*q,4)}, v{VT+2}, s[{SWS}:{SWS+3}], s43 offen offset:{q*128} sc1")
    a(f"""
    s_waitcnt lgkmcnt(0)
    v_pk_add_f32 v[16:17], v[16:17], v[18:19]
    v_pk_add_f32 v[20:21], v[20:21], v[22:23]
    v_add_f32 v16, v16, v17
    v_add_f32 v20, v20, v21
    v_mul_f32 v16, {f32(1/512)}, v16
    v_mul_f32 v20, {f32(1/512)}, v20
    v_fma_f32 v20, -v16, v16, v20
    v_max_f32 v20, 0, v20
    v_add_f32 v20, {f32(1e-5)}, v20
    v_rsq_f32 v20, v20
    s_nop 0
    v_mul_f32 v16, v16, v20
    v_sub_f32 v21, 0, v16
    """)
    for j in range(0, 16, 2): a(f"v_pk_fma_f32 v[{64+j}:{65+j}], v[{64+j}:{65+j}], v[20:21], v[20:21] op_sel:[0,0,1] op_sel_hi:[1,0,1]")
    for j in range(0, 16, 2): a(f"v_pk_fma_f32 v[{64+j}:{65+j}], v[{64+j}:{65+j}], v[{CCB+j}:{CCB+1+j}], v[{CSB+j}:{CSB+1+j}]")
    for d in range(8):
        a(f"v_cvt_pk_bf16_f32 v{24+d}, v{64+2*d}, v{65+2*d}")
        if d % 4 == 3: a(f"buffer_store_dwordx4 {vr(24+4*(d//4),4)}, v82, s[{SWS}:{SWS+3}], s{44+d//4} offen sc1")
    publish(a, "KC", 46)
    stamp(a, 9)

def gelu_stream(c, pk):
    r = []; n = 0
    for th in range(2):
        for sub in range(2):
            g = ACC + 64*c + th*16 + 8*sub
            u = g + 32
            t = 160 + 8*(n & 1)
            o = 176 + 4*(n % 4); n += 1
            if pk:
                pr = lambda x, k: f"v[{x+k}:{x+k+1}]"
                for k in range(0, 8, 2): r.append((f"v_pk_mul_f32 {pr(t,k)}, {pr(g,k)}, {pr(g,k)}", 4))
                for k in range(0, 8, 2): r.append((f"v_pk_fma_f32 {pr(t,k)}, {pr(t,k)}, v[{VT+8}:{VT+9}], v[{VT+10}:{VT+11}]", 4))
                for k in range(0, 8, 2): r.append((f"v_pk_mul_f32 {pr(t,k)}, {pr(t,k)}, {pr(g,k)}", 4))
                for j in range(8): r.append((f"v_exp_f32 v{t+j}, v{t+j}", 8))
                for k in range(0, 8, 2): r.append((f"v_pk_mul_f32 {pr(g,k)}, {pr(g,k)}, {pr(u,k)}", 4))
                for k in range(0, 8, 2): r.append((f"v_pk_add_f32 {pr(t,k)}, {pr(t,k)}, 1.0 op_sel_hi:[1,0]", 4))
                for j in range(8): r.append((f"v_rcp_f32 v{t+j}, v{t+j}", 8))
                r.append(("s_nop 0", 4))
                for k in range(0, 8, 2): r.append((f"v_pk_mul_f32 {pr(g,k)}, {pr(g,k)}, {pr(t,k)}", 4))
            else:
                for j in range(8): r.append((f"v_mul_f32 v{t+j}, v{g+j}, v{g+j}", 4))
                for j in range(8): r.append((f"v_fma_f32 v{t+j}, v{t+j}, v{VT+8}, v{VT+10}", 5))
                for j in range(8): r.append((f"v_mul_f32 v{t+j}, v{t+j}, v{g+j}", 4))
                for j in range(8):
                    r.append((f"v_exp_f32 v{t+j}, v{t+j}", 8))
                    r.append((f"v_mul_f32 v{g+j}, v{g+j}, v{u+j}", 4))
                for j in range(8): r.append((f"v_add_f32 v{t+j}, 1.0, v{t+j}", 4))
                for j in range(8): r.append((f"v_rcp_f32 v{t+j}, v{t+j}", 8))
                r.append(("s_nop 0", 4))
                for j in range(8): r.append((f"v_mul_f32 v{g+j}, v{g+j}, v{t+j}", 4))
            for d in range(4): r.append((f"v_cvt_pk_bf16_f32 v{o+d}, v{g+2*d}, v{g+2*d+1}", 5))
            r.append((f"buffer_store_dwordx4 {vr(o,4)}, v{VLIN}, s[{SWS}:{SWS+3}], s{44+c} offen offset:{sub*2048 + th*1024}{sc()}", 12))
    return r

SE = 56
S_EOFF = 60
VE = 160
def e_slot(u):
    sl = u % 6
    if sl < 2: return (61, 131072 + sl*4096)
    return (62, (sl-2)*4096)
VER = 225
def e_read(u, dst):
    sl = u % 6
    rb, off = (VER, sl*4096) if sl < 2 else (VER+2, (sl-2)*4096)
    return [f"ds_read_b64_tr_b16 {dst((kk*2+i)*4+2*h)}, v{rb+i} offset:{off + kk*2048 + h*512}" for kk in range(2) for i in range(2) for h in range(2)]
def e_read_a(u): return e_read(u, lambda o: ar(16*u+o, 2))
def e_addr(a):
    a(f"""
    s_add_u32 s30, s61, 131072
    v_add_u32 v{VER}, s30, v{VT2}
    v_add_u32 v{VER+1}, s30, v{VT2+1}
    v_add_u32 v{VER+2}, s62, v{VT2}
    v_add_u32 v{VER+3}, s62, v{VT2+1}
    """)
def e_setup(a):
    a(f"""
    s_lshl_b32 s61, s{S_W}, 13
    s_lshl_b32 s62, s{S_W}, 14
    s_mul_i32 s{S_EOFF}, s{S_W}, {28*16*1024}
    s_lshr_b32 s63, s{S_TB}, 2
    s_lshl_b32 s63, s63, 7
    s_add_u32 s{S_EOFF}, s{S_EOFF}, s63
    """)
    srd(a, SE, PWD, 1792*1024)
def e_dma(u):
    sb, off = e_slot(u)
    pre = [f"s_add_u32 m0, s{sb}, {off}"]
    d = [f"buffer_load_dwordx4 v{VWO+j}, s[{SE}:{SE+3}], s{S_EOFF} offen offset:{j*1024} lds" for j in range(4)]
    return pre, d, [f"s_add_u32 s{S_EOFF}, s{S_EOFF}, {32*1024}"]
def e_dma_now(a, u):
    pre, d, post = e_dma(u)
    for x in pre + ["s_nop 0"] + d + post: a(x)

def phaseD(a):
    e_addr(a)
    a(f"""
    s_cmp_ge_u32 s{S_TB}, 28
    s_cbranch_scc1 KD_SKIP
    KD_WL:
    s_cmp_ge_u32 s{S_DM0}, 131072
    s_cbranch_scc1 KD_WD
    """)
    for _ in range(8):
        for x in d_wdma(): a(x)
    a(f"""
    s_branch KD_WL
    KD_WD:
    s_lshl_b32 s40, s{S_TG}, 2
    s_add_u32 s40, s40, s{S_W}
    s_lshl_b32 s41, s40, 16
    s_add_u32 s41, s41, {hex(WS_H2)}
    s_lshl_b32 s42, s40, 10
    s_add_u32 s42, s42, {hex(FH)}
    s_mul_i32 s44, s40, {112*2048}
    s_lshl_b32 s45, s{S_FB}, 13
    s_add_u32 s44, s44, s45
    s_add_u32 s44, s44, {hex(WS_G)}
    s_add_u32 s45, s44, 4096
    v_mov_b32 v{VT+8}, {f32(-2*math.log2(math.e)*math.sqrt(2/math.pi)*0.044715)}
    v_mov_b32 v{VT+9}, v{VT+8}
    v_mov_b32 v{VT+10}, {f32(-2*math.log2(math.e)*math.sqrt(2/math.pi))}
    v_mov_b32 v{VT+11}, v{VT+10}
    v_add_u32 v{VTR+2}, 65536, v{VT2}
    v_add_u32 v{VTR+3}, 65536, v{VT2+1}
    """)
    order = [(c, uu) for uu in range(8) for c in range(2)] + [(0, uu) for uu in range(8, 16)] + [(1, uu) for uu in range(8, 16)]
    def bload(u):
        r = [f"buffer_load_dwordx4 {ar((4*u+q)*4,4)}, v{VLIN}, s[{SWS}:{SWS+3}], s41 offen offset:{q*1024} sc1" for q in range(4)]
        return r + ["s_add_u32 s41, s41, 4096"]
    def ar_(pos):
        buf = pos & 1; c, uu = order[pos]
        base = (VT2 + c) if uu < 8 else (VTR + 2 + c)
        return [f"ds_read_b64_tr_b16 {vr(FA+16*buf+(kk*2+i)*4+2*h,2)}, v{base} offset:{(uu%8)*8192 + kk*4096 + i*2048 + h*512}" for kk in range(2) for i in range(2) for h in range(2)]
    a("s_waitcnt vmcnt(0)")
    a("s_barrier")
    for x in ar_(0): a(x)
    poll(a, "KD", 42, 8)
    stamp(a, 10)
    vq = VQ()
    NPRE = 4
    for u in range(NPRE):
        for x in bload(u): a(x)
        vq.issue(('B', u), 4)
    a(f"s_waitcnt vmcnt({vq.need(('B', 0))}) lgkmcnt(0)")
    g0 = gelu_stream(0, False)
    per = sum(c for _, c in g0) / 7.5
    nb = NPRE
    for pos in range(32):
        c, uu = order[pos]
        head = []; mid = {}; nxt = ar_(pos+1) if pos + 1 < 32 else []
        if pos == 15: head = ["s_barrier"]
        if nb < 16 and pos not in (1, 3):
            b = bload(nb); vq.issue(('B', nb), 4); nb += 1
            mid[4] = b[0:2]; mid[5] = b[2:5]
        edma = {1:0, 3:1, 15:2, 16:3, 17:4, 18:5, 19:6, 20:7, 21:8, 22:9, 23:10, 24:11, 25:12, 26:13}
        erd = {16:0, 17:1, 20:2, 21:3, 22:4, 23:5, 24:6, 25:7}
        if pos in erd:
            head = head + [f"s_waitcnt vmcnt({vq.need(('E', erd[pos]))})"]
            nxt = nxt + e_read_a(erd[pos])
        if pos in edma:
            pre, d, post = e_dma(edma[pos])
            mid[3] = pre; mid[4] = d[0:2]; mid[5] = d[2:4] + post
            vq.issue(('E', edma[pos]), 4)
        if pos + 1 < 32 and not vq.landed(('B', order[pos+1][1])):
            mid[7] = [f"s_waitcnt vmcnt({vq.need(('B', order[pos+1][1]))})"]
        fill = []
        if pos >= 24:
            fill = take(g0, per*(0.5 if pos == 24 else 1)) if pos < 31 else list(g0)
            if pos == 24: fill = [("s_nop 7", 32), ("s_nop 3", 16)] + fill
        rb_unit(a, pos, nxt, head, mid, fill, ACC + 64*c, uu == 0, uu=uu)
    stamp(a, 11)
    e_pre(a)
    for x, _ in gelu_stream(1, True): a(x)
    a(f"""
    s_lshl_b32 s46, s{S_TG}, 12
    s_lshl_b32 s47, s{S_FB}, 7
    s_add_u32 s46, s46, s47
    s_add_u32 s46, s46, {hex(FG)}
    """)
    publish(a, "KD", 46)
    a("s_branch KD_DONE")
    a("KD_SKIP:")
    a(f"""
    s_cmp_lg_u32 s2, 255
    s_cbranch_scc1 KD_NOEP
    s_lshl_b32 s44, s{S_W}, 9
    s_add_u32 s44, s44, {hex(FA_)}
    """)
    poll(a, "KEP", 44, 64, stride=8)
    a("s_barrier")
    a(f"s_mov_b32 s44, {hex(WS_EPOCH)}")
    flag_store(a, "KEP", 44)
    a("KD_NOEP:")
    for u in range(6): e_dma_now(a, u)
    a("s_waitcnt vmcnt(0)")
    for u in range(6):
        for x in e_read_a(u): a(x)
    a("s_waitcnt lgkmcnt(0)")
    for u in range(6, 12): e_dma_now(a, u)
    a("s_waitcnt vmcnt(16)")
    for u in range(6, 8):
        for x in e_read_a(u): a(x)
    a("s_waitcnt lgkmcnt(0)")
    for u in range(12, 14): e_dma_now(a, u)
    e_pre(a)
    a("KD_DONE:")
    stamp(a, 12)

EGB, EX1 = 192, 208
def e_pre(a):
    srd(a, SX, POUT, 2048*1024)
    a(f"""
    s_lshl_b32 s40, s{S_G}, 2
    s_and_b32 s30, s{S_TB}, 3
    s_add_u32 s40, s40, s30               ; tb
    s_lshr_b32 s41, s{S_TB}, 2            ; nb
    s_mul_i32 s42, s40, {112*2048}
    s_mul_i32 s30, s{S_W}, {28*2048}
    s_add_u32 s42, s42, s30
    s_add_u32 s42, s42, {hex(WS_G)}
    s_lshl_b32 s43, s{S_G}, 12
    s_mul_i32 s30, s{S_W}, {7*128}
    s_add_u32 s43, s43, s30
    s_add_u32 s43, s43, {hex(FG)}
    v_bfe_u32 v{VT+2}, v{VLIN}, 4, 5
    v_lshlrev_b32 v{VT+2}, 10, v{VT+2}
    v_lshrrev_b32 v{VT+3}, 9, v{VLIN}
    v_lshl_add_u32 v{VT+2}, v{VT+3}, 4, v{VT+2}
    v_lshlrev_b32 v{VT+3}, 5, v{VT+3}
    s_lshr_b32 s30, s{S_W}, 1
    s_and_b32 s31, s{S_W}, 1
    s_lshl_b32 s32, s40, 16
    s_lshl_b32 s33, s31, 15
    s_add_u32 s32, s32, s33
    s_lshl_b32 s33, s41, 7
    s_add_u32 s32, s32, s33
    s_lshl_b32 s34, s30, 6
    s_add_u32 s32, s32, s34
    s_add_u32 s33, s33, s34
    s_lshl_b32 s33, s33, 1
    s_add_u32 s33, s33, {WS_MOD + 5*2048}
    s_add_u32 s34, s32, {hex(WS_X1)}
    buffer_load_dwordx4 {vr(EGB,4)}, v{VT+3}, s[{SWS}:{SWS+3}], s33 offen sc1
    buffer_load_dwordx4 {vr(EGB+4,4)}, v{VT+3}, s[{SWS}:{SWS+3}], s33 offen offset:16 sc1
    buffer_load_dwordx4 {vr(EGB+8,4)}, v{VT+3}, s[{SWS}:{SWS+3}], s33 offen offset:64 sc1
    buffer_load_dwordx4 {vr(EGB+12,4)}, v{VT+3}, s[{SWS}:{SWS+3}], s33 offen offset:80 sc1
    """)

def phaseE(a):
    poll(a, "KE", 43, 7)
    vq = VQ()
    stamp(a, 13)
    def breg(u, q):
        if u < 8: return ar(128 + 16*u + 4*q, 4)
        if u < 12: return vr(64 + 16*(u-8) + 4*q, 4)
        return vr(160 + 16*(u-12) + 4*q, 4)
    def areg(u, j):
        return ar(16*u + 4*j, 4) if u < 8 else vr(FA + 16*(u & 1) + 4*j, 4)
    def bl(u):
        r = [f"buffer_load_dwordx4 {breg(u,q)}, v{VLIN}, s[{SWS}:{SWS+3}], s42 offen offset:{q*1024} sc1" for q in range(4)] + ["s_add_u32 s42, s42, 4096"]
        vq.issue(('B', u, 0), 2); vq.issue(('B', u, 1), 2)
        return r
    NPRE = 6
    for u in range(NPRE):
        for x in bl(u): a(x)
    for u in (8, 9):
        for x in e_read(u, lambda o: vr(FA + 16*(u & 1) + o, 2)): a(x)
    for u in range(14):
        for kk in range(2):
            a(f"s_waitcnt vmcnt({vq.need(('B', u, kk))})" + (" lgkmcnt(0)" if u >= 8 and kk == 0 else ""))
            ex = []
            if kk == 0 and u + NPRE < 14: ex = bl(u + NPRE)
            if kk == 0 and u + NPRE == 14:
                ex = [f"buffer_load_dwordx4 {vr(EX1,4)}, v{VT+2}, s[{SWS}:{SWS+3}], s34 offen sc1",
                      f"buffer_load_dwordx4 {vr(EX1+4,4)}, v{VT+2}, s[{SWS}:{SWS+3}], s34 offen offset:32 sc1"]
                vq.issue(('X', 1), 2)
            n = 0
            for i in range(2):
                for th in range(2):
                    d = vr(ACC + (i*2+th)*16, 16)
                    a(mfma(d, areg(u, kk*2+i), breg(u, kk*2+th), "0" if (u == 0 and kk == 0) else d))
                    for x in (ex[n:n+1] if n < 3 else ex[n:]): a(x)
                    n += 1
        if 8 <= u < 12:
            for x in e_read(u+2, lambda o: vr(FA + 16*(u & 1) + o, 2)): a(x)
    stamp(a, 14)
    a(f"""
    v_add_u32 v{VT+4}, s62, v{VLIN}
    s_lshl_b32 s50, s{S_W}, 12
    v_add_u32 v{VT+5}, s50, v{VLIN}
    s_nop 7
    s_nop 1
    """)
    for q in range(16):
        a(f"ds_write_b128 v{VT+4}, {vr(ACC+4*q,4)} offset:{q*1024}")
    a("s_waitcnt lgkmcnt(0)")
    a("s_barrier")
    for w in range(4):
        for q in range(4):
            a(f"ds_read_b128 {vr(ACC+16*w+4*q,4)}, v{VT+5} offset:{w*16384 + q*1024}")
    a("s_waitcnt vmcnt(0)")
    for d in range(8):
        a(f"v_lshlrev_b32 v{104+2*d}, 16, v{EX1+d}")
        a(f"v_and_b32 v{105+2*d}, 0xffff0000, v{EX1+d}")
    a("s_waitcnt lgkmcnt(0)")
    for k in range(0, 16, 2):
        a(f"v_pk_add_f32 v[{k}:{k+1}], v[{k}:{k+1}], v[{16+k}:{17+k}]")
        a(f"v_pk_add_f32 v[{32+k}:{33+k}], v[{32+k}:{33+k}], v[{48+k}:{49+k}]")
    for k in range(0, 16, 2):
        a(f"v_pk_add_f32 v[{k}:{k+1}], v[{k}:{k+1}], v[{32+k}:{33+k}]")
    for k in range(0, 16, 2):
        a(f"v_pk_fma_f32 v[{k}:{k+1}], v[{k}:{k+1}], v[{EGB+k}:{EGB+1+k}], v[{104+k}:{105+k}]")
    for d in range(8):
        a(f"v_cvt_pk_bf16_f32 v{32+d}, v{2*d}, v{2*d+1}")
    a(f"""
    buffer_store_dwordx4 v[32:35], v{VT+2}, s[{SX}:{SX+3}], s32 offen
    buffer_store_dwordx4 v[36:39], v{VT+2}, s[{SX}:{SX+3}], s32 offen offset:32
    """)
    if STAMP: a("s_waitcnt vmcnt(0)")
    stamp(a, 15)

def finish(a, name, kidx):
    stamp_out(a)
    rt_end(a, kidx, SWS)
    a(f"{name}_END:")
    a("s_endpgm")

def gen():
    a = Asm(); setup(a, "KM", 256)
    phaseB(a); phaseC(a); phaseD(a); phaseE(a); finish(a, "KM", 0); slow_paths(a)
    a("CODE_END:")
    a("s_endpgm")
    return kernel_text(KNAME, a.text(), 512, 256)
```

```python
import sys, os
from common import *
from build import HEADER
import km
km.STAMP = bool(os.environ.get('STAMP'))
lst = os.environ.get('LIST')
s = HEADER
s += (f"; @launch kernel={km.KNAME} grid=(256,1,1) block=(256,1,1) lds={km.KM_LDS}\n" if lst else f"; @launch grid=(256,1,1) block=(256,1,1) lds={km.KM_LDS}\n")
s += """; Generated by a hand-written Python generator (no compiler output). One persistent launch, 256 workgroups x 4 waves:
"""
s += '.amdgcn_target "amdgcn-amd-amdhsa--gfx950"\n' + km.gen()
open(sys.argv[1], "w").write(s)
```

```python
from common import *
from gemm import *
import math
ACC = 0
S = [128, 144]
M = [160, 176]
P = [192, 200]
E = 208
L = [216, 217]
LT = [218, 219]
VLIN = 220
VTR = 221
VDMA = 225
VB = 229
VKV = 230
VT = 232
VWO = 248
VT2 = 252
VST = 255
FA = 128
AQ, AK, AV, AA, AB = 0, 64, 128, 192, 224
HB, KVD, WR = 0, 65536, 98304
KM_LDS = 163840
SW, SWS, SX = 8, 12, 16
S_W, S_WOFF, S_WSTEP, S_RING, S_CNT, S_RSLOT, S_DSLOT, S_DOFF, S_RET = 20, 21, 22, 23, 24, 25, 26, 27, 28
S_T0 = 30
S_AM0, S_AOFF = 34, 35
S_G, S_TB = 38, 39
S_AG, S_ATB = 3, 37
PX, PK, PV_, PWQ, PWO, PBX, PWG, PWU, PWD, PC, PWM, POUT, PDBG, PWS = 64, 66, 68, 70, 72, 74, 76, 78, 80, 82, 84, 86, 88, 90
TAG = 4
KNAME = 'adaLN_cond__sliding_block_cached__geglu_ffn__prompt_kernel'
QS = math.log2(math.e) / math.sqrt(128.0)
WS_EPOCH = WS_FLAG + 0x1C000
FP, FH, FG, FA_, MODG = WS_FLAG, WS_FLAG + 0x8000, WS_FLAG + 0x10000, WS_FLAG + 0x18000, WS_FLAG + 0x1A000
import os
BIAS = float(os.environ.get('BIAS', '64'))
THR = 2.0**float(os.environ.get('THR', '64'))
FUSED = True
STAMP = False
SPIN_MAX = 1 << 15
import os
SLEEP0 = int(os.environ.get('SLEEP0', '8'))
SLEEP1 = int(os.environ.get('SLEEP1', '0'))
SPF = 48
S_PFO, S_PFS, S_PF2 = 52, 53, 54
VPF = 243

def sc(): return " sc1" if FUSED else ""
def stamp(a, k):
    if STAMP:
        a("s_memrealtime s[94:95]" if os.environ.get('RTS') else "s_memtime s[94:95]")
        a("s_waitcnt lgkmcnt(0)")
        a(f"v_writelane_b32 v{VST}, s94, {k}")
def stamp_out(a):
    if STAMP:
        a(f"""
        s_lshl_b32 s44, s2, 9
        s_lshl_b32 s45, s{S_W}, 7
        s_add_u32 s44, s44, s45
        s_add_u32 s44, s44, 0x3000000
        v_lshrrev_b32 v0, 2, v{VLIN}
        s_mov_b64 exec, 0xffffffff
        buffer_store_dword v{VST}, v0, s[{SWS}:{SWS+3}], s44 offen
        s_mov_b64 exec, -1
        """)

def setup(a, name, nwg):
    a(f"""
    s_cmp_ge_u32 s2, {nwg}
    s_cbranch_scc1 {name}_END
    {"s_memrealtime s[96:97]" if RT else ""}
    {("s_memrealtime s[92:93]" if os.environ.get('RTS') else "s_memtime s[92:93]") if STAMP else ""}
    s_load_dwordx16 s[64:79], s[0:1], 0
    s_load_dwordx8 s[80:87], s[0:1], 64
    s_load_dwordx4 s[88:91], s[0:1], {KARG['dbg']}
    v_and_b32 v{VT}, 63, v0
    v_lshrrev_b32 v{VT+1}, 6, v0
    v_lshlrev_b32 v{VLIN}, 4, v{VT}
    v_readfirstlane_b32 s{S_W}, v{VT+1}
    s_and_b32 s{S_G}, s2, 7
    s_lshr_b32 s{S_TB}, s2, 3
    s_and_b32 s{S_AG}, s2, 6
    s_and_b32 s44, s{S_TB}, 1
    s_add_u32 s{S_AG}, s{S_AG}, s44
    s_and_b32 s{S_ATB}, s2, 1
    s_lshl_b32 s{S_ATB}, s{S_ATB}, 4
    s_lshr_b32 s44, s2, 4
    s_add_u32 s{S_ATB}, s{S_ATB}, s44
    v_lshrrev_b32 v{VT+2}, 5, v{VT}
    v_lshlrev_b32 v{VT+2}, 10, v{VT+2}
    v_bfe_u32 v{VT+3}, v{VT}, 2, 2
    v_lshl_add_u32 v{VT+2}, v{VT+3}, 7, v{VT+2}
    v_and_b32 v{VT+4}, 16, v{VT}
    v_lshl_add_u32 v{VT+2}, v{VT+4}, 1, v{VT+2}
    v_and_b32 v{VT+4}, 1, v{VT}
    v_lshl_add_u32 v{VT+2}, v{VT+4}, 4, v{VT+2}
    v_and_b32 v{VT+4}, 2, v{VT}
    v_lshl_add_u32 v{VT+2}, v{VT+4}, 2, v{VT+2}
    v_lshrrev_b32 v{VT+3}, 1, v{VT+3}
    v_lshl_add_u32 v{VT2}, v{VT+3}, 6, v{VT+2}
    v_xor_b32 v{VT+3}, 1, v{VT+3}
    v_lshl_add_u32 v{VT2+1}, v{VT+3}, 6, v{VT+2}
    v_lshrrev_b32 v{VT+2}, 3, v{VT}
    v_and_b32 v{VT+3}, 7, v{VT}
    v_bfe_u32 v{VT+4}, v{VT}, 4, 1
    v_lshlrev_b32 v{VT+4}, 2, v{VT+4}
    v_xor_b32 v{VT+3}, v{VT+3}, v{VT+4}
    v_lshlrev_b32 v{VT+3}, 4, v{VT+3}
    v_lshl_add_u32 v{VWO}, v{VT+2}, 10, v{VT+3}
    """)
    for j in range(1, 4):
        a(f"v_add_u32 v{VWO+j}, {j*(8*1024-1024)}, v{VWO}")
    if STAMP: a(f"v_mov_b32 v{VST}, 0")

def setup2(a):
    a("s_waitcnt lgkmcnt(0)")
    a(f"s_load_dwordx2 s[{TAG}:{TAG+1}], s[{PWS}:{PWS+1}], {hex(WS_EPOCH)}")
    srd(a, SWS, PWS, WS_SIZE)

def poll(a, tag, soff, nflags, dma=False, stride=128):
    sh = {128: "v_lshlrev_b32 v%d, 3, v%d", 64: "v_lshlrev_b32 v%d, 2, v%d", 8: "v_lshrrev_b32 v%d, 1, v%d"}[stride] % (VT+13, VLIN)
    a(f"""
    {sh}
    v_min_u32 v{VT+13}, {stride*(nflags-1)}, v{VT+13}
    s_mov_b32 s47, {SPIN_MAX}
    {tag}_POLL:
    buffer_load_dwordx2 v[{VT+14}:{VT+15}], v{VT+13}, s[{SWS}:{SWS+3}], s{soff} offen sc1
    s_sub_u32 s47, s47, 1
    s_waitcnt vmcnt(0)
    v_cmp_ne_u64 vcc, s[{TAG}:{TAG+1}], v[{VT+14}:{VT+15}]
    s_cbranch_vccz {tag}_GO
    s_cmp_eq_u32 s47, 0
    s_cbranch_scc1 {tag}_GO
    """)
    if SLEEP1: a(f"s_sleep {SLEEP1}")
    if dma:
        a(f"""
        s_cmp_ge_u32 s{S_DM0}, 131072
        s_cbranch_scc1 {tag}_POLL
        """)
        for _ in range(8):
            for x in d_wdma(): a(x)
    a(f"""
    s_branch {tag}_POLL
    {tag}_GO:
    """)

def flag_store(a, tag, soff):
    a(f"""
    s_cmp_lg_u32 s{S_W}, 0
    s_cbranch_scc1 {tag}_PUB
    v_mov_b32 v{VT+13}, 0
    v_mov_b32 v{VT+14}, s{TAG}
    v_mov_b32 v{VT+15}, s{TAG+1}
    s_mov_b64 exec, 1
    buffer_store_dwordx2 v[{VT+14}:{VT+15}], v{VT+13}, s[{SWS}:{SWS+3}], s{soff} offen sc1
    s_mov_b64 exec, -1
    {tag}_PUB:
    """)
def publish(a, tag, soff):
    a("s_waitcnt vmcnt(0) lgkmcnt(0)")
    a("s_barrier")
    flag_store(a, tag, soff)

def gemm_reads(buf, slot, kofs):
    A = lambda i: AA + 16*buf + 4*i
    B = lambda th: AB + 8*buf + 4*th
    rb = lambda th: f"ds_read_b128 {ar(B(th),4)}, v{VB} offset:{kofs + th*1024}"
    ra = lambda i, h: f"ds_read_b64_tr_b16 {ar(A(i)+2*h,2)}, v{VTR+i} offset:{slot*4096 + h*1024}"
    return [rb(0), ra(0,0), ra(0,1), rb(1), ra(1,0), ra(1,1), ra(2,0), ra(2,1), ra(3,0), ra(3,1)]
def w_dma(slot):
    r = [f"s_add_u32 m0, s{S_RING}, {slot*4096}"]
    d = [f"buffer_load_dwordx4 v{VDMA+j}, s[{SW}:{SW+3}], s{S_WOFF} offen offset:{j*1024} lds" for j in range(4)]
    return r, d, [f"s_add_u32 s{S_WOFF}, s{S_WOFF}, s{S_WSTEP}"]
def aux_dma():
    pre = [f"s_mov_b32 m0, s{S_AM0}"]
    d = [f"buffer_load_dwordx4 v{VLIN}, s[{SWS}:{SWS+3}], s{S_AOFF} offen lds"]
    post = [f"s_add_u32 s{S_AM0}, s{S_AM0}, 4096", f"s_add_u32 s{S_AOFF}, s{S_AOFF}, 4096",
            f"s_cmp_eq_u32 s{S_AM0}, s{S_AM0+2}", f"s_cselect_b32 s{S_AOFF}, s{S_AM0+3}, s{S_AOFF}"]
    return pre, d, post
def kv_dma():
    pre = [f"s_mov_b32 m0, s{S_DSLOT}"]
    d = [f"buffer_load_dwordx4 v{VDMA+j}, s[{SW}:{SW+3}], s{S_DOFF} offen offset:{j*1024} sc1 lds" for j in range(4)]
    return pre, d

def exp_stream(h):
    e = lambda k: f"v{E + (k % 8)}"
    lt = f"v{LT[h]}"
    seq = []
    for k in range(16):
        seq.append((f"v_exp_f32 {e(k)}, v{S[h]+k}", 8))
        if k >= 2 and k % 2 == 0:
            j = k - 2
            if j == 0: seq.append((f"v_add_f32 {lt}, {e(0)}, {e(1)}", 4))
            else:
                seq.append((f"v_add_f32 {lt}, {lt}, {e(j)}", 4))
                seq.append((f"v_add_f32 {lt}, {lt}, {e(j+1)}", 4))
        if k >= 3 and k % 2 == 1:
            j = k - 3
            seq.append((f"v_cvt_pk_bf16_f32 v{P[h]+j//2}, {e(j)}, {e(j+1)}", 5))
    seq.append((f"v_add_f32 {lt}, {lt}, {e(14)}", 4))
    seq.append((f"v_add_f32 {lt}, {lt}, {e(15)}", 4))
    seq.append((f"v_cmp_lt_f32 vcc, s{S_T0}, {lt}", 4))
    seq.append((f"v_cvt_pk_bf16_f32 v{P[h]+7}, {e(14)}, {e(15)}", 5))
    return seq

def spread(gaps, fixed_cost, stream, g0, g1):
    total = sum(c for _, c in stream) + sum(fixed_cost[g0:g1+1])
    per = total / (g1 - g0 + 1)
    it = 0; acc = 0.0
    for g in range(g0, g1+1):
        acc += fixed_cost[g]
        target = per * (g - g0 + 1)
        while it < len(stream) and (g == g1 or acc + stream[it][1]/2 <= target):
            gaps[g].append(stream[it][0]); acc += stream[it][1]; it += 1

site_counter = [0]
sites = {0: [], 1: []}
def check_site(h):
    k = site_counter[0]; site_counter[0] += 1
    sites[h].append(k)
    return [f"s_cbranch_vccnz KA_TR{k}", f"KA_RET{k}:", f"v_add_f32 v{L[h]}, v{L[h]}, v{LT[h]}"]

def qk_mf(h, buf, czero=False):
    return [mfma(vr(S[h],16), ar(AK+32*buf+4*ks,4), ar(AQ+(ks*2+h)*4,4),
                 ("0" if czero else vr(M[h],16)) if ks == 0 else vr(S[h],16)) for ks in range(8)]
def pv_mf(h, buf, czero=False):
    r = []
    for kk in range(2):
        for dt in range(4):
            d = vr(ACC + (dt*2+h)*16, 16)
            r.append(mfma(d, ar(AV+32*buf+(kk*4+dt)*4,4), vr(P[h]+4*kk,4), "0" if (czero and kk == 0) else d))
    return r
def kvloc(t): return (VKV, t*16384) if t < 2 else (VLIN, ((t-2) & 3)*16384)
def k_reads(t): return [f"ds_read_b128 {ar(AK+32*(t&1)+4*j,4)}, v{kvloc(t)[0]} offset:{kvloc(t)[1]+j*1024}" for j in range(8)]
def v_reads(t): return [f"ds_read_b128 {ar(AV+32*(t&1)+4*j,4)}, v{kvloc(t)[0]} offset:{kvloc(t)[1]+8192+j*1024}" for j in range(8)]
def kv_grp(t):
    return ([f"s_add_u32 m0, s{S_DSLOT}, {((t-2) & 3)*16384}"],
            [f"buffer_load_dwordx4 v{VLIN}, s[{SWS}:{SWS+3}], s{S_DOFF} offen offset:{j*1024} sc1 lds" for j in range(4)],
            [f"s_add_u32 s{S_DOFF}, s{S_DOFF}, 16384"])
def wo_m0(sl): return (S_RING, sl*4096) if sl < 4 else (29, KVD + (sl-4)*4096)
def wo_grp(u, sl):
    off = (u % 16)*32768 + (u // 16)*128
    return ([f"s_add_u32 m0, s{wo_m0(sl)[0]}, {wo_m0(sl)[1]}", f"s_add_u32 s{S_WSTEP}, s{S_WOFF}, {off}"],
            [f"buffer_load_dwordx4 v{VWO+j}, s[{SW}:{SW+3}], s{S_WSTEP} offen offset:{j*1024} lds" for j in range(4)], [])

def init_stream(h):
    t = VT + 4 + 2*h
    r = [f"v_max3_f32 v{t}, v{S[h]}, v{S[h]+1}, v{S[h]+2}"]
    for k in range(3, 15, 2): r.append(f"v_max3_f32 v{t}, v{t}, v{S[h]+k}, v{S[h]+k+1}")
    r += [f"v_max_f32 v{t}, v{t}, v{S[h]+15}", f"v_mov_b32 v{t+1}, v{t}", "s_nop 1", f"v_permlane32_swap_b32 v{t}, v{t+1}", "s_nop 0",
          f"v_max_f32 v{t}, v{t}, v{t+1}", f"v_sub_f32 v{t}, {f32(-BIAS)}, v{t}"]
    r += [f"v_add_f32 v{S[h]+k}, v{S[h]+k}, v{t}" for k in range(16)]
    return [(x, 4) for x in r], [(f"v_mov_b32 v{M[h]+k}, v{t}", 4) for k in range(16)]

def cvtq_stream(th):
    r = []
    n = 0
    for i in range(4):
        for sub in range(2):
            base = ACC + (i*2+th)*16 + 8*sub
            t = E + 4*(n & 1); n += 1
            for d in range(4): r.append((f"v_cvt_pk_bf16_f32 v{t+d}, v{base+2*d}, v{base+2*d+1}", 5))
            for d in range(4): r.append((f"v_accvgpr_write_b32 a{AQ + ((2*i+sub)*2+th)*4 + d}, v{t+d}", 5))
    return r

def split_st1(st1):
    tot = sum(c for _, c in st1); accu = 0; cut = 0
    while accu + st1[cut][1] <= tot*0.52: accu += st1[cut][1]; cut += 1
    return st1[:cut], st1[cut:]

CPF = f"global_load_dwordx2 v[{VT+14}:{VT+15}], v254, s[6:7]"
XCPF = bool(os.environ.get('XCPF'))
def period(a, p, vq, pend1, extra1=(), groups=(), pf=None):
    par = p & 1
    mf = qk_mf(0, par) + pv_mf(1, par ^ 1, czero=(p == 1)) + qk_mf(1, par) + pv_mf(0, par)
    gaps = [[] for _ in range(32)]
    cost = [0]*32
    def put(g, instrs, c=None):
        gaps[g] += instrs
        cost[g] += (4*len(instrs) if c is None else c)
    if p < 15:
        put(0, [f"s_waitcnt vmcnt({vq.need(('KV', p+1))})", "s_barrier"], 20)
        kr = k_reads(p+1); vr_ = v_reads(p+1)
        put(7, kr[0:1]); put(8, kr[1:5]); put(9, kr[5:8])
        put(23, vr_[0:1]); put(24, vr_[1:5]); put(25, vr_[5:8])
        put(31, ["s_waitcnt lgkmcnt(0)"], 0)
    else:
        put(0, ["s_barrier"], 20)
        for g_ in (8, 24): put(g_, ["s_nop 5"], 24)
        for g_ in (9, 25): put(g_, ["s_nop 1"], 8)
    if pf:
        for k, x in enumerate(pf[0]): gaps[1 + k] = [x] + gaps[1 + k]
        put(8, [pf[1]], 8)
        vq.issue(('PF', p))
    pos = [(10, [12, 14, 16, 18]), (19, [20, 22, 27, 29])]
    for (tag, (pre, d, post)), (g0, gs) in zip(groups, pos):
        for k, x in enumerate(pre): gaps[g0 + k] = [x] + gaps[g0 + k]
        if len(pre) > 1 and g0 + 1 == gs[0]: pass
        for x, g in zip(d, gs): put(g, [x], 8)
        for x in post: gaps[gs[len(d)-1] + 1] = [x] + gaps[gs[len(d)-1] + 1]
        vq.issue(tag, len(d))
    if XCPF and p in (3, 9, 14):
        put(24, [CPF], 8); vq.issue(('CP', p))
    spread(gaps, cost, pend1, 0, 6)
    gaps[7] = check_site(1) + gaps[7]
    if extra1: spread(gaps, cost, list(extra1), 7, 9)
    spread(gaps, cost, exp_stream(0), 10 if extra1 else 9, 22)
    gaps[23] = check_site(0) + gaps[23]
    h1, h2 = split_st1(exp_stream(1))
    spread(gaps, cost, h1, 25, 31)
    emit(a, mf, gaps)
    return h2

def norm_stream(h, pk):
    r = []
    n = 0
    for dt in range(4):
        base = ACC + (dt*2+h)*16
        for sub in range(2):
            b = base + 8*sub
            t = VT + 4*(n & 1); n += 1
            if pk:
                for k in range(0, 8, 2): r.append((f"v_pk_mul_f32 v[{b+k}:{b+k+1}], v[{b+k}:{b+k+1}], v[{LT[0]}:{LT[1]}] op_sel:[0,{h}] op_sel_hi:[1,{h}]", 4))
            else:
                for k in range(8): r.append((f"v_mul_f32 v{b+k}, v{b+k}, v{LT[h]}", 4))
            for d in range(4): r.append((f"v_cvt_pk_bf16_f32 v{t+d}, v{b+2*d}, v{b+2*d+1}", 5))
            r.append((f"ds_write_b128 v{VT+8}, {vr(t,4)} offset:{HB + (2*dt+sub)*2048 + h*1024}", 20))
    return r
def linv(h):
    return [f"v_mov_b32 v{VT+9}, v{L[h]}", "s_nop 1", f"v_permlane32_swap_b32 v{L[h]}, v{VT+9}", "s_nop 0",
            f"v_add_f32 v{L[h]}, v{L[h]}, v{VT+9}", f"v_rcp_f32 v{LT[h]}, v{L[h]}", "s_nop 0"]

def rb_unit(a, u, areads_next, head, mid, fill, acc_base, first, uu=None):
    buf = u & 1; ku = (u % 16 if uu is None else uu) * 2
    mf = []
    for kk in range(2):
        for i in range(2):
            for th in range(2):
                d = vr(acc_base + (i*2+th)*16, 16)
                mf.append(mfma(d, vr(FA + 16*buf + (kk*2+i)*4, 4), ar(((ku+kk)*2+th)*4, 4), "0" if (first and kk == 0) else d))
    gaps = [[] for _ in range(8)]; cost = [0]*8
    gaps[0] += head
    n = len(areads_next); per = -(-n // 4) if n else 0
    for g in range(4):
        x = areads_next[g*per:(g+1)*per]; gaps[g] += x; cost[g] += 4*len(x)
    for g, x in mid.items():
        gaps[g] += x; cost[g] += 6*len(x)
    if n: gaps[7] = ["s_waitcnt lgkmcnt(0)"] + gaps[7]
    if fill: spread(gaps, cost, fill, 0, 7)
    emit(a, mf, gaps)

def take(stream, frac_cost):
    out = []; c = 0
    while stream and c + stream[0][1]/2 <= frac_cost:
        x = stream.pop(0); out.append(x); c += x[1]
    return out


def silu_pack(a, src, n, t0, t1, dst):
    for i in range(n):
        a(f"v_lshlrev_b32 v{t0+2*i}, 16, v{src+i}")
        a(f"v_and_b32 v{t0+2*i+1}, 0xffff0000, v{src+i}")
    for i in range(2*n): a(f"v_mul_f32 v{t1+i}, {f32(-math.log2(math.e))}, v{t0+i}")
    for i in range(2*n): a(f"v_exp_f32 v{t1+i}, v{t1+i}")
    a("s_nop 0")
    for i in range(2*n): a(f"v_add_f32 v{t1+i}, 1.0, v{t1+i}")
    for i in range(2*n): a(f"v_rcp_f32 v{t1+i}, v{t1+i}")
    a("s_nop 0")
    for i in range(2*n): a(f"v_mul_f32 v{t0+i}, v{t0+i}, v{t1+i}")
    for i in range(n): a(f"v_cvt_pk_bf16_f32 v{dst+i}, v{t0+2*i}, v{t0+2*i+1}")

PRE = [14, 24]
RING = [k for k in range(32) if k not in PRE]
STG = [24576, 24576+4096]
VTK = [128, 129, 130, 131]
XP = 128
VBQ = 192
VHW = 196
VMA = 197
VSTAT = 198
VTSL = [232, 233, 234, 235]
VFL = 202
MB = [208, 236]
MT = 216
SCR = WR + 3*4096
MSC = HB + 7*8192
VTS2 = 246

def wq_dma(k, m0):
    pre = [f"s_add_u32 m0, s{m0[0]}, {m0[1]}", f"s_add_u32 s{S_WSTEP}, s{S_WOFF}, {k*16*8192}", f"s_and_b32 s{S_WSTEP}, s{S_WSTEP}, 0x3fffff"]
    d = [f"buffer_load_dwordx4 v{VDMA+j}, s[{SW}:{SW+3}], s{S_WSTEP} offen offset:{j*1024} lds" for j in range(4)]
    return pre, d

def x_loads(a):
    for rg in range(2):
        for i in range(8):
            a(f"buffer_load_dwordx4 {vr(XP+(rg*8+i)*4,4)}, v{208+i}, s[{SX}:{SX+3}], s{40+rg} offen")

def front(a):
    a(f"""
    v_lshrrev_b32 v{VT+2}, 4, v{VT}
    v_and_b32 v{VT+3}, 15, v{VT}
    v_lshlrev_b32 v{VT+4}, 2, v{VT+2}
    v_xor_b32 v{VT+3}, v{VT+3}, v{VT+4}
    v_lshlrev_b32 v{VT+3}, 4, v{VT+3}
    v_lshl_add_u32 v{VDMA}, v{VT+2}, 13, v{VT+3}
    """)
    for j in range(1, 4):
        a(f"v_add_u32 v{VDMA+j}, {j*(4*8192-1024)}, v{VDMA}")
    a(f"""
    s_movk_i32 s60, 0x3ff
    v_lshrrev_b32 v{VT+6}, 3, v{VT}             ; r
    v_and_b32 v{VT+7}, 7, v{VT}                 ; ch
    v_lshlrev_b32 v{VT+5}, 10, v{VT+6}
    {'s_bfe_u32 s43, s2, 0x30004' if os.environ.get('ROT') else 's_mov_b32 s43, 0'}
    s_lshl_b32 s44, s43, 7
    v_lshl_add_u32 v{VT+4}, v{VT+7}, 4, s44
    """)
    for i in range(8):
        a(f"v_add_u32 v{VT+3}, {i*128}, v{VT+4}")
        a(f"v_and_or_b32 v{208+i}, v{VT+3}, s60, v{VT+5}")
    a(f"""
    s_lshl_b32 s40, s{S_ATB}, 16
    s_lshl_b32 s41, s{S_W}, 14
    s_add_u32 s40, s40, s41
    s_add_u32 s41, s40, 8192
    s_lshl_b32 s{S_RING}, s{S_W}, 14
    s_add_u32 s{S_RING}, s{S_RING}, {WR}
    s_lshl_b32 s29, s{S_W}, 13
    s_lshl_b32 s44, s{S_AG}, 10
    s_lshl_b32 s45, s{S_W}, 8
    s_add_u32 s{S_WOFF}, s44, s45
    s_lshl_b32 s44, s43, 19
    s_add_u32 s{S_WOFF}, s{S_WOFF}, s44
    s_mov_b32 s62, 0x05040100
    s_mov_b32 s63, 0x07060302
    s_getpc_b64 s[6:7]
    KF_PC:
    s_sub_u32 s6, s6, KF_PC-{KNAME}
    s_subb_u32 s7, s7, 0
    v_lshlrev_b32 v254, 3, v0
    s_lshl_b32 s44, s{S_TB}, 11
    v_add_u32 v254, s44, v254
    v_min_u32 v254, CODE_END-{KNAME}-8, v254
    global_load_dwordx2 a[240:241], v254, s[6:7]
    s_cmp_ge_u32 s2, 192
    s_cbranch_scc1 KF_KV
    s_lshr_b32 s44, s{S_TB}, 2
    s_lshl_b32 s44, s44, 5
    s_lshl_b32 s45, s{S_G}, 2
    s_add_u32 s44, s44, s45
    s_and_b32 s45, s{S_TB}, 3
    s_add_u32 s44, s44, s45
    s_lshl_b32 s42, s44, 5
    s_mul_i32 s45, s{S_W}, {128*6144}
    s_add_u32 s30, s42, s45
    s_add_u32 s31, s30, 6144
    s_add_u32 s32, s30, {64*6144}
    s_add_u32 s33, s30, {65*6144}
    v_lshrrev_b32 v0, 1, v{VT}                  ; rr
    v_mul_u32_u24 v1, {2*6144}, v0
    v_and_b32 v2, 1, v{VT}
    v_lshl_add_u32 v1, v2, 4, v1
    v_lshlrev_b32 v0, 2, v0
    s_lshl_b32 s34, s{S_W}, 8
    """)
    setup2(a)
    srd(a, 48, PWM, 512*6144)
    srd(a, 52, PC, 1024)
    a(f"""
    buffer_load_dword v4, v0, s[52:55], s34 offen
    buffer_load_dword v5, v0, s[52:55], s34 offen offset:128
    """)
    for q in range(4):
        a(f"buffer_load_dwordx4 {vr(8+4*q,4)}, v1, s[48:51], s{30+q} offen")
    srd(a, SX, PX, 2048*1024)
    a(f"s_cmp_lt_u32 s2, 64")
    a("s_cbranch_scc1 KF_W0")
    x_loads(a)
    a("s_branch KF_W1")
    a("KF_W0:")
    a("s_waitcnt vmcnt(0)")
    a("KF_W1:")
    stamp(a, 0)
    if STAMP: a(f"v_writelane_b32 v{VST}, s92, 27")
    a("s_waitcnt vmcnt(20)")
    silu_pack(a, 4, 2, 24, 28, 32)
    for st in range(2):
        a(f"s_waitcnt vmcnt({18-2*st})")
        r0 = 8 + 8*st; r1 = r0 + 4
        for d in range(4):
            a(f"v_perm_b32 v{24+2*d}, v{r1+d}, v{r0+d}, s62")
            a(f"v_perm_b32 v{25+2*d}, v{r1+d}, v{r0+d}, s63")
        for j in range(8):
            a(f"v_dot2_f32_bf16 v{40+j}, v{24+j}, v{32+st}, {'0' if st == 0 else f'v{40+j}'}")
    a("s_nop 2")
    for j in range(4): a(f"v_permlane32_swap_b32 v{40+j}, v{44+j}")
    a("s_nop 0")
    for j in range(4): a(f"v_add_f32 v{40+j}, v{40+j}, v{44+j}")
    a("s_nop 1")
    for j in range(2): a(f"v_permlane16_swap_b32 v{40+j}, v{42+j}")
    a("s_nop 0")
    for j in range(2): a(f"v_add_f32 v{40+j}, v{40+j}, v{42+j}")
    for r in (8, 4, 2):
        a("s_nop 1")
        for j in range(2): a(f"v_add_f32_dpp v{40+j}, v{40+j}, v{40+j} row_ror:{r} row_mask:0xf bank_mask:0xf")
    a(f"""
    v_lshlrev_b32 v34, 5, v2
    v_lshrrev_b32 v35, 5, v{VT}
    v_lshl_add_u32 v34, v35, 4, v34
    v_bfe_u32 v35, v{VT}, 4, 1
    v_lshl_add_u32 v34, v35, 3, v34
    s_lshl_b32 s45, s{S_W}, 6
    s_add_u32 s45, s45, {SCR}
    v_add_u32 v34, s45, v34
    ds_write_b64 v34, v[40:41]
    v_and_b32 v36, 15, v{VT}
    v_lshlrev_b32 v36, 2, v36
    v_add_u32 v37, {SCR}, v36
    s_waitcnt lgkmcnt(0)
    s_barrier
    s_cmp_lg_u32 s{S_W}, 0
    s_cbranch_scc1 KF_X1
    ds_read_b32 v40, v37
    ds_read_b32 v41, v37 offset:64
    ds_read_b32 v42, v37 offset:128
    ds_read_b32 v43, v37 offset:192
    s_lshl_b32 s42, s42, 1
    s_waitcnt lgkmcnt(0)
    v_add_f32 v40, v40, v41
    v_add_f32 v42, v42, v43
    v_add_f32 v40, v40, v42
    v_cvt_pk_bf16_f32 v40, v40, v40
    v_and_b32 v40, 0xffff0000, v40
    s_mov_b64 exec, 0xffff
    s_cmp_lt_u32 s2, 64
    s_cbranch_scc1 KF_CRIT
    buffer_store_dword v40, v36, s[{SWS}:{SWS+3}], s42 offen sc1
    s_mov_b64 exec, -1
    s_branch KF_JOIN
    KF_CRIT:
    s_add_u32 s45, s{TAG}, 1
    v_mov_b32 v41, s45
    v_lshlrev_b32 v36, 1, v36
    s_lshl_b32 s42, s42, 1
    s_add_u32 s42, s42, {hex(MODG)}
    buffer_store_dwordx2 v[40:41], v36, s[{SWS}:{SWS+3}], s42 offen sc1
    s_mov_b64 exec, -1
    KF_X1:
    s_cmp_ge_u32 s2, 64
    s_cbranch_scc1 KF_JOIN
    """)
    x_loads(a)
    a(f"""
    s_branch KF_JOIN
    KF_KV:
    s_sub_u32 s44, s{S_TB}, 24
    s_lshl_b32 s44, s44, 1
    s_lshr_b32 s45, s{S_W}, 1
    s_add_u32 s44, s44, s45                     ; tile
    s_and_b32 s45, s{S_W}, 1
    s_lshl_b32 s30, s{S_G}, 19
    s_lshl_b32 s31, s44, 13
    s_add_u32 s30, s30, s31
    s_add_u32 s30, s30, {1536*256}
    s_lshl_b32 s31, s45, 12
    s_add_u32 s31, s31, s30
    s_lshl_b32 s32, s45, 7
    s_add_u32 s30, s30, s32                     ; K source: + 4(w&1)*32
    s_lshl_b32 s32, s{S_G}, 18
    s_lshl_b32 s33, s44, 14
    s_add_u32 s32, s32, s33
    s_lshl_b32 s33, s45, 12
    s_add_u32 s32, s32, s33
    s_add_u32 s32, s32, {hex(WS_KV)}
    s_add_u32 s33, s32, 8192
    v_and_b32 v4, 31, v{VT}
    v_lshrrev_b32 v5, 5, v{VT}
    v_lshlrev_b32 v6, 8, v4
    v_lshl_add_u32 v6, v5, 4, v6
    v_and_b32 v0, 0x13, v4
    v_and_b32 v1, 4, v4
    v_lshl_or_b32 v0, v1, 1, v0
    v_and_b32 v1, 8, v4
    v_lshrrev_b32 v1, 1, v1
    v_or_b32 v0, v0, v1
    v_lshlrev_b32 v0, 1, v0
    v_lshl_add_u32 v0, v5, 10, v0
    """)
    setup2(a)
    srd(a, 48, PK, 8*2048*256)
    srd(a, 52, PV_, 8*2048*256)
    srd(a, SX, PX, 2048*1024)
    stamp(a, 0)
    if STAMP: a(f"v_writelane_b32 v{VST}, s92, 27")
    x_loads(a)
    for q in range(4):
        a(f"buffer_load_dwordx4 {vr(8+4*q,4)}, v6, s[48:51], s30 offen offset:{q*32}")
    for dt in range(4):
        for j in range(8):
            key = (j & 3) + 8*(j >> 2)
            a(f"buffer_load_ushort v{32+8*dt+j}, v0, s[52:55], s31 offen offset:{key*256 + dt*64}")
    a("s_waitcnt vmcnt(32)")
    for q in range(4):
        a(f"buffer_store_dwordx4 {vr(8+4*q,4)}, v{VLIN}, s[{SWS}:{SWS+3}], s32 offen offset:{q*1024} sc1")
    a("s_waitcnt vmcnt(4)")
    for dt in range(4):
        for d in range(4):
            a(f"v_lshl_or_b32 v{64+4*dt+d}, v{33+8*dt+2*d}, 16, v{32+8*dt+2*d}")
        a(f"buffer_store_dwordx4 {vr(64+4*dt,4)}, v{VLIN}, s[{SWS}:{SWS+3}], s33 offen offset:{dt*1024} sc1")
    a("KF_JOIN:")
    a("s_waitcnt lgkmcnt(0)")
    a(f"s_add_u32 s{TAG}, s{TAG}, 1")
    a(f"s_add_u32 s{TAG+1}, s{TAG+1}, 1")
    stamp(a, 28)
    srd(a, SW, PWQ, 512*4096*2)
    units = [wq_dma(RING[q], (S_RING, q*4096)) for q in range(4)]
    def unit():
        pre, d = units.pop(0)
        for x in pre + d: a(x)
    if not os.environ.get('NOTOUCH'):
        a(f"""
        s_lshr_b32 s44, s2, 4
        s_lshl_b32 s44, s44, 13
        s_lshl_b32 s45, s{S_AG}, 10
        s_add_u32 s44, s44, s45
        s_lshl_b32 s45, s{S_W}, 8
        s_add_u32 s44, s44, s45
        v_lshrrev_b32 v{VT+2}, 1, v{VT}
        v_lshlrev_b32 v{VT+2}, 17, v{VT+2}
        v_and_b32 v{VT+3}, 1, v{VT}
        v_lshl_add_u32 v{VT+2}, v{VT+3}, 7, v{VT+2}
        """)
    unit(); unit()
    if not os.environ.get('NOTOUCH'):
        a(f"buffer_load_dword a242, v{VT+2}, s[{SW}:{SW+3}], s44 offen")
    a(f"""
    v_lshrrev_b32 v{VT+2}, 5, v{VT}
    v_lshlrev_b32 v{VT+2}, 11, v{VT+2}
    v_bfe_u32 v{VT+3}, v{VT}, 2, 2
    v_lshl_add_u32 v{VT+2}, v{VT+3}, 8, v{VT+2}
    v_and_b32 v{VT+4}, 16, v{VT}
    v_lshl_add_u32 v{VT+2}, v{VT+4}, 1, v{VT+2}
    v_and_b32 v{VT+4}, 1, v{VT}
    v_lshl_add_u32 v{VT+2}, v{VT+4}, 4, v{VT+2}
    v_and_b32 v{VT+4}, 2, v{VT}
    v_lshl_add_u32 v{VT+2}, v{VT+4}, 2, v{VT+2}
    """)
    for i in range(4):
        a(f"v_xor_b32 v{VT+4}, {i}, v{VT+3}")
        a(f"v_lshl_add_u32 v{VT+4}, v{VT+4}, 6, v{VT+2}")
        a(f"v_add_u32 v{VTR+i}, s{S_RING}, v{VT+4}")
    a(f"v_lshrrev_b32 v{VT+2}, 5, v{VT}")
    for m in range(4):
        a(f"v_or_b32 v{VT+3}, {2*m}, v{VT+2}")
        a(f"v_xor_b32 v{VT+3}, v{VT+3}, v{VT}")
        a(f"v_lshlrev_b32 v{VBQ+m}, 4, v{VT+3}")
    a(f"""
    v_xor_b32 v{VT+2}, v{VT+6}, v{VT+7}
    v_lshlrev_b32 v{VT+2}, 4, v{VT+2}
    v_lshrrev_b32 v{VT+3}, 1, v{VT+7}
    v_lshl_add_u32 v{VT+2}, v{VT+3}, 11, v{VT+2}
    v_and_b32 v{VT+3}, 1, v{VT+7}
    v_lshl_add_u32 v{VT+2}, v{VT+3}, 9, v{VT+2}
    s_lshr_b32 s44, s{S_W}, 1
    s_lshl_b32 s44, s44, 10
    s_and_b32 s45, s{S_W}, 1
    s_lshl_b32 s45, s45, 8
    s_add_u32 s44, s44, s45
    v_add_u32 v{VHW}, s44, v{VT+2}
    s_mov_b32 s61, 0x3f803f80
    s_waitcnt vmcnt({8 if os.environ.get('NOTOUCH') else 9})
    """)
    stamp(a, 19)
    st = VSTAT
    for rg in range(2):
        for k in range(32):
            x = XP + rg*32 + k
            a(f"v_dot2_f32_bf16 v{st+2*rg}, v{x}, s61, {'0' if k == 0 else f'v{st+2*rg}'}")
            a(f"v_dot2_f32_bf16 v{st+2*rg+1}, v{x}, v{x}, {'0' if k == 0 else f'v{st+2*rg+1}'}")
            if k == 15: unit()
    stamp(a, 20)
    for mod in ("quad_perm:[1,0,3,2]", "quad_perm:[2,3,0,1]", "row_half_mirror"):
        for q in range(4):
            a(f"v_add_f32_dpp v{st+q}, v{st+q}, v{st+q} {mod} row_mask:0xf bank_mask:0xf")
    for rg in range(2):
        m_, q_ = st+2*rg, st+2*rg+1
        a(f"""
        v_mul_f32 v{VT+2}, {f32(1/512)}, v{m_}
        v_mul_f32 v{q_}, {f32(1/512)}, v{q_}
        v_fma_f32 v{q_}, -v{VT+2}, v{VT+2}, v{q_}
        v_max_f32 v{q_}, 0, v{q_}
        v_add_f32 v{q_}, {f32(1e-5)}, v{q_}
        v_rsq_f32 v{m_}, v{q_}
        s_nop 0
        v_mul_f32 v{q_}, v{VT+2}, v{m_}
        v_sub_f32 v{q_}, 0, v{q_}
        """)
    for rg in range(2):
        for d in range(4):
            a(f"v_lshlrev_b32 v{rg*8+2*d}, 16, v{XP+rg*32+d}")
            a(f"v_and_b32 v{rg*8+2*d+1}, 0xffff0000, v{XP+rg*32+d}")
        for k in range(0, 8, 2):
            y = rg*8 + k
            a(f"v_pk_fma_f32 v[{y}:{y+1}], v[{y}:{y+1}], v[{st+2*rg}:{st+2*rg+1}], v[{st+2*rg}:{st+2*rg+1}] op_sel:[0,0,1] op_sel_hi:[1,0,1]")
    assert not units
    a(f"s_lshl_b32 s44, s{S_AG}, 19")
    srd_dyn(a, SX, PWO, 44, 512*1024)
    a(f"""
    s_mov_b32 s{S_T0}, {f32(THR)}
    s_lshl_b32 s44, s{S_AG}, 18
    s_lshl_b32 s45, s{S_W}, 12
    s_add_u32 s{S_DOFF}, s44, s45
    s_add_u32 s{S_DOFF}, s{S_DOFF}, {hex(WS_KV)}
    s_mov_b32 s{S_DSLOT}, s45
    s_lshl_b32 s44, s{S_TB}, 1
    s_and_b32 s45, s{S_W}, 1
    s_add_u32 s44, s44, s45
    s_mul_i32 s44, s44, {8*3584}
    s_lshr_b32 s45, s{S_G}, 1
    s_mul_i32 s45, s45, 896
    s_add_u32 s{S_PF2}, s44, s45
    s_lshl_b32 s44, s{S_TB}, 2
    s_add_u32 s44, s44, s{S_W}
    s_mul_i32 s{S_PF2+1}, s44, {14*1024}
    v_add_u32 v{VKV}, {KVD}, v{VLIN}
    s_lshl_b32 s34, s{S_AG}, 3
    s_add_u32 s34, s34, {hex(FA_ + 192*8)}
    s_mov_b32 s35, {hex(FA_ + 64*8)}
    s_mov_b32 s36, {hex(FA_ + 128*8)}
    v_lshlrev_b32 v{VT+12}, 2, v{VLIN}
    v_min_u32 v{VT+12}, {7*64}, v{VT+12}
    s_lshl_b32 s42, s2, 3
    s_add_u32 s42, s42, {hex(FA_)}
    """)
    stamp(a, 22)
    stamp(a, 29)
    a(f"""
    v_lshrrev_b32 v{VT+13}, 2, v{VLIN}
    s_mov_b32 s47, {SPIN_MAX}
    s_lshl_b32 s44, s{S_W}, 10
    v_add_u32 v{VT+2}, s44, v{VLIN}
    s_lshl_b32 s45, s43, 8
    v_subrev_u32 v{VT+3}, s45, v{VT+2}
    v_and_b32 v{VT+3}, 0x7ff, v{VT+3}
    v_and_b32 v{VT+2}, 0x800, v{VT+2}
    v_or_b32 v{VT+2}, v{VT+2}, v{VT+3}
    v_lshlrev_b32 v{VMA}, 5, v{VT+7}
    v_add_u32 v{VMA}, {MSC}, v{VMA}
    v_add_u32 v{VT+2}, {MSC}, v{VT+2}
    v_lshlrev_b32 v{VT+13}, 1, v{VLIN}
    s_lshl_b32 s44, s{S_W}, 11
    s_add_u32 s44, s44, {hex(MODG)}
    KF_POLL:
    buffer_load_dwordx4 v[40:43], v{VT+13}, s[{SWS}:{SWS+3}], s44 offen sc1
    buffer_load_dwordx4 v[44:47], v{VT+13}, s[{SWS}:{SWS+3}], s44 offen offset:16 sc1
    s_sub_u32 s47, s47, 1
    s_waitcnt vmcnt(0)
    v_xor_b32 v41, s{TAG}, v41
    v_xor_b32 v43, s{TAG}, v43
    v_xor_b32 v45, s{TAG}, v45
    v_xor_b32 v47, s{TAG}, v47
    v_or3_b32 v41, v41, v43, v45
    v_or_b32 v41, v41, v47
    v_cmp_ne_u32 vcc, 0, v41
    s_cbranch_vccz KF_GO
    s_sleep {SLEEP0}
    s_cmp_lg_u32 s47, 0
    s_cbranch_scc1 KF_POLL
    KF_GO:
    v_mov_b32 v32, v40
    v_mov_b32 v33, v42
    v_mov_b32 v34, v44
    v_mov_b32 v35, v46
    """)
    stamp(a, 30)
    a(f"""
    s_cmp_lt_u32 s{S_W}, 2
    s_cbranch_scc1 KF_SA
    """)
    for j in range(4): a(f"v_add_f32 v{32+j}, 1.0, v{32+j}")
    for d in range(2): a(f"v_cvt_pk_bf16_f32 v{36+d}, v{32+2*d}, v{33+2*d}")
    for d in range(2):
        a(f"v_lshlrev_b32 v{32+2*d}, 16, v{36+d}")
        a(f"v_and_b32 v{33+2*d}, 0xffff0000, v{36+d}")
    a("KF_SA:")
    stamp(a, 23)
    for j in range(4): a(f"v_mul_f32 v{32+j}, {f32(QS)}, v{32+j}")
    a(f"""
    ds_write_b128 v{VT+2}, v[32:35]
    """)
    for m in range(2):
        pre, d = wq_dma(RING[4+m], (29, KVD + m*4096))
        for x in pre + d: a(x)
    a(f"""
    s_sub_u32 s45, s29, s{S_RING}
    s_waitcnt lgkmcnt(0)
    s_barrier
    ds_read_b128 v[16:19], v{VMA}
    ds_read_b128 v[20:23], v{VMA} offset:16
    ds_read_b128 v[24:27], v{VMA} offset:2048
    ds_read_b128 v[28:31], v{VMA} offset:2064
    """)
    for x in hb_reads(0): a(x)
    flag_store(a, "KFA", 42)
    for i in range(4): a(f"v_add_u32 v{VTSL[i]}, s45, v{VTR+i}")
    for i in range(4): a(f"v_add_u32 v{VTK[i]}, {KVD}, v{VTSL[i]}")
    a("s_waitcnt lgkmcnt(2)")
    for rg in range(2):
        y = rg*8
        for k in range(0, 8, 2):
            a(f"v_pk_fma_f32 v[{y+k}:{y+k+1}], v[{y+k}:{y+k+1}], v[{24+k}:{25+k}], v[{16+k}:{17+k}]")
        for d in range(4):
            a(f"v_cvt_pk_bf16_f32 v{y+d}, v{y+2*d}, v{y+2*d+1}")
        a(f"ds_write_b128 v{VHW}, {vr(y,4)} offset:{HB + rg*128}")
    for m in range(2):
        pre, d = wq_dma(PRE[m], (29, STG[m]))
        for x in pre + d: a(x)
    a("s_waitcnt lgkmcnt(0)")
    a("s_barrier")

def hb_reads(n):
    i = 1 + n//2; hf = n & 1; b = MB[n & 1]
    return [f"ds_read_b128 {vr(b,4)}, v{VMA} offset:{i*256 + hf*16}", f"ds_read_b128 {vr(b+4,4)}, v{VMA} offset:{2048 + i*256 + hf*16}"]
def hb_valu(n, rg):
    i = 1 + n//2; hf = n & 1; b = MB[n & 1]
    x = XP + rg*32 + i*4 + hf*2
    r = []
    for d in range(2):
        r.append((f"v_lshlrev_b32 v{MT+2*d}, 16, v{x+d}", 4))
        r.append((f"v_and_b32 v{MT+2*d+1}, 0xffff0000, v{x+d}", 5))
    for k in range(4): r.append((f"v_fma_f32 v{MT+k}, v{MT+k}, v{VSTAT+2*rg}, v{VSTAT+2*rg+1}", 5))
    for k in range(4): r.append((f"v_fma_f32 v{MT+k}, v{MT+k}, v{b+4+k}, v{b+k}", 5))
    for d in range(2): r.append((f"v_cvt_pk_bf16_f32 v{x+d}, v{MT+2*d}, v{MT+2*d+1}", 5))
    return r
def hb_write(i, rg):
    return f"ds_write_b128 v{VHW}, {vr(XP + rg*32 + i*4, 4)} offset:{HB + i*8192 + rg*128}"

def qproj(a):
    vq = VQ()
    vq.issue(('W', RING[4]), 4); vq.issue(('W', RING[5]), 4)
    for m in range(2): vq.issue(('P', m), 4)
    slot = {RING[q]: q for q in range(6)}
    nextq = 6
    def areg(s_, i):
        if s_ in PRE: return ar(64 + 16*PRE.index(s_) + 4*i, 4)
        return ar(AA + 16*(RING.index(s_) & 1) + 4*i, 4)
    def a_reads(s_):
        q = RING.index(s_); sl = slot[s_]
        adr = (lambda i: VTR+i) if sl < 4 else (lambda i: VTK[i])
        return [f"ds_read_b64_tr_b16 {ar(AA+16*(q&1)+4*i+2*h,2)}, v{adr(i)} offset:{(sl&3)*4096 + h*1024}" for i in range(4) for h in range(2)]
    def b_reads(s_):
        return [f"ds_read_b128 {ar(AB+8*(s_&1)+4*th,4)}, v{VBQ+(s_&3)} offset:{HB + s_*2048 + th*1024}" for th in range(2)]
    for x in b_reads(0) + a_reads(0): a(x)
    a("s_waitcnt lgkmcnt(0)")
    pending_w = []
    for s_ in range(32):
        mf = []
        for i in range(4):
            for th in range(2):
                d = vr(ACC + (i*2+th)*16, 16)
                mf.append(mfma(d, areg(s_, i), ar(AB+8*(s_&1)+4*th,4), "0" if s_ == 0 else d))
        gaps = [[] for _ in range(8)]
        if s_ + 1 < 32:
            rb = b_reads(s_+1)
            if s_ + 1 in RING:
                ra = a_reads(s_+1)
                if ('W', s_+1) in vq.q: gaps[0].append(f"s_waitcnt vmcnt({vq.need(('W', s_+1))})")
                gaps[0] += rb[0:1]; gaps[1] = ra[0:2]; gaps[2] = rb[1:2] + ra[2:4]; gaps[3] = ra[4:5]; gaps[4] = ra[5:8]
            else:
                gaps[0] += rb
        did = False
        if s_ in RING and nextq < len(RING) and not (slot[s_] >= 4 and RING[nextq] >= 28):
            sl = slot[s_]; k = RING[nextq]; slot[k] = sl; nextq += 1
            pre, d = wq_dma(k, (S_RING, sl*4096) if sl < 4 else (29, KVD + (sl-4)*4096))
            gaps[0] = gaps[0][:1] + pre + gaps[0][1:]
            for j in range(4): gaps[1+2*j] = [d[j]] + gaps[1+2*j]
            vq.issue(('W', k), 4); did = True
        prd = {5: 0, 6: 1}
        if s_ in prd:
            m = prd[s_]
            assert vq.landed(('P', m)), s_
            rr = [f"ds_read_b64_tr_b16 {ar(64+16*m+4*i+2*h,2)}, v{VTSL[i]} offset:{24576 + (m&1)*4096 + h*1024}" for i in range(4) for h in range(2)]
            for j in range(4): gaps[2+j] = gaps[2+j] + rr[2*j:2*j+2]
        if XCPF and s_ == 24: gaps[6] = [CPF]
        if s_ == 14:
            gaps[6] = [f"buffer_load_dwordx2 v[{VFL}:{VFL+1}], v{VT+12}, s[{SWS}:{SWS+3}], s34 offen sc1"]
            gaps[5] = [f"buffer_load_dwordx4 v[{VFL+2}:{VFL+5}], v{VLIN}, s[{SWS}:{SWS+3}], s35 offen sc1"]
            vq.issue(('F', 0), 2)
        if s_ == 24:
            assert vq.landed(('F', 0))
            gaps[4] += [f"v_cmp_ne_u64 vcc, s[{TAG}:{TAG+1}], v[{VFL}:{VFL+1}]", f"v_cmp_ne_u64 s[44:45], s[{TAG}:{TAG+1}], v[{VFL+2}:{VFL+3}]",
                       f"v_cmp_ne_u64 s[46:47], s[{TAG}:{TAG+1}], v[{VFL+4}:{VFL+5}]"]
            gaps[5] = ["s_or_b64 s[44:45], s[44:45], s[46:47]", "s_or_b64 s[44:45], s[44:45], vcc", "s_cbranch_scc1 KQ_SLOW", "KQ_RET:"]
        if s_ in (28, 29):
            assert not did and nextq == len(RING)
            t = s_ - 28
            gaps[0] = gaps[0] + [f"s_add_u32 m0, s{S_DSLOT}, {KVD + t*16384}"]
            for j in range(4): gaps[1+2*j] = [f"buffer_load_dwordx4 v{VLIN}, s[{SWS}:{SWS+3}], s{S_DOFF} offen offset:{j*1024} sc1 lds"] + gaps[1+2*j]
            gaps[7].append(f"s_add_u32 s{S_DOFF}, s{S_DOFF}, 16384")
            vq.issue(('KV', t), 4)
        work = [(s_, 0), (s_, 1)] if s_ < 4 else ([(4 + (s_-4)//2, (s_-4) & 1)] if s_ < 24 else [])
        nxt = s_ + 1 if s_ < 4 else (5 + (s_-4)//2 if (s_-4) & 1 else None)
        if nxt is not None and nxt < 14: gaps[3] = gaps[3] + hb_reads(nxt)
        for k_, wr in enumerate(pending_w): gaps[2*k_].append(wr)
        pending_w = [hb_write(1 + n//2, rg) for n, rg in work if n & 1]
        if s_ % 4 == 3 and s_ < 28: gaps[0] = ["s_barrier"] + gaps[0]
        if s_ + 1 < 32: gaps[7] = ["s_waitcnt lgkmcnt(0)"] + gaps[7]
        st_ = [x for n, rg in work for x in hb_valu(n, rg)]
        if os.environ.get('XNOMOD'): st_ = []
        if os.environ.get('XNOBAR'): gaps[0] = [x for x in gaps[0] if x != 's_barrier']
        if os.environ.get('XNOVM'): gaps = [[x for x in g if 'vmcnt' not in x] for g in gaps]
        if os.environ.get('XNODMA'): gaps = [[x for x in g if not (x.endswith(' lds') and 'sc1' not in x)] for g in gaps]
        if st_:
            cost = [sum(12 if 'ds_write' in x else (6 if 'buffer' in x else (0 if x.startswith('s_') else 4)) for x in g) for g in gaps]
            spread(gaps, cost, st_, 0, 7)
        if s_ in (4, 8, 16, 24): stamp(a, {4: 21, 8: 24, 16: 25, 24: 26}[s_])
        emit(a, mf, gaps)
    return vq

def phaseB(a):
    site_counter[0] = 0; sites[0].clear(); sites[1].clear()
    front(a)
    stamp(a, 1)
    vq = qproj(a)
    stamp(a, 2)
    a(f"""
    s_mov_b32 s{SW}, s{SX}
    s_mov_b32 s{SW+1}, s{SX+1}
    s_mov_b32 s{SW+2}, s{SX+2}
    s_lshl_b32 s{S_WOFF}, s{S_W}, 8
    s_waitcnt vmcnt({vq.need(('KV', 0))})
    s_barrier
    """)
    for x in k_reads(0): a(x)
    def kv_now(t):
        pre, d, post = kv_grp(t); vq.issue(('KV', t), 4)
        return pre + ["s_nop 0"] + d + post
    for x in kv_now(2): a(x)
    for x, _ in cvtq_stream(0): a(x)
    a("s_waitcnt lgkmcnt(0)")
    gaps = [[] for _ in range(8)]; cost = [0]*8
    vr0 = v_reads(0)
    pre, d, post = kv_grp(3); vq.issue(('KV', 3), 4)
    gaps[0] += pre
    for j in range(8): gaps[j].append(vr0[j]); cost[j] += 4
    for j in range(4): gaps[2*j+1].append(d[j]); cost[2*j+1] += 8
    gaps[7] += post
    spread(gaps, cost, cvtq_stream(1), 0, 7)
    emit(a, qk_mf(0, 0, czero=True), gaps)
    a(f"""
    s_waitcnt vmcnt({vq.need(('KV', 1))}) lgkmcnt(0)
    s_barrier
    """)
    i0, m0 = init_stream(0)
    i1, m1 = init_stream(1)
    gaps = [[] for _ in range(8)]; cost = [0]*8
    kr = k_reads(1); vr1 = v_reads(1)
    for j in range(8): gaps[j] += [kr[j], vr1[j]]; cost[j] += 8
    spread(gaps, cost, i0, 1, 7)
    emit(a, qk_mf(1, 0, czero=True), gaps)
    for x, _ in exp_stream(0): a(x)
    a(f"v_mov_b32 v{L[0]}, v{LT[0]}")
    a(f"v_mov_b32 v{L[1]}, 0")
    h1, pend = split_st1(exp_stream(1))
    gaps = [[] for _ in range(8)]; cost = [0]*8
    pre, d, post = kv_grp(4); vq.issue(('KV', 4), 4)
    gaps[0] += pre
    for j in range(4): gaps[2*j+1].append(d[j]); cost[2*j+1] += 8
    gaps[7] += post + ["s_waitcnt lgkmcnt(0)"]
    pfa = [(f"v_lshlrev_b32 v{VPF}, 1, v{VLIN}", 4), (f"v_lshrrev_b32 v{VT+8}, 9, v{VLIN}", 4), (f"v_mul_u32_u24 v{VT+8}, 3584, v{VT+8}", 4),
           (f"v_and_b32 v{VT+9}, 0x3ff, v{VPF}", 4), (f"v_min_u32 v{VT+9}, 864, v{VT+9}", 4), (f"v_add_u32 v{VPF+1}, v{VT+8}, v{VT+9}", 4)]
    spread(gaps, cost, i1 + m0 + h1 + pfa, 0, 7)
    emit(a, pv_mf(0, 0, czero=True), gaps)
    stamp(a, 3)
    tl = lambda v, srd_: f"buffer_load_dword a240, v{v}, s[{srd_}:{srd_+3}], s{S_PFO} offen"
    pfs = {
        1: ([f"s_lshr_b32 s44, s2, 4", f"s_lshl_b32 s44, s44, 15", f"s_lshl_b32 s45, s{S_W}, 13", f"s_add_u32 s{S_PFO}, s44, s45"], tl(VPF, SW)),
        5: ([f"s_cmp_lt_u32 s{S_W}, 2", f"s_cselect_b32 s{SPF}, s{PWG}, s{PWU}", f"s_cselect_b32 s{SPF+1}, s{PWG+1}, s{PWU+1}", f"s_mov_b32 s{SPF+2}, {512*3584}",
             f"s_mov_b32 s{SPF+3}, 0x20000", f"s_mov_b32 s{S_PFO}, s{S_PF2}"], tl(VPF+1, SPF)),
        9: ([f"s_mov_b32 s{SPF}, s{PWD}", f"s_mov_b32 s{SPF+1}, s{PWD+1}", f"s_mov_b32 s{SPF+2}, {1792*1024}", f"s_mov_b32 s{S_PFO}, s{S_PF2+1}"], tl(VPF, SPF)),
    }
    for p_ in (2, 3, 4): pfs[p_] = ([f"s_add_u32 s{S_PFO}, s{S_PFO}, 2048"], tl(VPF, SW))
    for p_ in (6, 7, 8): pfs[p_] = ([f"s_add_u32 s{S_PFO}, s{S_PFO}, {2*3584}"], tl(VPF+1, SPF))
    for p_ in range(10, 16): pfs[p_] = ([f"s_add_u32 s{S_PFO}, s{S_PFO}, 2048"], tl(VPF, SPF))
    NWO = 6
    wsched = {10: [0], 11: [1], 12: [2], 13: [3], 14: [4], 15: [5]}
    for p_ in range(1, 16):
        groups = []
        if p_ + 4 <= 15: groups.append((('KV', p_+4), kv_grp(p_+4)))
        for u in wsched.get(p_, []): groups.append((('W', u), wo_grp(u, u)))
        pend = period(a, p_, vq, pend, extra1=(m1 if p_ == 1 else ()), groups=groups, pf=(None if os.environ.get('XNOPF') else pfs.get(p_)))
    for x, _ in pend: a(x)
    a(f"""
    s_lshl_b32 s44, s{S_W}, 14
    v_add_u32 v{VT+8}, s44, v{VLIN}
    v_add_u32 v{VTR}, s{S_RING}, v{VT2}
    v_add_u32 v{VTR+1}, s{S_RING}, v{VT2+1}
    s_add_u32 s44, s29, {KVD}
    v_add_u32 v{VTR+2}, s44, v{VT2}
    v_add_u32 v{VTR+3}, s44, v{VT2+1}
    """)
    for x in check_site(1): a(x)
    for x in linv(0): a(x)
    n0 = norm_stream(0, False)
    gaps = [[] for _ in range(8)]
    spread(gaps, [0]*8, take(n0, 8*26), 0, 7)
    emit(a, pv_mf(1, 1), gaps)
    stamp(a, 4)
    for x, _ in n0: a(x)
    for x in linv(1): a(x)
    for x, _ in norm_stream(1, True): a(x)
    a(f"""
    v_lshrrev_b32 v{VT+8}, 4, v{VLIN}
    v_bfe_u32 v{VT+9}, v{VT+8}, 3, 2
    v_lshlrev_b32 v{VT+9}, 13, v{VT+9}
    v_lshrrev_b32 v{VT+10}, 5, v{VT+8}
    v_lshl_add_u32 v{VT+9}, v{VT+10}, 7, v{VT+9}
    v_and_b32 v{VT+10}, 7, v{VT+8}
    v_lshl_add_u32 v{VT+9}, v{VT+10}, 4, v{VT+9}
    s_lshl_b32 s44, s{S_AG}, 21
    s_lshl_b32 s45, s{S_ATB}, 16
    s_add_u32 s44, s44, s45
    s_lshl_b32 s45, s{S_W}, 11
    s_add_u32 s44, s44, s45
    s_add_u32 s44, s44, {hex(WS_PART)}
    s_add_u32 s45, s44, 32768
    s_waitcnt vmcnt({vq.need(('W', 0))}) lgkmcnt(0)
    s_barrier
    """)
    stamp(a, 5)
    def ar_(u):
        buf = u & 1; slot = u % NWO
        r = [f"ds_read_b64_tr_b16 {vr(FA+16*buf+(kk*2+i)*4+2*h,2)}, v{VTR+i+(2 if slot >= 4 else 0)} offset:{(slot&3)*4096 + kk*2048 + h*512}" for kk in range(2) for i in range(2) for h in range(2)]
        if u < 16:
            b = [f"ds_read_b128 {ar((2*u*2+q)*4,4)}, v{VLIN} offset:{HB + u*4096 + q*1024}" for q in range(4)]
            r = [b[0]] + r[0:2] + [b[1]] + r[2:4] + [b[2]] + r[4:6] + [b[3]] + r[6:8]
        return r
    def pstore(c):
        r = []; n = 0
        for i in range(2):
            for th in range(2):
                for sub in range(2):
                    base = ACC + 64*c + (i*2+th)*16 + 8*sub
                    t = base
                    for d in range(4): r.append((f"v_cvt_pk_bf16_f32 v{t+d}, v{base+2*d}, v{base+2*d+1}", 5))
                    r.append((f"buffer_store_dwordx4 {vr(t,4)}, v{VT+9}, s[{SWS}:{SWS+3}], s{44+th} offen offset:{(4*(2*c+i)+2*sub)*128}{sc()}", 12))
        return r
    for x in ar_(0): a(x)
    a("s_waitcnt lgkmcnt(0)")
    st0 = pstore(0)
    tmp = Asm(); c_setup(tmp); srd(tmp, SX, PX, 2048*1024); d_setup(tmp); e_setup(tmp)
    tmp(f"s_cmp_ge_u32 s{S_TB}, 28")
    tmp(f"s_cselect_b32 s{S_DM0}, 131072, s{S_DM0}")
    misc = [l.strip() for l in tmp.lines]
    cl = c_loads()
    mchunks = [[]]
    for k, l in enumerate(misc):
        cons = l.startswith(("s_cselect", "s_addc"))
        if len(mchunks[-1]) >= 6 and not cons: mchunks.append([])
        mchunks[-1].append(l)
    assert len(mchunks) <= 11, len(mchunks)
    for u in range(32):
        head = []; nxt = []; mid = {}
        if u + 1 < 32:
            head = [f"s_waitcnt vmcnt({vq.need(('W', u+1))})"]
            nxt = ar_(u+1)
        if u + NWO < 32:
            pre, d, post = wo_grp(u + NWO, u % NWO)
            head = head + pre; mid = {1: d[0:1], 3: d[1:2], 5: d[2:3], 7: d[3:4]}
            vq.issue(('W', u+NWO), 4)
        fill = []
        if 17 <= u < 25:
            fill = st0[(u-17)*5:(u-17)*5+4]
        if 4 <= u < 4 + len(mchunks):
            mid[4] = mchunks[u-4]
        if XCPF and u == 20:
            mid[6] = [CPF]
        if 26 <= u < 30:
            mid = {2: [st0[(2*(u-26))*5+4][0]], 6: [st0[(2*(u-26)+1)*5+4][0]]}
            vq.issue(('S', u), 2)
        if u >= 30:
            k = 7*(u-30)
            mid = {g_: cl[k+g_:k+g_+1] for g_ in range(7)}
            vq.issue(('C', u), 7)
        rb_unit(a, u, nxt, head, mid, fill, ACC + 64*(u // 16), u % 16 == 0)
    stamp(a, 6)
    a("s_nop 7")
    a("s_nop 3")
    for x, _ in pstore(1): a(x)
    a(f"""
    s_lshl_b32 s46, s{S_ATB}, 10
    s_lshl_b32 s47, s{S_AG}, 7
    s_add_u32 s46, s46, s47
    s_add_u32 s46, s46, {hex(FP)}
    """)
    publish(a, "KB", 46)
    stamp(a, 7)

def slow_paths(a):
    a("KQ_SLOW:")
    poll(a, "KQ1", 34, 8, stride=64)
    poll(a, "KQ2", 35, 64, stride=8)
    poll(a, "KQ3", 36, 64, stride=8)
    a("s_branch KQ_RET")
    for h in range(2):
        for k in sites[h]:
            a(f"KA_TR{k}:")
            a(f"s_mov_b32 s{S_RET}, {k}")
            a(f"s_branch KA_SLOW{h}")
    for h in range(2):
        t = VT
        a(f"KA_SLOW{h}:")
        if STAMP:
            a(f"v_readlane_b32 s94, v{VST}, 31")
            a("s_nop 3")
            a("s_add_u32 s94, s94, 1")
            a(f"v_writelane_b32 v{VST}, s94, 31")
        a("s_nop 7")
        a("s_nop 7")
        a(f"v_max3_f32 v{t}, v{S[h]}, v{S[h]+1}, v{S[h]+2}")
        for k in range(3, 15, 2):
            a(f"v_max3_f32 v{t}, v{t}, v{S[h]+k}, v{S[h]+k+1}")
        a(f"v_max_f32 v{t}, v{t}, v{S[h]+15}")
        a(f"v_mov_b32 v{t+1}, v{t}")
        a("s_nop 1")
        a(f"v_permlane32_swap_b32 v{t}, v{t+1}")
        a("s_nop 0")
        a(f"v_max_f32 v{t}, v{t}, v{t+1}")
        a(f"v_add_f32 v{t}, {f32(BIAS)}, v{t}")
        a(f"v_max_f32 v{t}, 0, v{t}")
        a(f"v_exp_f32 v{t+1}, -v{t}")
        for k in range(16): a(f"v_sub_f32 v{S[h]+k}, v{S[h]+k}, v{t}")
        for k in range(16): a(f"v_sub_f32 v{M[h]+k}, v{M[h]+k}, v{t}")
        a(f"v_mul_f32 v{L[h]}, v{L[h]}, v{t+1}")
        for dt in range(4):
            for k in range(16):
                r = ACC + (dt*2+h)*16 + k
                a(f"v_mul_f32 v{r}, v{r}, v{t+1}")
        for k in range(0, 16, 2):
            a(f"v_exp_f32 v{t+2}, v{S[h]+k}")
            a(f"v_exp_f32 v{t+3}, v{S[h]+k+1}")
            a("s_nop 0")
            if k == 0: a(f"v_add_f32 v{LT[h]}, v{t+2}, v{t+3}")
            else:
                a(f"v_add_f32 v{LT[h]}, v{LT[h]}, v{t+2}")
                a(f"v_add_f32 v{LT[h]}, v{LT[h]}, v{t+3}")
            a(f"v_cvt_pk_bf16_f32 v{P[h]+k//2}, v{t+2}, v{t+3}")
        a("s_nop 1")
        for k in sites[h][:-1]:
            a(f"s_cmp_eq_u32 s{S_RET}, {k}")
            a(f"s_cbranch_scc1 KA_RET{k}")
        a(f"s_branch KA_RET{sites[h][-1]}")

SD = 48
S_DM0, S_DWO = 52, 53
S_TG, S_FB = 54, 55
VDW = 231
def d_setup(a):
    a(f"""
    s_and_b32 s46, s{S_G}, 1
    s_lshl_b32 s46, s46, 2
    s_and_b32 s47, s{S_TB}, 3
    s_add_u32 s{S_TG}, s46, s47
    s_lshr_b32 s46, s{S_G}, 1
    s_mul_i32 s46, s46, 7
    s_lshr_b32 s47, s{S_TB}, 2
    s_add_u32 s{S_FB}, s46, s47
    s_cmp_lt_u32 s{S_W}, 2
    s_cselect_b32 s{SD}, s{PWG}, s{PWU}
    s_cselect_b32 s{SD+1}, s{PWG+1}, s{PWU+1}
    s_mov_b32 s{SD+2}, {512*3584}
    s_mov_b32 s{SD+3}, 0x20000
    s_and_b32 s46, s{S_W}, 1
    s_mul_i32 s46, s46, {8*3584}
    s_lshl_b32 s47, s{S_FB}, 7
    s_add_u32 s{S_DWO}, s46, s47
    s_lshl_b32 s{S_DM0}, s{S_W}, 10
    v_lshrrev_b32 v{VT+4}, 10, v{VWO}
    v_mul_u32_u24 v{VDW}, 3584, v{VT+4}
    v_and_b32 v{VT+4}, 0x3ff, v{VWO}
    v_add_u32 v{VDW}, v{VDW}, v{VT+4}
    """)
def d_wdma():
    return [f"s_mov_b32 m0, s{S_DM0}", f"s_add_u32 s{S_DM0}, s{S_DM0}, 4096",
            f"buffer_load_dwordx4 v{VDW}, s[{SD}:{SD+3}], s{S_DWO} offen lds", f"s_add_u32 s{S_DWO}, s{S_DWO}, {16*3584}"]

CL = 131072
CX, CGA, CSB, CCB = 160, 168, 184, 200
def c_setup(a):
    a(f"""
    s_lshl_b32 s40, s{S_G}, 5
    s_add_u32 s40, s40, s{S_TB}           ; oct
    s_lshl_b32 s41, s40, 13
    s_lshl_b32 s46, s{S_W}, 11
    s_add_u32 s42, s41, s46
    s_add_u32 s42, s42, {hex(WS_PART)}
    v_bfe_u32 v{VT}, v{VLIN}, 4, 3        ; t
    v_lshrrev_b32 v{VT+1}, 7, v{VLIN}     ; Lq
    v_lshlrev_b32 v{VT+2}, 10, v{VT}
    v_lshl_add_u32 v{VT+2}, v{VT+1}, 4, v{VT+2}     ; t*1024 + Lq*16
    v_lshlrev_b32 v{VT+3}, 5, v{VT+1}               ; Lq*32
    s_lshl_b32 s46, s{S_W}, 8
    s_add_u32 s43, s41, s46
    s_lshl_b32 s46, s{S_W}, 9
    s_add_u32 s30, s46, {WS_MOD + 2*2048}
    s_add_u32 s31, s46, {WS_MOD + 4*2048}
    """)
def c_loads():
    r = []
    for q in range(2):
        r.append(f"buffer_load_dwordx4 {vr(CX+4*q,4)}, v{VT+2}, s[{SX}:{SX+3}], s43 offen offset:{q*128}")
    for q in range(2):
        for hh in range(2):
            r.append(f"buffer_load_dwordx4 {vr(CGA+8*q+4*hh,4)}, v{VT+3}, s[{SWS}:{SWS+3}], s30 offen offset:{q*256+hh*16} sc1")
            r.append(f"buffer_load_dwordx4 {vr(CSB+8*q+4*hh,4)}, v{VT+3}, s[{SWS}:{SWS+3}], s30 offen offset:{2048+q*256+hh*16} sc1")
            r.append(f"buffer_load_dwordx4 {vr(CCB+8*q+4*hh,4)}, v{VT+3}, s[{SWS}:{SWS+3}], s31 offen offset:{q*256+hh*16} sc1")
    return r

def phaseC(a):
    def ld(g):
        return [f"s_add_u32 s33, s42, {g*0x200000}"] + [f"buffer_load_dwordx4 {vr(8*g+4*q,4)}, v{VLIN}, s[{SWS}:{SWS+3}], s33 offen offset:{q*1024} sc1" for q in range(2)]
    def accum(g):
        for d in range(8):
            a(f"v_lshlrev_b32 v{144+2*d}, 16, v{8*g+d}")
            a(f"v_and_b32 v{145+2*d}, 0xffff0000, v{8*g+d}")
        for j in range(0, 16, 2): a(f"v_pk_add_f32 v[{84+j}:{85+j}], v[{84+j}:{85+j}], v[{144+j}:{145+j}]")
    fl = f"buffer_load_dwordx2 v[{VT+14}:{VT+15}], v{VT+13}, s[{SWS}:{SWS+3}], s32 offen sc1"
    a(f"""
    s_lshr_b32 s32, s40, 3
    s_lshl_b32 s32, s32, 10
    s_add_u32 s32, s32, {hex(FP)}
    v_lshlrev_b32 v{VT+13}, 3, v{VLIN}
    v_min_u32 v{VT+13}, {7*128}, v{VT+13}
    {fl}
    """)
    for j in range(16): a(f"v_add_f32 v{CCB+j}, 1.0, v{CCB+j}")
    for d in range(8): a(f"v_cvt_pk_bf16_f32 v{144+d}, v{CCB+2*d}, v{CCB+1+2*d}")
    for d in range(8):
        a(f"v_lshlrev_b32 v{CCB+2*d}, 16, v{144+d}")
        a(f"v_and_b32 v{CCB+1+2*d}, 0xffff0000, v{144+d}")
    for d in range(8):
        a(f"v_lshlrev_b32 v{64+2*d}, 16, v{CX+d}")
        a(f"v_and_b32 v{65+2*d}, 0xffff0000, v{CX+d}")
    a(f"""
    s_add_u32 s43, s43, {hex(WS_X1)}
    v_lshrrev_b32 v80, 9, v{VLIN}
    v_lshlrev_b32 v80, 7, v80
    v_lshl_add_u32 v80, v{VT}, 4, v80
    s_lshl_b32 s44, s{S_W}, 2
    s_add_u32 s44, s44, {CL}
    v_add_u32 v80, s44, v80
    v_lshlrev_b32 v81, 4, v{VT}
    v_add_u32 v81, {CL}, v81
    v_lshrrev_b32 v82, 1, v{VT+1}
    v_lshlrev_b32 v82, 11, v82
    v_and_b32 v83, 1, v{VT+1}
    v_lshl_add_u32 v82, v83, 9, v82
    v_lshl_add_u32 v82, v{VT}, 4, v82
    s_lshr_b32 s44, s40, 3
    s_lshl_b32 s44, s44, 16
    s_bfe_u32 s45, s40, 0x10002
    s_lshl_b32 s45, s45, 10
    s_add_u32 s44, s44, s45
    s_and_b32 s45, s40, 3
    s_lshl_b32 s45, s45, 7
    s_add_u32 s44, s44, s45
    s_lshl_b32 s45, s{S_W}, 14
    s_add_u32 s44, s44, s45
    s_add_u32 s44, s44, {hex(WS_H2)}
    s_add_u32 s45, s44, 8192
    s_lshl_b32 s46, s40, 7
    s_add_u32 s46, s46, {hex(FH)}
    """)
    for j in range(16): a(f"v_mov_b32 v{84+j}, 0")
    a(f"""
    s_mov_b32 s34, 0                       ; done
    s_mov_b32 s35, 0                       ; pend
    s_mov_b32 s47, {SPIN_MAX}
    s_waitcnt vmcnt(0)
    v_cmp_ne_u64 vcc, s[{TAG}:{TAG+1}], v[{VT+14}:{VT+15}]
    s_cbranch_vccnz KC_DYN
    """)
    stamp(a, 8)
    for g in range(8):
        for x in ld(g): a(x)
    for g in range(8):
        a(f"s_waitcnt vmcnt({14-2*g})")
        accum(g)
    a(f"""
    s_branch KC_SUM
    KC_LOOP:
    s_cmp_eq_u32 s34, 0xff
    s_cbranch_scc1 KC_NOFL
    {fl}
    KC_NOFL:
    s_waitcnt vmcnt(0)
    v_cmp_ne_u64 vcc, s[{TAG}:{TAG+1}], v[{VT+14}:{VT+15}]
    KC_DYN:
    s_sub_u32 s47, s47, 1
    s_cmp_eq_u32 s47, 0
    s_cselect_b32 s36, 0, vcc_lo
    s_or_b32 s36, s36, s34
    s_andn2_b32 s36, 0xff, s36
    s_or_b32 s34, s34, s36
    """)
    for g in range(8):
        a(f"s_bitcmp1_b32 s36, {g}")
        a(f"s_cbranch_scc0 KC_L{g}")
        for x in ld(g): a(x)
        a(f"KC_L{g}:")
    a("s_cmp_eq_u32 s35, 0")
    a("s_cbranch_scc1 KC_A7")
    for g in range(8):
        a(f"s_bitcmp1_b32 s35, {g}")
        a(f"s_cbranch_scc0 KC_A{g}")
        accum(g)
        a(f"KC_A{g}:")
    a(f"""
    s_mov_b32 s35, s36
    s_cmp_lg_u32 s36, 0
    s_cbranch_scc1 KC_LOOP
    s_cmp_eq_u32 s34, 0xff
    s_cbranch_scc1 KC_SUM
    s_cmp_ge_u32 s{S_DM0}, 131072
    s_cbranch_scc1 KC_LOOP
    """)
    for _ in range(8):
        for x in d_wdma(): a(x)
    a("s_branch KC_LOOP")
    a("KC_SUM:")
    stamp(a, 16)
    for j in range(0, 16, 2): a(f"v_pk_fma_f32 v[{64+j}:{65+j}], v[{84+j}:{85+j}], v[{CGA+j}:{CGA+1+j}], v[{64+j}:{65+j}]")
    a("v_pk_add_f32 v[0:1], v[64:65], v[66:67]")
    a("v_pk_mul_f32 v[2:3], v[64:65], v[64:65]")
    a("v_pk_fma_f32 v[2:3], v[66:67], v[66:67], v[2:3]")
    for j in range(4, 16, 2):
        a(f"v_pk_add_f32 v[0:1], v[0:1], v[{64+j}:{65+j}]")
        a(f"v_pk_fma_f32 v[2:3], v[{64+j}:{65+j}], v[{64+j}:{65+j}], v[2:3]")
    a(f"""
    v_add_f32 v6, v0, v1
    v_add_f32 v7, v2, v3
    s_nop 1
    v_permlane32_swap_b32 v6, v7
    s_nop 0
    v_add_f32 v6, v6, v7
    v_mov_b32 v7, v6
    s_nop 1
    v_permlane16_swap_b32 v6, v7
    s_nop 0
    v_add_f32 v6, v6, v7
    s_nop 1
    v_add_f32_dpp v6, v6, v6 row_ror:8 row_mask:0xf bank_mask:0xf
    ds_write_b32 v80, v6
    """)
    for d in range(8): a(f"v_cvt_pk_bf16_f32 v{CX+d}, v{64+2*d}, v{65+2*d}")
    a("""
    s_waitcnt lgkmcnt(0)
    s_barrier
    ds_read_b128 v[16:19], v81
    ds_read_b128 v[20:23], v81 offset:128
    """)
    for q in range(2):
        a(f"buffer_store_dwordx4 {vr(CX+4*q,4)}, v{VT+2}, s[{SWS}:{SWS+3}], s43 offen offset:{q*128} sc1")
    a(f"""
    s_waitcnt lgkmcnt(0)
    v_pk_add_f32 v[16:17], v[16:17], v[18:19]
    v_pk_add_f32 v[20:21], v[20:21], v[22:23]
    v_add_f32 v16, v16, v17
    v_add_f32 v20, v20, v21
    v_mul_f32 v16, {f32(1/512)}, v16
    v_mul_f32 v20, {f32(1/512)}, v20
    v_fma_f32 v20, -v16, v16, v20
    v_max_f32 v20, 0, v20
    v_add_f32 v20, {f32(1e-5)}, v20
    v_rsq_f32 v20, v20
    s_nop 0
    v_mul_f32 v16, v16, v20
    v_sub_f32 v21, 0, v16
    """)
    for j in range(0, 16, 2): a(f"v_pk_fma_f32 v[{64+j}:{65+j}], v[{64+j}:{65+j}], v[20:21], v[20:21] op_sel:[0,0,1] op_sel_hi:[1,0,1]")
    for j in range(0, 16, 2): a(f"v_pk_fma_f32 v[{64+j}:{65+j}], v[{64+j}:{65+j}], v[{CCB+j}:{CCB+1+j}], v[{CSB+j}:{CSB+1+j}]")
    for d in range(8):
        a(f"v_cvt_pk_bf16_f32 v{24+d}, v{64+2*d}, v{65+2*d}")
        if d % 4 == 3: a(f"buffer_store_dwordx4 {vr(24+4*(d//4),4)}, v82, s[{SWS}:{SWS+3}], s{44+d//4} offen sc1")
    publish(a, "KC", 46)
    stamp(a, 9)

def gelu_stream(c, pk):
    r = []; n = 0
    for th in range(2):
        for sub in range(2):
            g = ACC + 64*c + th*16 + 8*sub
            u = g + 32
            t = 160 + 8*(n & 1)
            o = 176 + 4*(n % 4); n += 1
            if pk:
                pr = lambda x, k: f"v[{x+k}:{x+k+1}]"
                for k in range(0, 8, 2): r.append((f"v_pk_mul_f32 {pr(t,k)}, {pr(g,k)}, {pr(g,k)}", 4))
                for k in range(0, 8, 2): r.append((f"v_pk_fma_f32 {pr(t,k)}, {pr(t,k)}, v[{VT+8}:{VT+9}], v[{VT+10}:{VT+11}]", 4))
                for k in range(0, 8, 2): r.append((f"v_pk_mul_f32 {pr(t,k)}, {pr(t,k)}, {pr(g,k)}", 4))
                for j in range(8): r.append((f"v_exp_f32 v{t+j}, v{t+j}", 8))
                for k in range(0, 8, 2): r.append((f"v_pk_mul_f32 {pr(g,k)}, {pr(g,k)}, {pr(u,k)}", 4))
                for k in range(0, 8, 2): r.append((f"v_pk_add_f32 {pr(t,k)}, {pr(t,k)}, 1.0 op_sel_hi:[1,0]", 4))
                for j in range(8): r.append((f"v_rcp_f32 v{t+j}, v{t+j}", 8))
                r.append(("s_nop 0", 4))
                for k in range(0, 8, 2): r.append((f"v_pk_mul_f32 {pr(g,k)}, {pr(g,k)}, {pr(t,k)}", 4))
            else:
                for j in range(8): r.append((f"v_mul_f32 v{t+j}, v{g+j}, v{g+j}", 4))
                for j in range(8): r.append((f"v_fma_f32 v{t+j}, v{t+j}, v{VT+8}, v{VT+10}", 5))
                for j in range(8): r.append((f"v_mul_f32 v{t+j}, v{t+j}, v{g+j}", 4))
                for j in range(8):
                    r.append((f"v_exp_f32 v{t+j}, v{t+j}", 8))
                    r.append((f"v_mul_f32 v{g+j}, v{g+j}, v{u+j}", 4))
                for j in range(8): r.append((f"v_add_f32 v{t+j}, 1.0, v{t+j}", 4))
                for j in range(8): r.append((f"v_rcp_f32 v{t+j}, v{t+j}", 8))
                r.append(("s_nop 0", 4))
                for j in range(8): r.append((f"v_mul_f32 v{g+j}, v{g+j}, v{t+j}", 4))
            for d in range(4): r.append((f"v_cvt_pk_bf16_f32 v{o+d}, v{g+2*d}, v{g+2*d+1}", 5))
            r.append((f"buffer_store_dwordx4 {vr(o,4)}, v{VLIN}, s[{SWS}:{SWS+3}], s{44+c} offen offset:{sub*2048 + th*1024}{sc()}", 12))
    return r

SE = 56
S_EOFF = 60
VE = 160
def e_slot(u):
    sl = u % 6
    if sl < 2: return (61, 131072 + sl*4096)
    return (62, (sl-2)*4096)
VER = 225
def e_read(u, dst):
    sl = u % 6
    rb, off = (VER, sl*4096) if sl < 2 else (VER+2, (sl-2)*4096)
    return [f"ds_read_b64_tr_b16 {dst((kk*2+i)*4+2*h)}, v{rb+i} offset:{off + kk*2048 + h*512}" for kk in range(2) for i in range(2) for h in range(2)]
def e_read_a(u): return e_read(u, lambda o: ar(16*u+o, 2))
def e_addr(a):
    a(f"""
    s_add_u32 s30, s61, 131072
    v_add_u32 v{VER}, s30, v{VT2}
    v_add_u32 v{VER+1}, s30, v{VT2+1}
    v_add_u32 v{VER+2}, s62, v{VT2}
    v_add_u32 v{VER+3}, s62, v{VT2+1}
    """)
def e_setup(a):
    a(f"""
    s_lshl_b32 s61, s{S_W}, 13
    s_lshl_b32 s62, s{S_W}, 14
    s_mul_i32 s{S_EOFF}, s{S_W}, {28*16*1024}
    s_lshr_b32 s63, s{S_TB}, 2
    s_lshl_b32 s63, s63, 7
    s_add_u32 s{S_EOFF}, s{S_EOFF}, s63
    """)
    srd(a, SE, PWD, 1792*1024)
def e_dma(u):
    sb, off = e_slot(u)
    pre = [f"s_add_u32 m0, s{sb}, {off}"]
    d = [f"buffer_load_dwordx4 v{VWO+j}, s[{SE}:{SE+3}], s{S_EOFF} offen offset:{j*1024} lds" for j in range(4)]
    return pre, d, [f"s_add_u32 s{S_EOFF}, s{S_EOFF}, {32*1024}"]
def e_dma_now(a, u):
    pre, d, post = e_dma(u)
    for x in pre + ["s_nop 0"] + d + post: a(x)

def phaseD(a):
    e_addr(a)
    a(f"""
    s_cmp_ge_u32 s{S_TB}, 28
    s_cbranch_scc1 KD_SKIP
    KD_WL:
    s_cmp_ge_u32 s{S_DM0}, 131072
    s_cbranch_scc1 KD_WD
    """)
    for _ in range(8):
        for x in d_wdma(): a(x)
    a(f"""
    s_branch KD_WL
    KD_WD:
    s_lshl_b32 s40, s{S_TG}, 2
    s_add_u32 s40, s40, s{S_W}
    s_lshl_b32 s41, s40, 16
    s_add_u32 s41, s41, {hex(WS_H2)}
    s_lshl_b32 s42, s40, 10
    s_add_u32 s42, s42, {hex(FH)}
    s_mul_i32 s44, s40, {112*2048}
    s_lshl_b32 s45, s{S_FB}, 13
    s_add_u32 s44, s44, s45
    s_add_u32 s44, s44, {hex(WS_G)}
    s_add_u32 s45, s44, 4096
    v_mov_b32 v{VT+8}, {f32(-2*math.log2(math.e)*math.sqrt(2/math.pi)*0.044715)}
    v_mov_b32 v{VT+9}, v{VT+8}
    v_mov_b32 v{VT+10}, {f32(-2*math.log2(math.e)*math.sqrt(2/math.pi))}
    v_mov_b32 v{VT+11}, v{VT+10}
    v_add_u32 v{VTR+2}, 65536, v{VT2}
    v_add_u32 v{VTR+3}, 65536, v{VT2+1}
    """)
    order = [(c, uu) for uu in range(8) for c in range(2)] + [(0, uu) for uu in range(8, 16)] + [(1, uu) for uu in range(8, 16)]
    def bload(u):
        r = [f"buffer_load_dwordx4 {ar((4*u+q)*4,4)}, v{VLIN}, s[{SWS}:{SWS+3}], s41 offen offset:{q*1024} sc1" for q in range(4)]
        return r + ["s_add_u32 s41, s41, 4096"]
    def ar_(pos):
        buf = pos & 1; c, uu = order[pos]
        base = (VT2 + c) if uu < 8 else (VTR + 2 + c)
        return [f"ds_read_b64_tr_b16 {vr(FA+16*buf+(kk*2+i)*4+2*h,2)}, v{base} offset:{(uu%8)*8192 + kk*4096 + i*2048 + h*512}" for kk in range(2) for i in range(2) for h in range(2)]
    a("s_waitcnt vmcnt(0)")
    a("s_barrier")
    for x in ar_(0): a(x)
    poll(a, "KD", 42, 8)
    stamp(a, 10)
    vq = VQ()
    NPRE = 4
    for u in range(NPRE):
        for x in bload(u): a(x)
        vq.issue(('B', u), 4)
    a(f"s_waitcnt vmcnt({vq.need(('B', 0))}) lgkmcnt(0)")
    g0 = gelu_stream(0, False)
    per = sum(c for _, c in g0) / 7.5
    nb = NPRE
    for pos in range(32):
        c, uu = order[pos]
        head = []; mid = {}; nxt = ar_(pos+1) if pos + 1 < 32 else []
        if pos == 15: head = ["s_barrier"]
        if nb < 16 and pos not in (1, 3):
            b = bload(nb); vq.issue(('B', nb), 4); nb += 1
            mid[1] = b[0:1]; mid[3] = b[1:2]; mid[5] = b[2:3]; mid[6] = b[3:5]
        if XCPF and pos == 14: mid[2] = [CPF]
        edma = {1:0, 3:1, 15:2, 16:3, 17:4, 18:5, 19:6, 20:7, 21:8, 22:9, 23:10, 24:11, 25:12, 26:13}
        erd = {16:0, 17:1, 20:2, 21:3, 22:4, 23:5, 24:6, 25:7}
        if pos in erd:
            head = head + [f"s_waitcnt vmcnt({vq.need(('E', erd[pos]))})"]
            nxt = nxt + e_read_a(erd[pos])
        if pos in edma:
            pre, d, post = e_dma(edma[pos])
            head = head + pre; mid[1] = d[0:1]; mid[3] = d[1:2]; mid[5] = d[2:3]; mid[6] = d[3:4] + post
            vq.issue(('E', edma[pos]), 4)
        if pos + 1 < 32 and not vq.landed(('B', order[pos+1][1])):
            mid[7] = [f"s_waitcnt vmcnt({vq.need(('B', order[pos+1][1]))})"]
        fill = []
        if pos >= 24:
            fill = take(g0, per*(0.5 if pos == 24 else 1)) if pos < 31 else list(g0)
            if pos == 24: fill = [("s_nop 7", 32), ("s_nop 3", 16)] + fill
        rb_unit(a, pos, nxt, head, mid, fill, ACC + 64*c, uu == 0, uu=uu)
    stamp(a, 11)
    e_pre(a)
    for x, _ in gelu_stream(1, True): a(x)
    a(f"""
    s_lshl_b32 s46, s{S_TG}, 12
    s_lshl_b32 s47, s{S_FB}, 7
    s_add_u32 s46, s46, s47
    s_add_u32 s46, s46, {hex(FG)}
    """)
    publish(a, "KD", 46)
    a("s_branch KD_DONE")
    a("KD_SKIP:")
    a(f"""
    s_cmp_lg_u32 s2, 255
    s_cbranch_scc1 KD_NOEP
    s_lshl_b32 s44, s{S_W}, 9
    s_add_u32 s44, s44, {hex(FA_)}
    """)
    poll(a, "KEP", 44, 64, stride=8)
    a("s_barrier")
    a(f"s_mov_b32 s44, {hex(WS_EPOCH)}")
    flag_store(a, "KEP", 44)
    a("KD_NOEP:")
    for u in range(6): e_dma_now(a, u)
    a("s_waitcnt vmcnt(0)")
    for u in range(6):
        for x in e_read_a(u): a(x)
    a("s_waitcnt lgkmcnt(0)")
    for u in range(6, 12): e_dma_now(a, u)
    a("s_waitcnt vmcnt(16)")
    for u in range(6, 8):
        for x in e_read_a(u): a(x)
    a("s_waitcnt lgkmcnt(0)")
    for u in range(12, 14): e_dma_now(a, u)
    e_pre(a)
    a("KD_DONE:")
    stamp(a, 12)

EGB, EX1 = 192, 208
def e_pre(a):
    srd(a, SX, POUT, 2048*1024)
    a(f"""
    s_lshl_b32 s40, s{S_G}, 2
    s_and_b32 s30, s{S_TB}, 3
    s_add_u32 s40, s40, s30               ; tb
    s_lshr_b32 s41, s{S_TB}, 2            ; nb
    s_mul_i32 s42, s40, {112*2048}
    s_mul_i32 s30, s{S_W}, {28*2048}
    s_add_u32 s42, s42, s30
    s_add_u32 s42, s42, {hex(WS_G)}
    s_lshl_b32 s43, s{S_G}, 12
    s_mul_i32 s30, s{S_W}, {7*128}
    s_add_u32 s43, s43, s30
    s_add_u32 s43, s43, {hex(FG)}
    v_bfe_u32 v{VT+2}, v{VLIN}, 4, 5
    v_lshlrev_b32 v{VT+2}, 10, v{VT+2}
    v_lshrrev_b32 v{VT+3}, 9, v{VLIN}
    v_lshl_add_u32 v{VT+2}, v{VT+3}, 4, v{VT+2}
    v_lshlrev_b32 v{VT+3}, 5, v{VT+3}
    s_lshr_b32 s30, s{S_W}, 1
    s_and_b32 s31, s{S_W}, 1
    s_lshl_b32 s32, s40, 16
    s_lshl_b32 s33, s31, 15
    s_add_u32 s32, s32, s33
    s_lshl_b32 s33, s41, 7
    s_add_u32 s32, s32, s33
    s_lshl_b32 s34, s30, 6
    s_add_u32 s32, s32, s34
    s_add_u32 s33, s33, s34
    s_lshl_b32 s33, s33, 1
    s_add_u32 s33, s33, {WS_MOD + 5*2048}
    s_add_u32 s34, s32, {hex(WS_X1)}
    buffer_load_dwordx4 {vr(EGB,4)}, v{VT+3}, s[{SWS}:{SWS+3}], s33 offen sc1
    buffer_load_dwordx4 {vr(EGB+4,4)}, v{VT+3}, s[{SWS}:{SWS+3}], s33 offen offset:16 sc1
    buffer_load_dwordx4 {vr(EGB+8,4)}, v{VT+3}, s[{SWS}:{SWS+3}], s33 offen offset:64 sc1
    buffer_load_dwordx4 {vr(EGB+12,4)}, v{VT+3}, s[{SWS}:{SWS+3}], s33 offen offset:80 sc1
    """)

def phaseE(a):
    poll(a, "KE", 43, 7)
    vq = VQ()
    stamp(a, 13)
    def breg(u, q):
        if u < 8: return ar(128 + 16*u + 4*q, 4)
        if u < 12: return vr(64 + 16*(u-8) + 4*q, 4)
        return vr(160 + 16*(u-12) + 4*q, 4)
    def areg(u, j):
        return ar(16*u + 4*j, 4) if u < 8 else vr(FA + 16*(u & 1) + 4*j, 4)
    def bl(u):
        r = [f"buffer_load_dwordx4 {breg(u,q)}, v{VLIN}, s[{SWS}:{SWS+3}], s42 offen offset:{q*1024} sc1" for q in range(4)] + ["s_add_u32 s42, s42, 4096"]
        vq.issue(('B', u, 0), 2); vq.issue(('B', u, 1), 2)
        return r
    NPRE = 6
    for u in range(NPRE):
        for x in bl(u): a(x)
    for u in (8, 9):
        for x in e_read(u, lambda o: vr(FA + 16*(u & 1) + o, 2)): a(x)
    for u in range(14):
        for kk in range(2):
            a(f"s_waitcnt vmcnt({vq.need(('B', u, kk))})" + (" lgkmcnt(0)" if u >= 8 and kk == 0 else ""))
            ex = []
            if kk == 0 and u + NPRE < 14: ex = bl(u + NPRE)
            if kk == 0 and u + NPRE == 14:
                ex = [f"buffer_load_dwordx4 {vr(EX1,4)}, v{VT+2}, s[{SWS}:{SWS+3}], s34 offen sc1",
                      f"buffer_load_dwordx4 {vr(EX1+4,4)}, v{VT+2}, s[{SWS}:{SWS+3}], s34 offen offset:32 sc1"]
                vq.issue(('X', 1), 2)
            n = 0
            for i in range(2):
                for th in range(2):
                    d = vr(ACC + (i*2+th)*16, 16)
                    a(mfma(d, areg(u, kk*2+i), breg(u, kk*2+th), "0" if (u == 0 and kk == 0) else d))
                    for x in (ex[n:n+1] if n < 3 else ex[n:]): a(x)
                    n += 1
        if 8 <= u < 12:
            for x in e_read(u+2, lambda o: vr(FA + 16*(u & 1) + o, 2)): a(x)
    stamp(a, 14)
    a(f"""
    v_add_u32 v{VT+4}, s62, v{VLIN}
    s_lshl_b32 s50, s{S_W}, 12
    v_add_u32 v{VT+5}, s50, v{VLIN}
    s_nop 7
    s_nop 1
    """)
    for q in range(16):
        a(f"ds_write_b128 v{VT+4}, {vr(ACC+4*q,4)} offset:{q*1024}")
    a("s_waitcnt lgkmcnt(0)")
    a("s_barrier")
    for w in range(4):
        for q in range(4):
            a(f"ds_read_b128 {vr(ACC+16*w+4*q,4)}, v{VT+5} offset:{w*16384 + q*1024}")
    a("s_waitcnt vmcnt(0)")
    for d in range(8):
        a(f"v_lshlrev_b32 v{104+2*d}, 16, v{EX1+d}")
        a(f"v_and_b32 v{105+2*d}, 0xffff0000, v{EX1+d}")
    a("s_waitcnt lgkmcnt(0)")
    for k in range(0, 16, 2):
        a(f"v_pk_add_f32 v[{k}:{k+1}], v[{k}:{k+1}], v[{16+k}:{17+k}]")
        a(f"v_pk_add_f32 v[{32+k}:{33+k}], v[{32+k}:{33+k}], v[{48+k}:{49+k}]")
    for k in range(0, 16, 2):
        a(f"v_pk_add_f32 v[{k}:{k+1}], v[{k}:{k+1}], v[{32+k}:{33+k}]")
    for k in range(0, 16, 2):
        a(f"v_pk_fma_f32 v[{k}:{k+1}], v[{k}:{k+1}], v[{EGB+k}:{EGB+1+k}], v[{104+k}:{105+k}]")
    for d in range(8):
        a(f"v_cvt_pk_bf16_f32 v{32+d}, v{2*d}, v{2*d+1}")
    a(f"""
    buffer_store_dwordx4 v[32:35], v{VT+2}, s[{SX}:{SX+3}], s32 offen
    buffer_store_dwordx4 v[36:39], v{VT+2}, s[{SX}:{SX+3}], s32 offen offset:32
    """)
    if STAMP: a("s_waitcnt vmcnt(0)")
    stamp(a, 15)

def finish(a, name, kidx):
    stamp_out(a)
    rt_end(a, kidx, SWS)
    a(f"{name}_END:")
    a("s_endpgm")

def gen():
    a = Asm(); setup(a, "KM", 256)
    phaseB(a); phaseC(a); phaseD(a); phaseE(a); finish(a, "KM", 0); slow_paths(a)
    a("CODE_END:")
    a("s_endpgm")
    return kernel_text(KNAME, a.text(), 512, 256)
```

```python
from common import *
from gemm import *
import math
ACC = 0
S = [128, 144]
M = [160, 176]
P = [192, 200]
E = 208
L = [216, 217]
LT = [218, 219]
VLIN = 220
VTR = 221
VDMA = 225
VB = 229
VKV = 230
VT = 232
VWO = 248
VT2 = 252
VST = 255
FA = 128
AQ, AK, AV, AA, AB = 0, 64, 128, 192, 224
HB, KVD, WR = 0, 65536, 98304
KM_LDS = 163840
SW, SWS, SX = 8, 12, 16
S_W, S_WOFF, S_WSTEP, S_RING, S_CNT, S_RSLOT, S_DSLOT, S_DOFF, S_RET = 20, 21, 22, 23, 24, 25, 26, 27, 28
S_T0 = 30
S_AM0, S_AOFF = 34, 35
S_G, S_TB = 38, 39
S_AG, S_ATB = 3, 37
PX, PK, PV_, PWQ, PWO, PBX, PWG, PWU, PWD, PC, PWM, POUT, PDBG, PWS = 64, 66, 68, 70, 72, 74, 76, 78, 80, 82, 84, 86, 88, 90
TAG = 4
KNAME = 'adaLN_cond__sliding_block_cached__geglu_ffn__prompt_kernel'
QS = math.log2(math.e) / math.sqrt(128.0)
WS_EPOCH = WS_FLAG + 0x1C000
FP, FH, FG, FA_, MODG = WS_FLAG, WS_FLAG + 0x8000, WS_FLAG + 0x10000, WS_FLAG + 0x18000, WS_FLAG + 0x1A000
import os
BIAS = float(os.environ.get('BIAS', '64'))
THR = 2.0**float(os.environ.get('THR', '64'))
FUSED = True
STAMP = False
SPIN_MAX = 1 << 15
CDMA = os.environ.get('CDMA', '0') == '1'
OUTF = os.environ.get('OUTF', '')
import os
SLEEP0 = int(os.environ.get('SLEEP0', '8'))
SLEEP1 = int(os.environ.get('SLEEP1', '0'))
SPF = 48
S_PFO, S_PFS, S_PF2 = 52, 53, 54
VPF = 243

def sc(): return " sc1" if FUSED else ""
def stamp(a, k):
    if STAMP:
        a("s_memrealtime s[94:95]" if os.environ.get('RTS') else "s_memtime s[94:95]")
        a("s_waitcnt lgkmcnt(0)")
        a(f"v_writelane_b32 v{VST}, s94, {k}")
def stamp_out(a):
    if STAMP:
        a(f"""
        s_lshl_b32 s44, s2, 9
        s_lshl_b32 s45, s{S_W}, 7
        s_add_u32 s44, s44, s45
        s_add_u32 s44, s44, 0x3000000
        v_lshrrev_b32 v0, 2, v{VLIN}
        s_mov_b64 exec, 0xffffffff
        buffer_store_dword v{VST}, v0, s[{SWS}:{SWS+3}], s44 offen
        s_mov_b64 exec, -1
        """)

def setup(a, name, nwg):
    a(f"""
    s_cmp_ge_u32 s2, {nwg}
    s_cbranch_scc1 {name}_END
    {"s_memrealtime s[96:97]" if RT else ""}
    {("s_memrealtime s[92:93]" if os.environ.get('RTS') else "s_memtime s[92:93]") if STAMP else ""}
    s_load_dwordx16 s[64:79], s[0:1], 0
    s_load_dwordx8 s[80:87], s[0:1], 64
    s_load_dwordx4 s[88:91], s[0:1], {KARG['dbg']}
    v_and_b32 v{VT}, 63, v0
    v_lshrrev_b32 v{VT+1}, 6, v0
    v_lshlrev_b32 v{VLIN}, 4, v{VT}
    v_readfirstlane_b32 s{S_W}, v{VT+1}
    s_and_b32 s{S_G}, s2, 7
    s_lshr_b32 s{S_TB}, s2, 3
    s_and_b32 s{S_AG}, s2, 6
    s_and_b32 s44, s{S_TB}, 1
    s_add_u32 s{S_AG}, s{S_AG}, s44
    s_and_b32 s{S_ATB}, s2, 1
    s_lshl_b32 s{S_ATB}, s{S_ATB}, 4
    s_lshr_b32 s44, s2, 4
    s_add_u32 s{S_ATB}, s{S_ATB}, s44
    v_lshrrev_b32 v{VT+2}, 5, v{VT}
    v_lshlrev_b32 v{VT+2}, 10, v{VT+2}
    v_bfe_u32 v{VT+3}, v{VT}, 2, 2
    v_lshl_add_u32 v{VT+2}, v{VT+3}, 7, v{VT+2}
    v_and_b32 v{VT+4}, 16, v{VT}
    v_lshl_add_u32 v{VT+2}, v{VT+4}, 1, v{VT+2}
    v_and_b32 v{VT+4}, 1, v{VT}
    v_lshl_add_u32 v{VT+2}, v{VT+4}, 4, v{VT+2}
    v_and_b32 v{VT+4}, 2, v{VT}
    v_lshl_add_u32 v{VT+2}, v{VT+4}, 2, v{VT+2}
    v_lshrrev_b32 v{VT+3}, 1, v{VT+3}
    v_lshl_add_u32 v{VT2}, v{VT+3}, 6, v{VT+2}
    v_xor_b32 v{VT+3}, 1, v{VT+3}
    v_lshl_add_u32 v{VT2+1}, v{VT+3}, 6, v{VT+2}
    v_lshrrev_b32 v{VT+2}, 3, v{VT}
    v_and_b32 v{VT+3}, 7, v{VT}
    v_bfe_u32 v{VT+4}, v{VT}, 4, 1
    v_lshlrev_b32 v{VT+4}, 2, v{VT+4}
    v_xor_b32 v{VT+3}, v{VT+3}, v{VT+4}
    v_lshlrev_b32 v{VT+3}, 4, v{VT+3}
    v_lshl_add_u32 v{VWO}, v{VT+2}, 10, v{VT+3}
    """)
    for j in range(1, 4):
        a(f"v_add_u32 v{VWO+j}, {j*(8*1024-1024)}, v{VWO}")
    if STAMP: a(f"v_mov_b32 v{VST}, 0")

def setup2(a):
    a("s_waitcnt lgkmcnt(0)")
    a(f"s_load_dwordx2 s[{TAG}:{TAG+1}], s[{PWS}:{PWS+1}], {hex(WS_EPOCH)}")
    srd(a, SWS, PWS, WS_SIZE)

def poll(a, tag, soff, nflags, dma=False, stride=128):
    sh = {128: "v_lshlrev_b32 v%d, 3, v%d", 64: "v_lshlrev_b32 v%d, 2, v%d", 8: "v_lshrrev_b32 v%d, 1, v%d"}[stride] % (VT+13, VLIN)
    a(f"""
    {sh}
    v_min_u32 v{VT+13}, {stride*(nflags-1)}, v{VT+13}
    s_mov_b32 s47, {SPIN_MAX}
    {tag}_POLL:
    buffer_load_dwordx2 v[{VT+14}:{VT+15}], v{VT+13}, s[{SWS}:{SWS+3}], s{soff} offen sc1
    s_sub_u32 s47, s47, 1
    s_waitcnt vmcnt(0)
    v_cmp_ne_u64 vcc, s[{TAG}:{TAG+1}], v[{VT+14}:{VT+15}]
    s_cbranch_vccz {tag}_GO
    s_cmp_eq_u32 s47, 0
    s_cbranch_scc1 {tag}_GO
    """)
    if SLEEP1: a(f"s_sleep {SLEEP1}")
    if dma:
        a(f"""
        s_cmp_ge_u32 s{S_DM0}, 131072
        s_cbranch_scc1 {tag}_POLL
        """)
        for _ in range(8):
            for x in d_wdma(): a(x)
    a(f"""
    s_branch {tag}_POLL
    {tag}_GO:
    """)

def flag_store(a, tag, soff):
    a(f"""
    s_cmp_lg_u32 s{S_W}, 0
    s_cbranch_scc1 {tag}_PUB
    v_mov_b32 v{VT+13}, 0
    v_mov_b32 v{VT+14}, s{TAG}
    v_mov_b32 v{VT+15}, s{TAG+1}
    s_mov_b64 exec, 1
    buffer_store_dwordx2 v[{VT+14}:{VT+15}], v{VT+13}, s[{SWS}:{SWS+3}], s{soff} offen sc1
    s_mov_b64 exec, -1
    {tag}_PUB:
    """)
def publish(a, tag, soff):
    a("s_waitcnt vmcnt(0) lgkmcnt(0)")
    a("s_barrier")
    flag_store(a, tag, soff)

def gemm_reads(buf, slot, kofs):
    A = lambda i: AA + 16*buf + 4*i
    B = lambda th: AB + 8*buf + 4*th
    rb = lambda th: f"ds_read_b128 {ar(B(th),4)}, v{VB} offset:{kofs + th*1024}"
    ra = lambda i, h: f"ds_read_b64_tr_b16 {ar(A(i)+2*h,2)}, v{VTR+i} offset:{slot*4096 + h*1024}"
    return [rb(0), ra(0,0), ra(0,1), rb(1), ra(1,0), ra(1,1), ra(2,0), ra(2,1), ra(3,0), ra(3,1)]
def w_dma(slot):
    r = [f"s_add_u32 m0, s{S_RING}, {slot*4096}"]
    d = [f"buffer_load_dwordx4 v{VDMA+j}, s[{SW}:{SW+3}], s{S_WOFF} offen offset:{j*1024} lds" for j in range(4)]
    return r, d, [f"s_add_u32 s{S_WOFF}, s{S_WOFF}, s{S_WSTEP}"]
def aux_dma():
    pre = [f"s_mov_b32 m0, s{S_AM0}"]
    d = [f"buffer_load_dwordx4 v{VLIN}, s[{SWS}:{SWS+3}], s{S_AOFF} offen lds"]
    post = [f"s_add_u32 s{S_AM0}, s{S_AM0}, 4096", f"s_add_u32 s{S_AOFF}, s{S_AOFF}, 4096",
            f"s_cmp_eq_u32 s{S_AM0}, s{S_AM0+2}", f"s_cselect_b32 s{S_AOFF}, s{S_AM0+3}, s{S_AOFF}"]
    return pre, d, post
def kv_dma():
    pre = [f"s_mov_b32 m0, s{S_DSLOT}"]
    d = [f"buffer_load_dwordx4 v{VDMA+j}, s[{SW}:{SW+3}], s{S_DOFF} offen offset:{j*1024} sc1 lds" for j in range(4)]
    return pre, d

def exp_stream(h):
    e = lambda k: f"v{E + (k % 8)}"
    lt = f"v{LT[h]}"
    seq = []
    for k in range(16):
        seq.append((f"v_exp_f32 {e(k)}, v{S[h]+k}", 8))
        if k >= 2 and k % 2 == 0:
            j = k - 2
            if j == 0: seq.append((f"v_add_f32 {lt}, {e(0)}, {e(1)}", 4))
            else:
                seq.append((f"v_add_f32 {lt}, {lt}, {e(j)}", 4))
                seq.append((f"v_add_f32 {lt}, {lt}, {e(j+1)}", 4))
        if k >= 3 and k % 2 == 1:
            j = k - 3
            seq.append((f"v_cvt_pk_bf16_f32 v{P[h]+j//2}, {e(j)}, {e(j+1)}", 5))
    seq.append((f"v_add_f32 {lt}, {lt}, {e(14)}", 4))
    seq.append((f"v_add_f32 {lt}, {lt}, {e(15)}", 4))
    seq.append((f"v_cmp_lt_f32 vcc, s{S_T0}, {lt}", 4))
    seq.append((f"v_cvt_pk_bf16_f32 v{P[h]+7}, {e(14)}, {e(15)}", 5))
    return seq

def spread(gaps, fixed_cost, stream, g0, g1):
    total = sum(c for _, c in stream) + sum(fixed_cost[g0:g1+1])
    per = total / (g1 - g0 + 1)
    it = 0; acc = 0.0
    for g in range(g0, g1+1):
        acc += fixed_cost[g]
        target = per * (g - g0 + 1)
        while it < len(stream) and (g == g1 or acc + stream[it][1]/2 <= target):
            gaps[g].append(stream[it][0]); acc += stream[it][1]; it += 1

site_counter = [0]
sites = {0: [], 1: []}
def check_site(h):
    k = site_counter[0]; site_counter[0] += 1
    sites[h].append(k)
    return [f"s_cbranch_vccnz KA_TR{k}", f"KA_RET{k}:", f"v_add_f32 v{L[h]}, v{L[h]}, v{LT[h]}"]

def qk_mf(h, buf, czero=False):
    return [mfma(vr(S[h],16), ar(AK+32*buf+4*ks,4), ar(AQ+(ks*2+h)*4,4),
                 ("0" if czero else vr(M[h],16)) if ks == 0 else vr(S[h],16)) for ks in range(8)]
def pv_mf(h, buf, czero=False):
    r = []
    for kk in range(2):
        for dt in range(4):
            d = vr(ACC + (dt*2+h)*16, 16)
            r.append(mfma(d, ar(AV+32*buf+(kk*4+dt)*4,4), vr(P[h]+4*kk,4), "0" if (czero and kk == 0) else d))
    return r
def kvloc(t): return (VKV, t*16384) if t < 2 else (VLIN, ((t-2) & 3)*16384)
def k_reads(t): return [f"ds_read_b128 {ar(AK+32*(t&1)+4*j,4)}, v{kvloc(t)[0]} offset:{kvloc(t)[1]+j*1024}" for j in range(8)]
def v_reads(t): return [f"ds_read_b128 {ar(AV+32*(t&1)+4*j,4)}, v{kvloc(t)[0]} offset:{kvloc(t)[1]+8192+j*1024}" for j in range(8)]
def kv_grp(t):
    return ([f"s_add_u32 m0, s{S_DSLOT}, {((t-2) & 3)*16384}"],
            [f"buffer_load_dwordx4 v{VLIN}, s[{SWS}:{SWS+3}], s{S_DOFF} offen offset:{j*1024} sc1 lds" for j in range(4)],
            [f"s_add_u32 s{S_DOFF}, s{S_DOFF}, 16384"])
def wo_m0(sl): return (S_RING, sl*4096) if sl < 4 else (29, KVD + (sl-4)*4096)
def wo_grp(u, sl):
    off = (u % 16)*32768 + (u // 16)*128
    return ([f"s_add_u32 m0, s{wo_m0(sl)[0]}, {wo_m0(sl)[1]}", f"s_add_u32 s{S_WSTEP}, s{S_WOFF}, {off}"],
            [f"buffer_load_dwordx4 v{VWO+j}, s[{SW}:{SW+3}], s{S_WSTEP} offen offset:{j*1024} lds" for j in range(4)], [])

def init_stream(h):
    t = VT + 4 + 2*h
    r = [f"v_max3_f32 v{t}, v{S[h]}, v{S[h]+1}, v{S[h]+2}"]
    for k in range(3, 15, 2): r.append(f"v_max3_f32 v{t}, v{t}, v{S[h]+k}, v{S[h]+k+1}")
    r += [f"v_max_f32 v{t}, v{t}, v{S[h]+15}", f"v_mov_b32 v{t+1}, v{t}", "s_nop 1", f"v_permlane32_swap_b32 v{t}, v{t+1}", "s_nop 0",
          f"v_max_f32 v{t}, v{t}, v{t+1}", f"v_sub_f32 v{t}, {f32(-BIAS)}, v{t}"]
    r += [f"v_add_f32 v{S[h]+k}, v{S[h]+k}, v{t}" for k in range(16)]
    return [(x, 4) for x in r], [(f"v_mov_b32 v{M[h]+k}, v{t}", 4) for k in range(16)]

def cvtq_stream(th):
    r = []
    n = 0
    for i in range(4):
        for sub in range(2):
            base = ACC + (i*2+th)*16 + 8*sub
            t = E + 4*(n & 1); n += 1
            for d in range(4): r.append((f"v_cvt_pk_bf16_f32 v{t+d}, v{base+2*d}, v{base+2*d+1}", 5))
            for d in range(4): r.append((f"v_accvgpr_write_b32 a{AQ + ((2*i+sub)*2+th)*4 + d}, v{t+d}", 5))
    return r

def split_st1(st1):
    tot = sum(c for _, c in st1); accu = 0; cut = 0
    while accu + st1[cut][1] <= tot*0.52: accu += st1[cut][1]; cut += 1
    return st1[:cut], st1[cut:]

CPF = f"global_load_dwordx2 v[{VT+14}:{VT+15}], v254, s[6:7]"
XCPF = bool(os.environ.get('XCPF'))
def period(a, p, vq, pend1, extra1=(), groups=(), pf=None):
    par = p & 1
    mf = qk_mf(0, par) + pv_mf(1, par ^ 1, czero=(p == 1)) + qk_mf(1, par) + pv_mf(0, par)
    gaps = [[] for _ in range(32)]
    cost = [0]*32
    def put(g, instrs, c=None):
        gaps[g] += instrs
        cost[g] += (4*len(instrs) if c is None else c)
    if p < 15:
        put(0, [f"s_waitcnt vmcnt({vq.need(('KV', p+1))})", "s_barrier"], 20)
        kr = k_reads(p+1); vr_ = v_reads(p+1)
        put(7, kr[0:1]); put(8, kr[1:5]); put(9, kr[5:8])
        put(23, vr_[0:1]); put(24, vr_[1:5]); put(25, vr_[5:8])
        put(31, ["s_waitcnt lgkmcnt(0)"], 0)
    else:
        put(0, ["s_barrier"], 20)
        for g_ in (8, 24): put(g_, ["s_nop 5"], 24)
        for g_ in (9, 25): put(g_, ["s_nop 1"], 8)
    if pf:
        for k, x in enumerate(pf[0]): gaps[1 + k] = [x] + gaps[1 + k]
        put(8, [pf[1]], 8)
        vq.issue(('PF', p))
    pos = [(10, [12, 14, 16, 18]), (19, [20, 22, 27, 29])]
    for (tag, (pre, d, post)), (g0, gs) in zip(groups, pos):
        for k, x in enumerate(pre): gaps[g0 + k] = [x] + gaps[g0 + k]
        if len(pre) > 1 and g0 + 1 == gs[0]: pass
        for x, g in zip(d, gs): put(g, [x], 8)
        for x in post: gaps[gs[len(d)-1] + 1] = [x] + gaps[gs[len(d)-1] + 1]
        vq.issue(tag, len(d))
    if XCPF and p in (3, 9, 14):
        put(24, [CPF], 8); vq.issue(('CP', p))
    spread(gaps, cost, pend1, 0, 6)
    gaps[7] = check_site(1) + gaps[7]
    if extra1: spread(gaps, cost, list(extra1), 7, 9)
    spread(gaps, cost, exp_stream(0), 10 if extra1 else 9, 22)
    gaps[23] = check_site(0) + gaps[23]
    h1, h2 = split_st1(exp_stream(1))
    spread(gaps, cost, h1, 25, 31)
    emit(a, mf, gaps)
    return h2

def norm_stream(h, pk):
    r = []
    n = 0
    for dt in range(4):
        base = ACC + (dt*2+h)*16
        for sub in range(2):
            b = base + 8*sub
            t = VT + 4*(n & 1); n += 1
            if pk:
                for k in range(0, 8, 2): r.append((f"v_pk_mul_f32 v[{b+k}:{b+k+1}], v[{b+k}:{b+k+1}], v[{LT[0]}:{LT[1]}] op_sel:[0,{h}] op_sel_hi:[1,{h}]", 4))
            else:
                for k in range(8): r.append((f"v_mul_f32 v{b+k}, v{b+k}, v{LT[h]}", 4))
            for d in range(4): r.append((f"v_cvt_pk_bf16_f32 v{t+d}, v{b+2*d}, v{b+2*d+1}", 5))
            r.append((f"ds_write_b128 v{VT+8}, {vr(t,4)} offset:{HB + (2*dt+sub)*2048 + h*1024}", 20))
    return r
def linv(h):
    return [f"v_mov_b32 v{VT+9}, v{L[h]}", "s_nop 1", f"v_permlane32_swap_b32 v{L[h]}, v{VT+9}", "s_nop 0",
            f"v_add_f32 v{L[h]}, v{L[h]}, v{VT+9}", f"v_rcp_f32 v{LT[h]}, v{L[h]}", "s_nop 0"]

def rb_unit(a, u, areads_next, head, mid, fill, acc_base, first, uu=None):
    buf = u & 1; ku = (u % 16 if uu is None else uu) * 2
    mf = []
    for kk in range(2):
        for i in range(2):
            for th in range(2):
                d = vr(acc_base + (i*2+th)*16, 16)
                mf.append(mfma(d, vr(FA + 16*buf + (kk*2+i)*4, 4), ar(((ku+kk)*2+th)*4, 4), "0" if (first and kk == 0) else d))
    gaps = [[] for _ in range(8)]; cost = [0]*8
    gaps[0] += head
    n = len(areads_next); per = -(-n // 4) if n else 0
    for g in range(4):
        x = areads_next[g*per:(g+1)*per]; gaps[g] += x; cost[g] += 4*len(x)
    for g, x in mid.items():
        gaps[g] += x; cost[g] += 6*len(x)
    if n: gaps[7] = ["s_waitcnt lgkmcnt(0)"] + gaps[7]
    if fill: spread(gaps, cost, fill, 0, 7)
    emit(a, mf, gaps)

def take(stream, frac_cost):
    out = []; c = 0
    while stream and c + stream[0][1]/2 <= frac_cost:
        x = stream.pop(0); out.append(x); c += x[1]
    return out


def silu_pack(a, src, n, t0, t1, dst):
    for i in range(n):
        a(f"v_lshlrev_b32 v{t0+2*i}, 16, v{src+i}")
        a(f"v_and_b32 v{t0+2*i+1}, 0xffff0000, v{src+i}")
    for i in range(2*n): a(f"v_mul_f32 v{t1+i}, {f32(-math.log2(math.e))}, v{t0+i}")
    for i in range(2*n): a(f"v_exp_f32 v{t1+i}, v{t1+i}")
    a("s_nop 0")
    for i in range(2*n): a(f"v_add_f32 v{t1+i}, 1.0, v{t1+i}")
    for i in range(2*n): a(f"v_rcp_f32 v{t1+i}, v{t1+i}")
    a("s_nop 0")
    for i in range(2*n): a(f"v_mul_f32 v{t0+i}, v{t0+i}, v{t1+i}")
    for i in range(n): a(f"v_cvt_pk_bf16_f32 v{dst+i}, v{t0+2*i}, v{t0+2*i+1}")

PRE = [14, 24]
RING = [k for k in range(32) if k not in PRE]
STG = [24576, 24576+4096]
VTK = [128, 129, 130, 131]
XP = 128
VBQ = 192
VHW = 196
VMA = 197
VSTAT = 198
VTSL = [232, 233, 234, 235]
VFL = 202
MB = [208, 236]
MT = 216
SCR = WR + 3*4096
MSC = HB + 7*8192
VTS2 = 246

def wq_dma(k, m0):
    pre = [f"s_add_u32 m0, s{m0[0]}, {m0[1]}", f"s_add_u32 s{S_WSTEP}, s{S_WOFF}, {k*16*8192}", f"s_and_b32 s{S_WSTEP}, s{S_WSTEP}, 0x3fffff"]
    d = [f"buffer_load_dwordx4 v{VDMA+j}, s[{SW}:{SW+3}], s{S_WSTEP} offen offset:{j*1024} lds" for j in range(4)]
    return pre, d

def x_loads(a):
    for rg in range(2):
        for i in range(8):
            a(f"buffer_load_dwordx4 {vr(XP+(rg*8+i)*4,4)}, v{208+i}, s[{SX}:{SX+3}], s{40+rg} offen")

def front(a):
    a(f"""
    v_lshrrev_b32 v{VT+2}, 4, v{VT}
    v_and_b32 v{VT+3}, 15, v{VT}
    v_lshlrev_b32 v{VT+4}, 2, v{VT+2}
    v_xor_b32 v{VT+3}, v{VT+3}, v{VT+4}
    v_lshlrev_b32 v{VT+3}, 4, v{VT+3}
    v_lshl_add_u32 v{VDMA}, v{VT+2}, 13, v{VT+3}
    """)
    for j in range(1, 4):
        a(f"v_add_u32 v{VDMA+j}, {j*(4*8192-1024)}, v{VDMA}")
    a(f"""
    s_movk_i32 s60, 0x3ff
    v_lshrrev_b32 v{VT+6}, 3, v{VT}             ; r
    v_and_b32 v{VT+7}, 7, v{VT}                 ; ch
    v_lshlrev_b32 v{VT+5}, 10, v{VT+6}
    {'s_bfe_u32 s43, s2, 0x30004' if os.environ.get('ROT') else 's_mov_b32 s43, 0'}
    s_lshl_b32 s44, s43, 7
    v_lshl_add_u32 v{VT+4}, v{VT+7}, 4, s44
    """)
    for i in range(8):
        a(f"v_add_u32 v{VT+3}, {i*128}, v{VT+4}")
        a(f"v_and_or_b32 v{208+i}, v{VT+3}, s60, v{VT+5}")
    a(f"""
    s_lshl_b32 s40, s{S_ATB}, 16
    s_lshl_b32 s41, s{S_W}, 14
    s_add_u32 s40, s40, s41
    s_add_u32 s41, s40, 8192
    s_lshl_b32 s{S_RING}, s{S_W}, 14
    s_add_u32 s{S_RING}, s{S_RING}, {WR}
    s_lshl_b32 s29, s{S_W}, 13
    s_lshl_b32 s44, s{S_AG}, 10
    s_lshl_b32 s45, s{S_W}, 8
    s_add_u32 s{S_WOFF}, s44, s45
    s_lshl_b32 s44, s43, 19
    s_add_u32 s{S_WOFF}, s{S_WOFF}, s44
    s_mov_b32 s62, 0x05040100
    s_mov_b32 s63, 0x07060302
    s_getpc_b64 s[6:7]
    KF_PC:
    s_sub_u32 s6, s6, KF_PC-{KNAME}
    s_subb_u32 s7, s7, 0
    v_lshlrev_b32 v254, 3, v0
    s_lshl_b32 s44, s{S_TB}, 11
    v_add_u32 v254, s44, v254
    v_min_u32 v254, CODE_END-{KNAME}-8, v254
    global_load_dwordx2 a[240:241], v254, s[6:7]
    s_cmp_ge_u32 s2, 192
    s_cbranch_scc1 KF_KV
    s_lshr_b32 s44, s{S_TB}, 2
    s_lshl_b32 s44, s44, 5
    s_lshl_b32 s45, s{S_G}, 2
    s_add_u32 s44, s44, s45
    s_and_b32 s45, s{S_TB}, 3
    s_add_u32 s44, s44, s45
    s_lshl_b32 s42, s44, 5
    s_mul_i32 s45, s{S_W}, {128*6144}
    s_add_u32 s30, s42, s45
    s_add_u32 s31, s30, 6144
    s_add_u32 s32, s30, {64*6144}
    s_add_u32 s33, s30, {65*6144}
    v_lshrrev_b32 v0, 1, v{VT}                  ; rr
    v_mul_u32_u24 v1, {2*6144}, v0
    v_and_b32 v2, 1, v{VT}
    v_lshl_add_u32 v1, v2, 4, v1
    v_lshlrev_b32 v0, 2, v0
    s_lshl_b32 s34, s{S_W}, 8
    """)
    setup2(a)
    srd(a, 48, PWM, 512*6144)
    srd(a, 52, PC, 1024)
    a(f"""
    buffer_load_dword v4, v0, s[52:55], s34 offen
    buffer_load_dword v5, v0, s[52:55], s34 offen offset:128
    """)
    for q in range(4):
        a(f"buffer_load_dwordx4 {vr(8+4*q,4)}, v1, s[48:51], s{30+q} offen")
    srd(a, SX, PX, 2048*1024)
    a(f"s_cmp_lt_u32 s2, 64")
    a("s_cbranch_scc1 KF_W0")
    x_loads(a)
    a("s_branch KF_W1")
    a("KF_W0:")
    a("s_waitcnt vmcnt(0)")
    a("KF_W1:")
    stamp(a, 0)
    if STAMP: a(f"v_writelane_b32 v{VST}, s92, 27")
    a("s_waitcnt vmcnt(20)")
    silu_pack(a, 4, 2, 24, 28, 32)
    for st in range(2):
        a(f"s_waitcnt vmcnt({18-2*st})")
        r0 = 8 + 8*st; r1 = r0 + 4
        for d in range(4):
            a(f"v_perm_b32 v{24+2*d}, v{r1+d}, v{r0+d}, s62")
            a(f"v_perm_b32 v{25+2*d}, v{r1+d}, v{r0+d}, s63")
        for j in range(8):
            a(f"v_dot2_f32_bf16 v{40+j}, v{24+j}, v{32+st}, {'0' if st == 0 else f'v{40+j}'}")
    a("s_nop 2")
    for j in range(4): a(f"v_permlane32_swap_b32 v{40+j}, v{44+j}")
    a("s_nop 0")
    for j in range(4): a(f"v_add_f32 v{40+j}, v{40+j}, v{44+j}")
    a("s_nop 1")
    for j in range(2): a(f"v_permlane16_swap_b32 v{40+j}, v{42+j}")
    a("s_nop 0")
    for j in range(2): a(f"v_add_f32 v{40+j}, v{40+j}, v{42+j}")
    for r in (8, 4, 2):
        a("s_nop 1")
        for j in range(2): a(f"v_add_f32_dpp v{40+j}, v{40+j}, v{40+j} row_ror:{r} row_mask:0xf bank_mask:0xf")
    a(f"""
    v_lshlrev_b32 v34, 5, v2
    v_lshrrev_b32 v35, 5, v{VT}
    v_lshl_add_u32 v34, v35, 4, v34
    v_bfe_u32 v35, v{VT}, 4, 1
    v_lshl_add_u32 v34, v35, 3, v34
    s_lshl_b32 s45, s{S_W}, 6
    s_add_u32 s45, s45, {SCR}
    v_add_u32 v34, s45, v34
    ds_write_b64 v34, v[40:41]
    v_and_b32 v36, 15, v{VT}
    v_lshlrev_b32 v36, 2, v36
    v_add_u32 v37, {SCR}, v36
    s_waitcnt lgkmcnt(0)
    s_barrier
    s_cmp_lg_u32 s{S_W}, 0
    s_cbranch_scc1 KF_X1
    ds_read_b32 v40, v37
    ds_read_b32 v41, v37 offset:64
    ds_read_b32 v42, v37 offset:128
    ds_read_b32 v43, v37 offset:192
    s_lshl_b32 s42, s42, 1
    s_waitcnt lgkmcnt(0)
    v_add_f32 v40, v40, v41
    v_add_f32 v42, v42, v43
    v_add_f32 v40, v40, v42
    v_cvt_pk_bf16_f32 v40, v40, v40
    v_and_b32 v40, 0xffff0000, v40
    s_mov_b64 exec, 0xffff
    s_cmp_lt_u32 s2, 64
    s_cbranch_scc1 KF_CRIT
    buffer_store_dword v40, v36, s[{SWS}:{SWS+3}], s42 offen sc1
    s_mov_b64 exec, -1
    s_branch KF_JOIN
    KF_CRIT:
    s_add_u32 s45, s{TAG}, 1
    v_mov_b32 v41, s45
    v_lshlrev_b32 v36, 1, v36
    s_lshl_b32 s42, s42, 1
    s_add_u32 s42, s42, {hex(MODG)}
    buffer_store_dwordx2 v[40:41], v36, s[{SWS}:{SWS+3}], s42 offen sc1
    s_mov_b64 exec, -1
    KF_X1:
    s_cmp_ge_u32 s2, 64
    s_cbranch_scc1 KF_JOIN
    """)
    x_loads(a)
    a(f"""
    s_branch KF_JOIN
    KF_KV:
    s_sub_u32 s44, s{S_TB}, 24
    s_lshl_b32 s44, s44, 1
    s_lshr_b32 s45, s{S_W}, 1
    s_add_u32 s44, s44, s45                     ; tile
    s_and_b32 s45, s{S_W}, 1
    s_lshl_b32 s30, s{S_G}, 19
    s_lshl_b32 s31, s44, 13
    s_add_u32 s30, s30, s31
    s_add_u32 s30, s30, {1536*256}
    s_lshl_b32 s31, s45, 12
    s_add_u32 s31, s31, s30
    s_lshl_b32 s32, s45, 7
    s_add_u32 s30, s30, s32                     ; K source: + 4(w&1)*32
    s_lshl_b32 s32, s{S_G}, 18
    s_lshl_b32 s33, s44, 14
    s_add_u32 s32, s32, s33
    s_lshl_b32 s33, s45, 12
    s_add_u32 s32, s32, s33
    s_add_u32 s32, s32, {hex(WS_KV)}
    s_add_u32 s33, s32, 8192
    v_and_b32 v4, 31, v{VT}
    v_lshrrev_b32 v5, 5, v{VT}
    v_lshlrev_b32 v6, 8, v4
    v_lshl_add_u32 v6, v5, 4, v6
    v_and_b32 v0, 0x13, v4
    v_and_b32 v1, 4, v4
    v_lshl_or_b32 v0, v1, 1, v0
    v_and_b32 v1, 8, v4
    v_lshrrev_b32 v1, 1, v1
    v_or_b32 v0, v0, v1
    v_lshlrev_b32 v0, 1, v0
    v_lshl_add_u32 v0, v5, 10, v0
    """)
    setup2(a)
    srd(a, 48, PK, 8*2048*256)
    srd(a, 52, PV_, 8*2048*256)
    srd(a, SX, PX, 2048*1024)
    stamp(a, 0)
    if STAMP: a(f"v_writelane_b32 v{VST}, s92, 27")
    x_loads(a)
    for q in range(4):
        a(f"buffer_load_dwordx4 {vr(8+4*q,4)}, v6, s[48:51], s30 offen offset:{q*32}")
    for dt in range(4):
        for j in range(8):
            key = (j & 3) + 8*(j >> 2)
            a(f"buffer_load_ushort v{32+8*dt+j}, v0, s[52:55], s31 offen offset:{key*256 + dt*64}")
    a("s_waitcnt vmcnt(32)")
    for q in range(4):
        a(f"buffer_store_dwordx4 {vr(8+4*q,4)}, v{VLIN}, s[{SWS}:{SWS+3}], s32 offen offset:{q*1024} sc1")
    a("s_waitcnt vmcnt(4)")
    for dt in range(4):
        for d in range(4):
            a(f"v_lshl_or_b32 v{64+4*dt+d}, v{33+8*dt+2*d}, 16, v{32+8*dt+2*d}")
        a(f"buffer_store_dwordx4 {vr(64+4*dt,4)}, v{VLIN}, s[{SWS}:{SWS+3}], s33 offen offset:{dt*1024} sc1")
    a("KF_JOIN:")
    a("s_waitcnt lgkmcnt(0)")
    a(f"s_add_u32 s{TAG}, s{TAG}, 1")
    a(f"s_add_u32 s{TAG+1}, s{TAG+1}, 1")
    stamp(a, 28)
    srd(a, SW, PWQ, 512*4096*2)
    units = [wq_dma(RING[q], (S_RING, q*4096)) for q in range(4)]
    def unit():
        pre, d = units.pop(0)
        for x in pre + d: a(x)
    if not os.environ.get('NOTOUCH'):
        a(f"""
        s_lshr_b32 s44, s2, 4
        s_lshl_b32 s44, s44, 13
        s_lshl_b32 s45, s{S_AG}, 10
        s_add_u32 s44, s44, s45
        s_lshl_b32 s45, s{S_W}, 8
        s_add_u32 s44, s44, s45
        v_lshrrev_b32 v{VT+2}, 1, v{VT}
        v_lshlrev_b32 v{VT+2}, 17, v{VT+2}
        v_and_b32 v{VT+3}, 1, v{VT}
        v_lshl_add_u32 v{VT+2}, v{VT+3}, 7, v{VT+2}
        """)
    unit(); unit()
    if not os.environ.get('NOTOUCH'):
        a(f"buffer_load_dword a242, v{VT+2}, s[{SW}:{SW+3}], s44 offen")
    a(f"""
    v_lshrrev_b32 v{VT+2}, 5, v{VT}
    v_lshlrev_b32 v{VT+2}, 11, v{VT+2}
    v_bfe_u32 v{VT+3}, v{VT}, 2, 2
    v_lshl_add_u32 v{VT+2}, v{VT+3}, 8, v{VT+2}
    v_and_b32 v{VT+4}, 16, v{VT}
    v_lshl_add_u32 v{VT+2}, v{VT+4}, 1, v{VT+2}
    v_and_b32 v{VT+4}, 1, v{VT}
    v_lshl_add_u32 v{VT+2}, v{VT+4}, 4, v{VT+2}
    v_and_b32 v{VT+4}, 2, v{VT}
    v_lshl_add_u32 v{VT+2}, v{VT+4}, 2, v{VT+2}
    """)
    for i in range(4):
        a(f"v_xor_b32 v{VT+4}, {i}, v{VT+3}")
        a(f"v_lshl_add_u32 v{VT+4}, v{VT+4}, 6, v{VT+2}")
        a(f"v_add_u32 v{VTR+i}, s{S_RING}, v{VT+4}")
    a(f"v_lshrrev_b32 v{VT+2}, 5, v{VT}")
    for m in range(4):
        a(f"v_or_b32 v{VT+3}, {2*m}, v{VT+2}")
        a(f"v_xor_b32 v{VT+3}, v{VT+3}, v{VT}")
        a(f"v_lshlrev_b32 v{VBQ+m}, 4, v{VT+3}")
    a(f"""
    v_xor_b32 v{VT+2}, v{VT+6}, v{VT+7}
    v_lshlrev_b32 v{VT+2}, 4, v{VT+2}
    v_lshrrev_b32 v{VT+3}, 1, v{VT+7}
    v_lshl_add_u32 v{VT+2}, v{VT+3}, 11, v{VT+2}
    v_and_b32 v{VT+3}, 1, v{VT+7}
    v_lshl_add_u32 v{VT+2}, v{VT+3}, 9, v{VT+2}
    s_lshr_b32 s44, s{S_W}, 1
    s_lshl_b32 s44, s44, 10
    s_and_b32 s45, s{S_W}, 1
    s_lshl_b32 s45, s45, 8
    s_add_u32 s44, s44, s45
    v_add_u32 v{VHW}, s44, v{VT+2}
    s_mov_b32 s61, 0x3f803f80
    s_waitcnt vmcnt({8 if os.environ.get('NOTOUCH') else 9})
    """)
    stamp(a, 19)
    st = VSTAT
    for rg in range(2):
        for k in range(32):
            x = XP + rg*32 + k
            a(f"v_dot2_f32_bf16 v{st+2*rg}, v{x}, s61, {'0' if k == 0 else f'v{st+2*rg}'}")
            a(f"v_dot2_f32_bf16 v{st+2*rg+1}, v{x}, v{x}, {'0' if k == 0 else f'v{st+2*rg+1}'}")
            if k == 15: unit()
    stamp(a, 20)
    for mod in ("quad_perm:[1,0,3,2]", "quad_perm:[2,3,0,1]", "row_half_mirror"):
        for q in range(4):
            a(f"v_add_f32_dpp v{st+q}, v{st+q}, v{st+q} {mod} row_mask:0xf bank_mask:0xf")
    for rg in range(2):
        m_, q_ = st+2*rg, st+2*rg+1
        a(f"""
        v_mul_f32 v{VT+2}, {f32(1/512)}, v{m_}
        v_mul_f32 v{q_}, {f32(1/512)}, v{q_}
        v_fma_f32 v{q_}, -v{VT+2}, v{VT+2}, v{q_}
        v_max_f32 v{q_}, 0, v{q_}
        v_add_f32 v{q_}, {f32(1e-5)}, v{q_}
        v_rsq_f32 v{m_}, v{q_}
        s_nop 0
        v_mul_f32 v{q_}, v{VT+2}, v{m_}
        v_sub_f32 v{q_}, 0, v{q_}
        """)
    for rg in range(2):
        for d in range(4):
            a(f"v_lshlrev_b32 v{rg*8+2*d}, 16, v{XP+rg*32+d}")
            a(f"v_and_b32 v{rg*8+2*d+1}, 0xffff0000, v{XP+rg*32+d}")
        for k in range(0, 8, 2):
            y = rg*8 + k
            a(f"v_pk_fma_f32 v[{y}:{y+1}], v[{y}:{y+1}], v[{st+2*rg}:{st+2*rg+1}], v[{st+2*rg}:{st+2*rg+1}] op_sel:[0,0,1] op_sel_hi:[1,0,1]")
    assert not units
    a(f"s_lshl_b32 s44, s{S_AG}, 19")
    srd_dyn(a, SX, PWO, 44, 512*1024)
    a(f"""
    s_mov_b32 s{S_T0}, {f32(THR)}
    s_lshl_b32 s44, s{S_AG}, 18
    s_lshl_b32 s45, s{S_W}, 12
    s_add_u32 s{S_DOFF}, s44, s45
    s_add_u32 s{S_DOFF}, s{S_DOFF}, {hex(WS_KV)}
    s_mov_b32 s{S_DSLOT}, s45
    s_lshl_b32 s44, s{S_TB}, 1
    s_and_b32 s45, s{S_W}, 1
    s_add_u32 s44, s44, s45
    s_mul_i32 s44, s44, {8*3584}
    s_lshr_b32 s45, s{S_G}, 1
    s_mul_i32 s45, s45, 896
    s_add_u32 s{S_PF2}, s44, s45
    s_lshl_b32 s44, s{S_TB}, 2
    s_add_u32 s44, s44, s{S_W}
    s_mul_i32 s{S_PF2+1}, s44, {14*1024}
    v_add_u32 v{VKV}, {KVD}, v{VLIN}
    s_lshl_b32 s34, s{S_AG}, 3
    s_add_u32 s34, s34, {hex(FA_ + 192*8)}
    s_mov_b32 s35, {hex(FA_ + 64*8)}
    s_mov_b32 s36, {hex(FA_ + 128*8)}
    v_lshlrev_b32 v{VT+12}, 2, v{VLIN}
    v_min_u32 v{VT+12}, {7*64}, v{VT+12}
    s_lshl_b32 s42, s2, 3
    s_add_u32 s42, s42, {hex(FA_)}
    """)
    stamp(a, 22)
    stamp(a, 29)
    a(f"""
    v_lshrrev_b32 v{VT+13}, 2, v{VLIN}
    s_mov_b32 s47, {SPIN_MAX}
    s_lshl_b32 s44, s{S_W}, 10
    v_add_u32 v{VT+2}, s44, v{VLIN}
    s_lshl_b32 s45, s43, 8
    v_subrev_u32 v{VT+3}, s45, v{VT+2}
    v_and_b32 v{VT+3}, 0x7ff, v{VT+3}
    v_and_b32 v{VT+2}, 0x800, v{VT+2}
    v_or_b32 v{VT+2}, v{VT+2}, v{VT+3}
    v_lshlrev_b32 v{VMA}, 5, v{VT+7}
    v_add_u32 v{VMA}, {MSC}, v{VMA}
    v_add_u32 v{VT+2}, {MSC}, v{VT+2}
    v_lshlrev_b32 v{VT+13}, 1, v{VLIN}
    s_lshl_b32 s44, s{S_W}, 11
    s_add_u32 s44, s44, {hex(MODG)}
    KF_POLL:
    buffer_load_dwordx4 v[40:43], v{VT+13}, s[{SWS}:{SWS+3}], s44 offen sc1
    buffer_load_dwordx4 v[44:47], v{VT+13}, s[{SWS}:{SWS+3}], s44 offen offset:16 sc1
    s_sub_u32 s47, s47, 1
    s_waitcnt vmcnt(0)
    v_xor_b32 v41, s{TAG}, v41
    v_xor_b32 v43, s{TAG}, v43
    v_xor_b32 v45, s{TAG}, v45
    v_xor_b32 v47, s{TAG}, v47
    v_or3_b32 v41, v41, v43, v45
    v_or_b32 v41, v41, v47
    v_cmp_ne_u32 vcc, 0, v41
    s_cbranch_vccz KF_GO
    s_sleep {SLEEP0}
    s_cmp_lg_u32 s47, 0
    s_cbranch_scc1 KF_POLL
    KF_GO:
    v_mov_b32 v32, v40
    v_mov_b32 v33, v42
    v_mov_b32 v34, v44
    v_mov_b32 v35, v46
    """)
    stamp(a, 30)
    a(f"""
    s_cmp_lt_u32 s{S_W}, 2
    s_cbranch_scc1 KF_SA
    """)
    for j in range(4): a(f"v_add_f32 v{32+j}, 1.0, v{32+j}")
    for d in range(2): a(f"v_cvt_pk_bf16_f32 v{36+d}, v{32+2*d}, v{33+2*d}")
    for d in range(2):
        a(f"v_lshlrev_b32 v{32+2*d}, 16, v{36+d}")
        a(f"v_and_b32 v{33+2*d}, 0xffff0000, v{36+d}")
    a("KF_SA:")
    stamp(a, 23)
    for j in range(4): a(f"v_mul_f32 v{32+j}, {f32(QS)}, v{32+j}")
    a(f"""
    ds_write_b128 v{VT+2}, v[32:35]
    """)
    for m in range(2):
        pre, d = wq_dma(RING[4+m], (29, KVD + m*4096))
        for x in pre + d: a(x)
    a(f"""
    s_sub_u32 s45, s29, s{S_RING}
    s_waitcnt lgkmcnt(0)
    s_barrier
    ds_read_b128 v[16:19], v{VMA}
    ds_read_b128 v[20:23], v{VMA} offset:16
    ds_read_b128 v[24:27], v{VMA} offset:2048
    ds_read_b128 v[28:31], v{VMA} offset:2064
    """)
    for x in hb_reads(0): a(x)
    flag_store(a, "KFA", 42)
    for i in range(4): a(f"v_add_u32 v{VTSL[i]}, s45, v{VTR+i}")
    for i in range(4): a(f"v_add_u32 v{VTK[i]}, {KVD}, v{VTSL[i]}")
    a("s_waitcnt lgkmcnt(2)")
    for rg in range(2):
        y = rg*8
        for k in range(0, 8, 2):
            a(f"v_pk_fma_f32 v[{y+k}:{y+k+1}], v[{y+k}:{y+k+1}], v[{24+k}:{25+k}], v[{16+k}:{17+k}]")
        for d in range(4):
            a(f"v_cvt_pk_bf16_f32 v{y+d}, v{y+2*d}, v{y+2*d+1}")
        a(f"ds_write_b128 v{VHW}, {vr(y,4)} offset:{HB + rg*128}")
    for m in range(2):
        pre, d = wq_dma(PRE[m], (29, STG[m]))
        for x in pre + d: a(x)
    a("s_waitcnt lgkmcnt(0)")
    a("s_barrier")

def hb_reads(n):
    i = 1 + n//2; hf = n & 1; b = MB[n & 1]
    return [f"ds_read_b128 {vr(b,4)}, v{VMA} offset:{i*256 + hf*16}", f"ds_read_b128 {vr(b+4,4)}, v{VMA} offset:{2048 + i*256 + hf*16}"]
def hb_valu(n, rg):
    i = 1 + n//2; hf = n & 1; b = MB[n & 1]
    x = XP + rg*32 + i*4 + hf*2
    r = []
    for d in range(2):
        r.append((f"v_lshlrev_b32 v{MT+2*d}, 16, v{x+d}", 4))
        r.append((f"v_and_b32 v{MT+2*d+1}, 0xffff0000, v{x+d}", 5))
    for k in range(4): r.append((f"v_fma_f32 v{MT+k}, v{MT+k}, v{VSTAT+2*rg}, v{VSTAT+2*rg+1}", 5))
    for k in range(4): r.append((f"v_fma_f32 v{MT+k}, v{MT+k}, v{b+4+k}, v{b+k}", 5))
    for d in range(2): r.append((f"v_cvt_pk_bf16_f32 v{x+d}, v{MT+2*d}, v{MT+2*d+1}", 5))
    return r
def hb_write(i, rg):
    return f"ds_write_b128 v{VHW}, {vr(XP + rg*32 + i*4, 4)} offset:{HB + i*8192 + rg*128}"

def qproj(a):
    vq = VQ()
    vq.issue(('W', RING[4]), 4); vq.issue(('W', RING[5]), 4)
    for m in range(2): vq.issue(('P', m), 4)
    slot = {RING[q]: q for q in range(6)}
    nextq = 6
    def areg(s_, i):
        if s_ in PRE: return ar(64 + 16*PRE.index(s_) + 4*i, 4)
        return ar(AA + 16*(RING.index(s_) & 1) + 4*i, 4)
    def a_reads(s_):
        q = RING.index(s_); sl = slot[s_]
        adr = (lambda i: VTR+i) if sl < 4 else (lambda i: VTK[i])
        return [f"ds_read_b64_tr_b16 {ar(AA+16*(q&1)+4*i+2*h,2)}, v{adr(i)} offset:{(sl&3)*4096 + h*1024}" for i in range(4) for h in range(2)]
    def b_reads(s_):
        return [f"ds_read_b128 {ar(AB+8*(s_&1)+4*th,4)}, v{VBQ+(s_&3)} offset:{HB + s_*2048 + th*1024}" for th in range(2)]
    for x in b_reads(0) + a_reads(0): a(x)
    a("s_waitcnt lgkmcnt(0)")
    pending_w = []
    for s_ in range(32):
        mf = []
        for i in range(4):
            for th in range(2):
                d = vr(ACC + (i*2+th)*16, 16)
                mf.append(mfma(d, areg(s_, i), ar(AB+8*(s_&1)+4*th,4), "0" if s_ == 0 else d))
        gaps = [[] for _ in range(8)]
        if s_ + 1 < 32:
            rb = b_reads(s_+1)
            if s_ + 1 in RING:
                ra = a_reads(s_+1)
                if ('W', s_+1) in vq.q: gaps[0].append(f"s_waitcnt vmcnt({vq.need(('W', s_+1))})")
                gaps[0] += rb[0:1]; gaps[1] = ra[0:2]; gaps[2] = rb[1:2] + ra[2:4]; gaps[3] = ra[4:5]; gaps[4] = ra[5:8]
            else:
                gaps[0] += rb
        did = False
        if s_ in RING and nextq < len(RING) and not (slot[s_] >= 4 and RING[nextq] >= 28):
            sl = slot[s_]; k = RING[nextq]; slot[k] = sl; nextq += 1
            pre, d = wq_dma(k, (S_RING, sl*4096) if sl < 4 else (29, KVD + (sl-4)*4096))
            gaps[0] = gaps[0][:1] + pre + gaps[0][1:]
            for j in range(4): gaps[1+2*j] = [d[j]] + gaps[1+2*j]
            vq.issue(('W', k), 4); did = True
        prd = {5: 0, 6: 1}
        if s_ in prd:
            m = prd[s_]
            assert vq.landed(('P', m)), s_
            rr = [f"ds_read_b64_tr_b16 {ar(64+16*m+4*i+2*h,2)}, v{VTSL[i]} offset:{24576 + (m&1)*4096 + h*1024}" for i in range(4) for h in range(2)]
            for j in range(4): gaps[2+j] = gaps[2+j] + rr[2*j:2*j+2]
        if XCPF and s_ == 24: gaps[6] = [CPF]
        if s_ == 14:
            gaps[6] = [f"buffer_load_dwordx2 v[{VFL}:{VFL+1}], v{VT+12}, s[{SWS}:{SWS+3}], s34 offen sc1"]
            gaps[5] = [f"buffer_load_dwordx4 v[{VFL+2}:{VFL+5}], v{VLIN}, s[{SWS}:{SWS+3}], s35 offen sc1"]
            vq.issue(('F', 0), 2)
        if s_ == 24:
            assert vq.landed(('F', 0))
            gaps[4] += [f"v_cmp_ne_u64 vcc, s[{TAG}:{TAG+1}], v[{VFL}:{VFL+1}]", f"v_cmp_ne_u64 s[44:45], s[{TAG}:{TAG+1}], v[{VFL+2}:{VFL+3}]",
                       f"v_cmp_ne_u64 s[46:47], s[{TAG}:{TAG+1}], v[{VFL+4}:{VFL+5}]"]
            gaps[5] = ["s_or_b64 s[44:45], s[44:45], s[46:47]", "s_or_b64 s[44:45], s[44:45], vcc", "s_cbranch_scc1 KQ_SLOW", "KQ_RET:"]
        if s_ in (28, 29):
            assert not did and nextq == len(RING)
            t = s_ - 28
            gaps[0] = gaps[0] + [f"s_add_u32 m0, s{S_DSLOT}, {KVD + t*16384}"]
            for j in range(4): gaps[1+2*j] = [f"buffer_load_dwordx4 v{VLIN}, s[{SWS}:{SWS+3}], s{S_DOFF} offen offset:{j*1024} sc1 lds"] + gaps[1+2*j]
            gaps[7].append(f"s_add_u32 s{S_DOFF}, s{S_DOFF}, 16384")
            vq.issue(('KV', t), 4)
        work = [(s_, 0), (s_, 1)] if s_ < 4 else ([(4 + (s_-4)//2, (s_-4) & 1)] if s_ < 24 else [])
        nxt = s_ + 1 if s_ < 4 else (5 + (s_-4)//2 if (s_-4) & 1 else None)
        if nxt is not None and nxt < 14: gaps[3] = gaps[3] + hb_reads(nxt)
        for k_, wr in enumerate(pending_w): gaps[2*k_].append(wr)
        pending_w = [hb_write(1 + n//2, rg) for n, rg in work if n & 1]
        if s_ % 4 == 3 and s_ < 28: gaps[0] = ["s_barrier"] + gaps[0]
        if s_ + 1 < 32: gaps[7] = ["s_waitcnt lgkmcnt(0)"] + gaps[7]
        st_ = [x for n, rg in work for x in hb_valu(n, rg)]
        if os.environ.get('XNOMOD'): st_ = []
        if os.environ.get('XNOBAR'): gaps[0] = [x for x in gaps[0] if x != 's_barrier']
        if os.environ.get('XNOVM'): gaps = [[x for x in g if 'vmcnt' not in x] for g in gaps]
        if os.environ.get('XNODMA'): gaps = [[x for x in g if not (x.endswith(' lds') and 'sc1' not in x)] for g in gaps]
        if st_:
            cost = [sum(12 if 'ds_write' in x else (6 if 'buffer' in x else (0 if x.startswith('s_') else 4)) for x in g) for g in gaps]
            spread(gaps, cost, st_, 0, 7)
        if s_ in (4, 8, 16, 24): stamp(a, {4: 21, 8: 24, 16: 25, 24: 26}[s_])
        emit(a, mf, gaps)
    return vq

def phaseB(a):
    site_counter[0] = 0; sites[0].clear(); sites[1].clear()
    front(a)
    stamp(a, 1)
    vq = qproj(a)
    stamp(a, 2)
    a(f"""
    s_mov_b32 s{SW}, s{SX}
    s_mov_b32 s{SW+1}, s{SX+1}
    s_mov_b32 s{SW+2}, s{SX+2}
    s_lshl_b32 s{S_WOFF}, s{S_W}, 8
    s_waitcnt vmcnt({vq.need(('KV', 0))})
    s_barrier
    """)
    for x in k_reads(0): a(x)
    def kv_now(t):
        pre, d, post = kv_grp(t); vq.issue(('KV', t), 4)
        return pre + ["s_nop 0"] + d + post
    for x in kv_now(2): a(x)
    for x, _ in cvtq_stream(0): a(x)
    a("s_waitcnt lgkmcnt(0)")
    gaps = [[] for _ in range(8)]; cost = [0]*8
    vr0 = v_reads(0)
    pre, d, post = kv_grp(3); vq.issue(('KV', 3), 4)
    gaps[0] += pre
    for j in range(8): gaps[j].append(vr0[j]); cost[j] += 4
    for j in range(4): gaps[2*j+1].append(d[j]); cost[2*j+1] += 8
    gaps[7] += post
    spread(gaps, cost, cvtq_stream(1), 0, 7)
    emit(a, qk_mf(0, 0, czero=True), gaps)
    a(f"""
    s_waitcnt vmcnt({vq.need(('KV', 1))}) lgkmcnt(0)
    s_barrier
    """)
    i0, m0 = init_stream(0)
    i1, m1 = init_stream(1)
    gaps = [[] for _ in range(8)]; cost = [0]*8
    kr = k_reads(1); vr1 = v_reads(1)
    for j in range(8): gaps[j] += [kr[j], vr1[j]]; cost[j] += 8
    spread(gaps, cost, i0, 1, 7)
    emit(a, qk_mf(1, 0, czero=True), gaps)
    for x, _ in exp_stream(0): a(x)
    a(f"v_mov_b32 v{L[0]}, v{LT[0]}")
    a(f"v_mov_b32 v{L[1]}, 0")
    h1, pend = split_st1(exp_stream(1))
    gaps = [[] for _ in range(8)]; cost = [0]*8
    pre, d, post = kv_grp(4); vq.issue(('KV', 4), 4)
    gaps[0] += pre
    for j in range(4): gaps[2*j+1].append(d[j]); cost[2*j+1] += 8
    gaps[7] += post + ["s_waitcnt lgkmcnt(0)"]
    pfa = [(f"v_lshlrev_b32 v{VPF}, 1, v{VLIN}", 4), (f"v_lshrrev_b32 v{VT+8}, 9, v{VLIN}", 4), (f"v_mul_u32_u24 v{VT+8}, 3584, v{VT+8}", 4),
           (f"v_and_b32 v{VT+9}, 0x3ff, v{VPF}", 4), (f"v_min_u32 v{VT+9}, 864, v{VT+9}", 4), (f"v_add_u32 v{VPF+1}, v{VT+8}, v{VT+9}", 4)]
    spread(gaps, cost, i1 + m0 + h1 + pfa, 0, 7)
    emit(a, pv_mf(0, 0, czero=True), gaps)
    stamp(a, 3)
    tl = lambda v, srd_: f"buffer_load_dword a240, v{v}, s[{srd_}:{srd_+3}], s{S_PFO} offen"
    pfs = {
        1: ([f"s_lshr_b32 s44, s2, 4", f"s_lshl_b32 s44, s44, 15", f"s_lshl_b32 s45, s{S_W}, 13", f"s_add_u32 s{S_PFO}, s44, s45"], tl(VPF, SW)),
        5: ([f"s_cmp_lt_u32 s{S_W}, 2", f"s_cselect_b32 s{SPF}, s{PWG}, s{PWU}", f"s_cselect_b32 s{SPF+1}, s{PWG+1}, s{PWU+1}", f"s_mov_b32 s{SPF+2}, {512*3584}",
             f"s_mov_b32 s{SPF+3}, 0x20000", f"s_mov_b32 s{S_PFO}, s{S_PF2}"], tl(VPF+1, SPF)),
        9: ([f"s_mov_b32 s{SPF}, s{PWD}", f"s_mov_b32 s{SPF+1}, s{PWD+1}", f"s_mov_b32 s{SPF+2}, {1792*1024}", f"s_mov_b32 s{S_PFO}, s{S_PF2+1}"], tl(VPF, SPF)),
    }
    for p_ in (2, 3, 4): pfs[p_] = ([f"s_add_u32 s{S_PFO}, s{S_PFO}, 2048"], tl(VPF, SW))
    for p_ in (6, 7, 8): pfs[p_] = ([f"s_add_u32 s{S_PFO}, s{S_PFO}, {2*3584}"], tl(VPF+1, SPF))
    for p_ in range(10, 16): pfs[p_] = ([f"s_add_u32 s{S_PFO}, s{S_PFO}, 2048"], tl(VPF, SPF))
    NWO = 6
    wsched = {10: [0], 11: [1], 12: [2], 13: [3], 14: [4], 15: [5]}
    for p_ in range(1, 16):
        groups = []
        if p_ + 4 <= 15: groups.append((('KV', p_+4), kv_grp(p_+4)))
        for u in wsched.get(p_, []): groups.append((('W', u), wo_grp(u, u)))
        pend = period(a, p_, vq, pend, extra1=(m1 if p_ == 1 else ()), groups=groups, pf=(None if os.environ.get('XNOPF') else pfs.get(p_)))
    for x, _ in pend: a(x)
    a(f"""
    s_lshl_b32 s44, s{S_W}, 14
    v_add_u32 v{VT+8}, s44, v{VLIN}
    v_add_u32 v{VTR}, s{S_RING}, v{VT2}
    v_add_u32 v{VTR+1}, s{S_RING}, v{VT2+1}
    s_add_u32 s44, s29, {KVD}
    v_add_u32 v{VTR+2}, s44, v{VT2}
    v_add_u32 v{VTR+3}, s44, v{VT2+1}
    """)
    for x in check_site(1): a(x)
    for x in linv(0): a(x)
    n0 = norm_stream(0, False)
    gaps = [[] for _ in range(8)]
    spread(gaps, [0]*8, take(n0, 8*26), 0, 7)
    emit(a, pv_mf(1, 1), gaps)
    stamp(a, 4)
    for x, _ in n0: a(x)
    for x in linv(1): a(x)
    for x, _ in norm_stream(1, True): a(x)
    a(f"""
    v_lshrrev_b32 v{VT+8}, 4, v{VLIN}
    v_bfe_u32 v{VT+9}, v{VT+8}, 3, 2
    v_lshlrev_b32 v{VT+9}, 13, v{VT+9}
    v_lshrrev_b32 v{VT+10}, 5, v{VT+8}
    v_lshl_add_u32 v{VT+9}, v{VT+10}, 7, v{VT+9}
    v_and_b32 v{VT+10}, 7, v{VT+8}
    v_lshl_add_u32 v{VT+9}, v{VT+10}, 4, v{VT+9}
    s_lshl_b32 s44, s{S_AG}, 21
    s_lshl_b32 s45, s{S_ATB}, 16
    s_add_u32 s44, s44, s45
    s_lshl_b32 s45, s{S_W}, 11
    s_add_u32 s44, s44, s45
    s_add_u32 s44, s44, {hex(WS_PART)}
    s_add_u32 s45, s44, 32768
    s_waitcnt vmcnt({vq.need(('W', 0))}) lgkmcnt(0)
    s_barrier
    """)
    stamp(a, 5)
    def ar_(u):
        buf = u & 1; slot = u % NWO
        r = [f"ds_read_b64_tr_b16 {vr(FA+16*buf+(kk*2+i)*4+2*h,2)}, v{VTR+i+(2 if slot >= 4 else 0)} offset:{(slot&3)*4096 + kk*2048 + h*512}" for kk in range(2) for i in range(2) for h in range(2)]
        if u < 16:
            b = [f"ds_read_b128 {ar((2*u*2+q)*4,4)}, v{VLIN} offset:{HB + u*4096 + q*1024}" for q in range(4)]
            r = [b[0]] + r[0:2] + [b[1]] + r[2:4] + [b[2]] + r[4:6] + [b[3]] + r[6:8]
        return r
    def pstore(c):
        r = []; n = 0
        for i in range(2):
            for th in range(2):
                for sub in range(2):
                    base = ACC + 64*c + (i*2+th)*16 + 8*sub
                    t = base
                    for d in range(4): r.append((f"v_cvt_pk_bf16_f32 v{t+d}, v{base+2*d}, v{base+2*d+1}", 5))
                    r.append((f"buffer_store_dwordx4 {vr(t,4)}, v{VT+9}, s[{SWS}:{SWS+3}], s{44+th} offen offset:{(4*(2*c+i)+2*sub)*128}{sc()}", 12))
        return r
    for x in ar_(0): a(x)
    a("s_waitcnt lgkmcnt(0)")
    st0 = pstore(0)
    tmp = Asm(); c_setup(tmp); srd(tmp, SX, PX, 2048*1024); d_setup(tmp); e_setup(tmp)
    tmp(f"s_cmp_ge_u32 s{S_TB}, 28")
    tmp(f"s_cselect_b32 s{SD+2}, 0, s{SD+2}")
    misc = [l.strip() for l in tmp.lines]
    cl = c_loads()
    mchunks = [[]]
    for k, l in enumerate(misc):
        cons = l.startswith(("s_cselect", "s_addc"))
        if len(mchunks[-1]) >= 6 and not cons: mchunks.append([])
        mchunks[-1].append(l)
    assert len(mchunks) <= 11, len(mchunks)
    for u in range(32):
        head = []; nxt = []; mid = {}
        if u + 1 < 32:
            head = [f"s_waitcnt vmcnt({vq.need(('W', u+1))})"]
            nxt = ar_(u+1)
        if u + NWO < 32:
            pre, d, post = wo_grp(u + NWO, u % NWO)
            head = head + pre; mid = {1: d[0:1], 3: d[1:2], 5: d[2:3], 7: d[3:4]}
            vq.issue(('W', u+NWO), 4)
        fill = []
        if 17 <= u < 25:
            fill = st0[(u-17)*5:(u-17)*5+4]
        if 4 <= u < 4 + len(mchunks):
            mid[4] = mchunks[u-4]
        if XCPF and u == 20:
            mid[6] = [CPF]
        if u == 20: head = head + ["s_barrier"]
        if 26 <= u < 30:
            mid = {2: [st0[(2*(u-26))*5+4][0]], 6: [st0[(2*(u-26)+1)*5+4][0]]}
            vq.issue(('S', u), 2)
            for g_ in (1, 3, 5, 7): mid[g_] = d_wdma()
            vq.issue(('DW', u), 4)
        if u >= 30:
            k = 7*(u-30)
            mid = {g_: cl[k+g_:k+g_+1] for g_ in range(7)}
            vq.issue(('C', u), 7)
        rb_unit(a, u, nxt, head, mid, fill, ACC + 64*(u // 16), u % 16 == 0)
    stamp(a, 6)
    a("s_nop 7")
    a("s_nop 3")
    for x, _ in pstore(1): a(x)
    a(f"""
    s_lshl_b32 s46, s{S_ATB}, 10
    s_lshl_b32 s47, s{S_AG}, 7
    s_add_u32 s46, s46, s47
    s_add_u32 s46, s46, {hex(FP)}
    """)
    publish(a, "KB", 46)
    stamp(a, 7)

def slow_paths(a):
    a("KQ_SLOW:")
    poll(a, "KQ1", 34, 8, stride=64)
    poll(a, "KQ2", 35, 64, stride=8)
    poll(a, "KQ3", 36, 64, stride=8)
    a("s_branch KQ_RET")
    for h in range(2):
        for k in sites[h]:
            a(f"KA_TR{k}:")
            a(f"s_mov_b32 s{S_RET}, {k}")
            a(f"s_branch KA_SLOW{h}")
    for h in range(2):
        t = VT
        a(f"KA_SLOW{h}:")
        if STAMP:
            a(f"v_readlane_b32 s94, v{VST}, 31")
            a("s_nop 3")
            a("s_add_u32 s94, s94, 1")
            a(f"v_writelane_b32 v{VST}, s94, 31")
        a("s_nop 7")
        a("s_nop 7")
        a(f"v_max3_f32 v{t}, v{S[h]}, v{S[h]+1}, v{S[h]+2}")
        for k in range(3, 15, 2):
            a(f"v_max3_f32 v{t}, v{t}, v{S[h]+k}, v{S[h]+k+1}")
        a(f"v_max_f32 v{t}, v{t}, v{S[h]+15}")
        a(f"v_mov_b32 v{t+1}, v{t}")
        a("s_nop 1")
        a(f"v_permlane32_swap_b32 v{t}, v{t+1}")
        a("s_nop 0")
        a(f"v_max_f32 v{t}, v{t}, v{t+1}")
        a(f"v_add_f32 v{t}, {f32(BIAS)}, v{t}")
        a(f"v_max_f32 v{t}, 0, v{t}")
        a(f"v_exp_f32 v{t+1}, -v{t}")
        for k in range(16): a(f"v_sub_f32 v{S[h]+k}, v{S[h]+k}, v{t}")
        for k in range(16): a(f"v_sub_f32 v{M[h]+k}, v{M[h]+k}, v{t}")
        a(f"v_mul_f32 v{L[h]}, v{L[h]}, v{t+1}")
        for dt in range(4):
            for k in range(16):
                r = ACC + (dt*2+h)*16 + k
                a(f"v_mul_f32 v{r}, v{r}, v{t+1}")
        for k in range(0, 16, 2):
            a(f"v_exp_f32 v{t+2}, v{S[h]+k}")
            a(f"v_exp_f32 v{t+3}, v{S[h]+k+1}")
            a("s_nop 0")
            if k == 0: a(f"v_add_f32 v{LT[h]}, v{t+2}, v{t+3}")
            else:
                a(f"v_add_f32 v{LT[h]}, v{LT[h]}, v{t+2}")
                a(f"v_add_f32 v{LT[h]}, v{LT[h]}, v{t+3}")
            a(f"v_cvt_pk_bf16_f32 v{P[h]+k//2}, v{t+2}, v{t+3}")
        a("s_nop 1")
        for k in sites[h][:-1]:
            a(f"s_cmp_eq_u32 s{S_RET}, {k}")
            a(f"s_cbranch_scc1 KA_RET{k}")
        a(f"s_branch KA_RET{sites[h][-1]}")

SD = 48
S_DM0, S_DWO = 52, 53
S_TG, S_FB = 54, 55
VDW = 231
def d_setup(a):
    a(f"""
    s_and_b32 s46, s{S_G}, 1
    s_lshl_b32 s46, s46, 2
    s_and_b32 s47, s{S_TB}, 3
    s_add_u32 s{S_TG}, s46, s47
    s_lshr_b32 s46, s{S_G}, 1
    s_mul_i32 s46, s46, 7
    s_lshr_b32 s47, s{S_TB}, 2
    s_add_u32 s{S_FB}, s46, s47
    s_cmp_lt_u32 s{S_W}, 2
    s_cselect_b32 s{SD}, s{PWG}, s{PWU}
    s_cselect_b32 s{SD+1}, s{PWG+1}, s{PWU+1}
    s_mov_b32 s{SD+2}, {512*3584}
    s_mov_b32 s{SD+3}, 0x20000
    s_and_b32 s46, s{S_W}, 1
    s_mul_i32 s46, s46, {8*3584}
    s_lshl_b32 s47, s{S_FB}, 7
    s_add_u32 s{S_DWO}, s46, s47
    s_lshl_b32 s{S_DM0}, s{S_W}, 10
    v_lshrrev_b32 v{VT+4}, 10, v{VWO}
    v_mul_u32_u24 v{VDW}, 3584, v{VT+4}
    v_and_b32 v{VT+4}, 0x3ff, v{VWO}
    v_add_u32 v{VDW}, v{VDW}, v{VT+4}
    """)
def d_wdma():
    return [f"s_mov_b32 m0, s{S_DM0}", f"s_add_u32 s{S_DM0}, s{S_DM0}, 4096",
            f"buffer_load_dwordx4 v{VDW}, s[{SD}:{SD+3}], s{S_DWO} offen lds", f"s_add_u32 s{S_DWO}, s{S_DWO}, {16*3584}"]

CL = 131072
CX, CGA, CSB, CCB = 160, 168, 184, 200
def c_setup(a):
    a(f"""
    s_lshl_b32 s40, s{S_G}, 5
    s_add_u32 s40, s40, s{S_TB}           ; oct
    s_lshl_b32 s41, s40, 13
    s_lshl_b32 s46, s{S_W}, 11
    s_add_u32 s42, s41, s46
    s_add_u32 s42, s42, {hex(WS_PART)}
    v_bfe_u32 v{VT}, v{VLIN}, 4, 3        ; t
    v_lshrrev_b32 v{VT+1}, 7, v{VLIN}     ; Lq
    v_lshlrev_b32 v{VT+2}, 10, v{VT}
    v_lshl_add_u32 v{VT+2}, v{VT+1}, 4, v{VT+2}     ; t*1024 + Lq*16
    v_lshlrev_b32 v{VT+3}, 5, v{VT+1}               ; Lq*32
    s_lshl_b32 s46, s{S_W}, 8
    s_add_u32 s43, s41, s46
    s_lshl_b32 s46, s{S_W}, 9
    s_add_u32 s30, s46, {WS_MOD + 2*2048}
    s_add_u32 s31, s46, {WS_MOD + 4*2048}
    """)
def c_loads():
    r = []
    for q in range(2):
        r.append(f"buffer_load_dwordx4 {vr(CX+4*q,4)}, v{VT+2}, s[{SX}:{SX+3}], s43 offen offset:{q*128}")
    for q in range(2):
        for hh in range(2):
            r.append(f"buffer_load_dwordx4 {vr(CGA+8*q+4*hh,4)}, v{VT+3}, s[{SWS}:{SWS+3}], s30 offen offset:{q*256+hh*16} sc1")
            r.append(f"buffer_load_dwordx4 {vr(CSB+8*q+4*hh,4)}, v{VT+3}, s[{SWS}:{SWS+3}], s30 offen offset:{2048+q*256+hh*16} sc1")
            r.append(f"buffer_load_dwordx4 {vr(CCB+8*q+4*hh,4)}, v{VT+3}, s[{SWS}:{SWS+3}], s31 offen offset:{q*256+hh*16} sc1")
    return r

def phaseC(a):
    def ld(g):
        return [f"s_add_u32 s33, s42, {g*0x200000}"] + [f"buffer_load_dwordx4 {vr(8*g+4*q,4)}, v{VLIN}, s[{SWS}:{SWS+3}], s33 offen offset:{q*1024} sc1" for q in range(2)]
    def accum(g):
        for d in range(8):
            a(f"v_lshlrev_b32 v{144+2*d}, 16, v{8*g+d}")
            a(f"v_and_b32 v{145+2*d}, 0xffff0000, v{8*g+d}")
        for j in range(0, 16, 2): a(f"v_pk_add_f32 v[{84+j}:{85+j}], v[{84+j}:{85+j}], v[{144+j}:{145+j}]")
    fl = f"buffer_load_dwordx2 v[{VT+14}:{VT+15}], v{VT+13}, s[{SWS}:{SWS+3}], s32 offen sc1"
    a(f"""
    s_lshr_b32 s32, s40, 3
    s_lshl_b32 s32, s32, 10
    s_add_u32 s32, s32, {hex(FP)}
    v_lshlrev_b32 v{VT+13}, 3, v{VLIN}
    v_min_u32 v{VT+13}, {7*128}, v{VT+13}
    {fl}
    """)
    for j in range(16): a(f"v_add_f32 v{CCB+j}, 1.0, v{CCB+j}")
    for d in range(8): a(f"v_cvt_pk_bf16_f32 v{144+d}, v{CCB+2*d}, v{CCB+1+2*d}")
    for d in range(8):
        a(f"v_lshlrev_b32 v{CCB+2*d}, 16, v{144+d}")
        a(f"v_and_b32 v{CCB+1+2*d}, 0xffff0000, v{144+d}")
    for d in range(8):
        a(f"v_lshlrev_b32 v{64+2*d}, 16, v{CX+d}")
        a(f"v_and_b32 v{65+2*d}, 0xffff0000, v{CX+d}")
    a(f"""
    s_add_u32 s43, s43, {hex(WS_X1)}
    v_lshrrev_b32 v80, 9, v{VLIN}
    v_lshlrev_b32 v80, 7, v80
    v_lshl_add_u32 v80, v{VT}, 4, v80
    s_lshl_b32 s44, s{S_W}, 2
    s_add_u32 s44, s44, {CL}
    v_add_u32 v80, s44, v80
    v_lshlrev_b32 v81, 4, v{VT}
    v_add_u32 v81, {CL}, v81
    v_lshrrev_b32 v82, 1, v{VT+1}
    v_lshlrev_b32 v82, 11, v82
    v_and_b32 v83, 1, v{VT+1}
    v_lshl_add_u32 v82, v83, 9, v82
    v_lshl_add_u32 v82, v{VT}, 4, v82
    s_lshr_b32 s44, s40, 3
    s_lshl_b32 s44, s44, 16
    s_bfe_u32 s45, s40, 0x10002
    s_lshl_b32 s45, s45, 10
    s_add_u32 s44, s44, s45
    s_and_b32 s45, s40, 3
    s_lshl_b32 s45, s45, 7
    s_add_u32 s44, s44, s45
    s_lshl_b32 s45, s{S_W}, 14
    s_add_u32 s44, s44, s45
    s_add_u32 s44, s44, {hex(WS_H2)}
    s_add_u32 s45, s44, 8192
    s_lshl_b32 s46, s40, 7
    s_add_u32 s46, s46, {hex(FH)}
    """)
    for j in range(16): a(f"v_mov_b32 v{84+j}, 0")
    a(f"""
    s_mov_b32 s34, 0                       ; done
    s_mov_b32 s35, 0                       ; pend
    s_mov_b32 s47, {SPIN_MAX}
    s_waitcnt vmcnt(0)
    v_cmp_ne_u64 vcc, s[{TAG}:{TAG+1}], v[{VT+14}:{VT+15}]
    s_cbranch_vccnz KC_DYN
    """)
    stamp(a, 8)
    for g in range(8):
        for x in ld(g): a(x)
    for g in range(8):
        a(f"s_waitcnt vmcnt({14-2*g})")
        accum(g)
    a(f"""
    s_branch KC_SUM
    KC_LOOP:
    s_cmp_eq_u32 s34, 0xff
    s_cbranch_scc1 KC_NOFL
    {fl}
    KC_NOFL:
    s_waitcnt vmcnt(0)
    v_cmp_ne_u64 vcc, s[{TAG}:{TAG+1}], v[{VT+14}:{VT+15}]
    KC_DYN:
    s_sub_u32 s47, s47, 1
    s_cmp_eq_u32 s47, 0
    s_cselect_b32 s36, 0, vcc_lo
    s_or_b32 s36, s36, s34
    s_andn2_b32 s36, 0xff, s36
    s_or_b32 s34, s34, s36
    """)
    for g in range(8):
        a(f"s_bitcmp1_b32 s36, {g}")
        a(f"s_cbranch_scc0 KC_L{g}")
        for x in ld(g): a(x)
        a(f"KC_L{g}:")
    a("s_cmp_eq_u32 s35, 0")
    a("s_cbranch_scc1 KC_A7")
    for g in range(8):
        a(f"s_bitcmp1_b32 s35, {g}")
        a(f"s_cbranch_scc0 KC_A{g}")
        accum(g)
        a(f"KC_A{g}:")
    a(f"""
    s_mov_b32 s35, s36
    s_cmp_lg_u32 s36, 0
    s_cbranch_scc1 KC_LOOP
    s_cmp_eq_u32 s34, 0xff
    s_cbranch_scc1 KC_SUM
    """)
    if CDMA:
        a(f"s_cmp_lg_u32 s34, 0")
        a(f"s_cbranch_scc1 KC_LOOP")
        a(f"s_cmp_ge_u32 s{S_DM0}, 131072")
        a(f"s_cbranch_scc1 KC_LOOP")
        for _ in range(8):
            for x in d_wdma(): a(x)
    a("s_branch KC_LOOP")
    a("KC_SUM:")
    stamp(a, 16)
    for j in range(0, 16, 2): a(f"v_pk_fma_f32 v[{64+j}:{65+j}], v[{84+j}:{85+j}], v[{CGA+j}:{CGA+1+j}], v[{64+j}:{65+j}]")
    a("v_pk_add_f32 v[0:1], v[64:65], v[66:67]")
    a("v_pk_mul_f32 v[2:3], v[64:65], v[64:65]")
    a("v_pk_fma_f32 v[2:3], v[66:67], v[66:67], v[2:3]")
    for j in range(4, 16, 2):
        a(f"v_pk_add_f32 v[0:1], v[0:1], v[{64+j}:{65+j}]")
        a(f"v_pk_fma_f32 v[2:3], v[{64+j}:{65+j}], v[{64+j}:{65+j}], v[2:3]")
    a(f"""
    v_add_f32 v6, v0, v1
    v_add_f32 v7, v2, v3
    s_nop 1
    v_permlane32_swap_b32 v6, v7
    s_nop 0
    v_add_f32 v6, v6, v7
    v_mov_b32 v7, v6
    s_nop 1
    v_permlane16_swap_b32 v6, v7
    s_nop 0
    v_add_f32 v6, v6, v7
    s_nop 1
    v_add_f32_dpp v6, v6, v6 row_ror:8 row_mask:0xf bank_mask:0xf
    ds_write_b32 v80, v6
    """)
    for d in range(8): a(f"v_cvt_pk_bf16_f32 v{CX+d}, v{64+2*d}, v{65+2*d}")
    a("""
    s_waitcnt lgkmcnt(0)
    s_barrier
    ds_read_b128 v[16:19], v81
    ds_read_b128 v[20:23], v81 offset:128
    """)
    for q in range(2):
        a(f"buffer_store_dwordx4 {vr(CX+4*q,4)}, v{VT+2}, s[{SWS}:{SWS+3}], s43 offen offset:{q*128} sc1")
    a(f"""
    s_waitcnt lgkmcnt(0)
    v_pk_add_f32 v[16:17], v[16:17], v[18:19]
    v_pk_add_f32 v[20:21], v[20:21], v[22:23]
    v_add_f32 v16, v16, v17
    v_add_f32 v20, v20, v21
    v_mul_f32 v16, {f32(1/512)}, v16
    v_mul_f32 v20, {f32(1/512)}, v20
    v_fma_f32 v20, -v16, v16, v20
    v_max_f32 v20, 0, v20
    v_add_f32 v20, {f32(1e-5)}, v20
    v_rsq_f32 v20, v20
    s_nop 0
    v_mul_f32 v16, v16, v20
    v_sub_f32 v21, 0, v16
    """)
    for j in range(0, 16, 2): a(f"v_pk_fma_f32 v[{64+j}:{65+j}], v[{64+j}:{65+j}], v[20:21], v[20:21] op_sel:[0,0,1] op_sel_hi:[1,0,1]")
    for j in range(0, 16, 2): a(f"v_pk_fma_f32 v[{64+j}:{65+j}], v[{64+j}:{65+j}], v[{CCB+j}:{CCB+1+j}], v[{CSB+j}:{CSB+1+j}]")
    for d in range(8):
        a(f"v_cvt_pk_bf16_f32 v{24+d}, v{64+2*d}, v{65+2*d}")
        if d % 4 == 3: a(f"buffer_store_dwordx4 {vr(24+4*(d//4),4)}, v82, s[{SWS}:{SWS+3}], s{44+d//4} offen sc1")
    publish(a, "KC", 46)
    stamp(a, 9)

def gelu_stream(c, pk):
    r = []; n = 0
    for th in range(2):
        for sub in range(2):
            g = ACC + 64*c + th*16 + 8*sub
            u = g + 32
            t = 160 + 8*(n & 1)
            o = 176 + 4*(n % 4); n += 1
            if pk:
                pr = lambda x, k: f"v[{x+k}:{x+k+1}]"
                for k in range(0, 8, 2): r.append((f"v_pk_mul_f32 {pr(t,k)}, {pr(g,k)}, {pr(g,k)}", 4))
                for k in range(0, 8, 2): r.append((f"v_pk_fma_f32 {pr(t,k)}, {pr(t,k)}, v[{VT+8}:{VT+9}], v[{VT+10}:{VT+11}]", 4))
                for k in range(0, 8, 2): r.append((f"v_pk_mul_f32 {pr(t,k)}, {pr(t,k)}, {pr(g,k)}", 4))
                for j in range(8): r.append((f"v_exp_f32 v{t+j}, v{t+j}", 8))
                for k in range(0, 8, 2): r.append((f"v_pk_mul_f32 {pr(g,k)}, {pr(g,k)}, {pr(u,k)}", 4))
                for k in range(0, 8, 2): r.append((f"v_pk_add_f32 {pr(t,k)}, {pr(t,k)}, 1.0 op_sel_hi:[1,0]", 4))
                for j in range(8): r.append((f"v_rcp_f32 v{t+j}, v{t+j}", 8))
                r.append(("s_nop 0", 4))
                for k in range(0, 8, 2): r.append((f"v_pk_mul_f32 {pr(g,k)}, {pr(g,k)}, {pr(t,k)}", 4))
            else:
                for j in range(8): r.append((f"v_mul_f32 v{t+j}, v{g+j}, v{g+j}", 4))
                for j in range(8): r.append((f"v_fma_f32 v{t+j}, v{t+j}, v{VT+8}, v{VT+10}", 5))
                for j in range(8): r.append((f"v_mul_f32 v{t+j}, v{t+j}, v{g+j}", 4))
                for j in range(8):
                    r.append((f"v_exp_f32 v{t+j}, v{t+j}", 8))
                    r.append((f"v_mul_f32 v{g+j}, v{g+j}, v{u+j}", 4))
                for j in range(8): r.append((f"v_add_f32 v{t+j}, 1.0, v{t+j}", 4))
                for j in range(8): r.append((f"v_rcp_f32 v{t+j}, v{t+j}", 8))
                r.append(("s_nop 0", 4))
                for j in range(8): r.append((f"v_mul_f32 v{g+j}, v{g+j}, v{t+j}", 4))
            for d in range(4): r.append((f"v_cvt_pk_bf16_f32 v{o+d}, v{g+2*d}, v{g+2*d+1}", 5))
            r.append((f"buffer_store_dwordx4 {vr(o,4)}, v{VLIN}, s[{SWS}:{SWS+3}], s{44+c} offen offset:{sub*2048 + th*1024}{sc()}", 12))
    return r

SE = 56
S_EOFF = 60
VE = 160
def e_slot(u):
    sl = u % 6
    if sl < 2: return (61, 131072 + sl*4096)
    return (62, (sl-2)*4096)
VER = 225
def e_read(u, dst):
    sl = u % 6
    rb, off = (VER, sl*4096) if sl < 2 else (VER+2, (sl-2)*4096)
    return [f"ds_read_b64_tr_b16 {dst((kk*2+i)*4+2*h)}, v{rb+i} offset:{off + kk*2048 + h*512}" for kk in range(2) for i in range(2) for h in range(2)]
def e_read_a(u): return e_read(u, lambda o: ar(16*u+o, 2))
def e_addr(a):
    a(f"""
    s_add_u32 s30, s61, 131072
    v_add_u32 v{VER}, s30, v{VT2}
    v_add_u32 v{VER+1}, s30, v{VT2+1}
    v_add_u32 v{VER+2}, s62, v{VT2}
    v_add_u32 v{VER+3}, s62, v{VT2+1}
    """)
def e_setup(a):
    a(f"""
    s_lshl_b32 s61, s{S_W}, 13
    s_lshl_b32 s62, s{S_W}, 14
    s_mul_i32 s{S_EOFF}, s{S_W}, {28*16*1024}
    s_lshr_b32 s63, s{S_TB}, 2
    s_lshl_b32 s63, s63, 7
    s_add_u32 s{S_EOFF}, s{S_EOFF}, s63
    """)
    srd(a, SE, PWD, 1792*1024)
def e_dma(u):
    sb, off = e_slot(u)
    pre = [f"s_add_u32 m0, s{sb}, {off}"]
    d = [f"buffer_load_dwordx4 v{VWO+j}, s[{SE}:{SE+3}], s{S_EOFF} offen offset:{j*1024} lds" for j in range(4)]
    return pre, d, [f"s_add_u32 s{S_EOFF}, s{S_EOFF}, {32*1024}"]
def e_dma_now(a, u):
    pre, d, post = e_dma(u)
    for x in pre + ["s_nop 0"] + d + post: a(x)

def phaseD(a):
    e_addr(a)
    a(f"""
    s_cmp_ge_u32 s{S_TB}, 28
    s_cbranch_scc1 KD_SKIP
    s_lshl_b32 s40, s{S_TG}, 2
    s_add_u32 s40, s40, s{S_W}
    s_lshl_b32 s41, s40, 16
    s_add_u32 s41, s41, {hex(WS_H2)}
    s_lshl_b32 s42, s40, 10
    s_add_u32 s42, s42, {hex(FH)}
    s_mul_i32 s44, s40, {112*2048}
    s_lshl_b32 s45, s{S_FB}, 13
    s_add_u32 s44, s44, s45
    s_add_u32 s44, s44, {hex(WS_G)}
    s_add_u32 s45, s44, 4096
    v_mov_b32 v{VT+8}, {f32(-2*math.log2(math.e)*math.sqrt(2/math.pi)*0.044715)}
    v_mov_b32 v{VT+9}, v{VT+8}
    v_mov_b32 v{VT+10}, {f32(-2*math.log2(math.e)*math.sqrt(2/math.pi))}
    v_mov_b32 v{VT+11}, v{VT+10}
    v_add_u32 v{VTR+2}, 65536, v{VT2}
    v_add_u32 v{VTR+3}, 65536, v{VT2+1}
    """)
    order = [(c, uu) for uu in range(8) for c in range(2)] + [(0, uu) for uu in range(8, 16)] + [(1, uu) for uu in range(8, 16)]
    def bload(u):
        r = [f"buffer_load_dwordx4 {ar((4*u+q)*4,4)}, v{VLIN}, s[{SWS}:{SWS+3}], s41 offen offset:{q*1024} sc1" for q in range(4)]
        return r + ["s_add_u32 s41, s41, 4096"]
    def ar_(pos):
        buf = pos & 1; c, uu = order[pos]
        base = (VT2 + c) if uu < 8 else (VTR + 2 + c)
        return [f"ds_read_b64_tr_b16 {vr(FA+16*buf+(kk*2+i)*4+2*h,2)}, v{base} offset:{(uu%8)*8192 + kk*4096 + i*2048 + h*512}" for kk in range(2) for i in range(2) for h in range(2)]
    for x in ar_(0): a(x)
    poll(a, "KD", 42, 8, dma=True)
    a(f"""
    KD_WL:
    s_cmp_ge_u32 s{S_DM0}, 131072
    s_cbranch_scc1 KD_WD
    """)
    for _ in range(8):
        for x in d_wdma(): a(x)
    a(f"""
    s_branch KD_WL
    KD_WD:
    """)
    stamp(a, 10)
    vq = VQ()
    NPRE = 4
    for u in range(NPRE):
        for x in bload(u): a(x)
        vq.issue(('B', u), 4)
    a(f"s_waitcnt vmcnt({vq.need(('B', 0))}) lgkmcnt(0)")
    g0 = gelu_stream(0, False)
    per = sum(c for _, c in g0) / 7.5
    nb = NPRE
    for pos in range(32):
        c, uu = order[pos]
        head = []; mid = {}; nxt = ar_(pos+1) if pos + 1 < 32 else []
        if pos == 15: head = ["s_barrier"]
        if nb < 16 and pos not in (1, 3):
            b = bload(nb); vq.issue(('B', nb), 4); nb += 1
            mid[1] = b[0:1]; mid[3] = b[1:2]; mid[5] = b[2:3]; mid[6] = b[3:5]
        if XCPF and pos == 14: mid[2] = [CPF]
        edma = {1:0, 3:1, 15:2, 16:3, 17:4, 18:5, 19:6, 20:7, 21:8, 22:9, 23:10, 24:11, 25:12, 26:13}
        erd = {16:0, 17:1, 20:2, 21:3, 22:4, 23:5, 24:6, 25:7}
        if pos in erd:
            head = head + [f"s_waitcnt vmcnt({vq.need(('E', erd[pos]))})"]
            nxt = nxt + e_read_a(erd[pos])
        if pos in edma:
            pre, d, post = e_dma(edma[pos])
            head = head + pre; mid[1] = d[0:1]; mid[3] = d[1:2]; mid[5] = d[2:3]; mid[6] = d[3:4] + post
            vq.issue(('E', edma[pos]), 4)
        if pos + 1 < 32 and not vq.landed(('B', order[pos+1][1])):
            mid[7] = [f"s_waitcnt vmcnt({vq.need(('B', order[pos+1][1]))})"]
        fill = []
        if pos >= 24:
            fill = take(g0, per*(0.5 if pos == 24 else 1)) if pos < 31 else list(g0)
            if pos == 24: fill = [("s_nop 7", 32), ("s_nop 3", 16)] + fill
        rb_unit(a, pos, nxt, head, mid, fill, ACC + 64*c, uu == 0, uu=uu)
    stamp(a, 11)
    e_pre(a)
    for x, _ in gelu_stream(1, True): a(x)
    a(f"""
    s_lshl_b32 s46, s{S_TG}, 12
    s_lshl_b32 s47, s{S_FB}, 7
    s_add_u32 s46, s46, s47
    s_add_u32 s46, s46, {hex(FG)}
    """)
    publish(a, "KD", 46)
    a("s_branch KD_DONE")
    a("KD_SKIP:")
    a(f"""
    s_cmp_lg_u32 s2, 255
    s_cbranch_scc1 KD_NOEP
    s_lshl_b32 s44, s{S_W}, 9
    s_add_u32 s44, s44, {hex(FA_)}
    """)
    poll(a, "KEP", 44, 64, stride=8)
    a("s_barrier")
    a(f"s_mov_b32 s44, {hex(WS_EPOCH)}")
    flag_store(a, "KEP", 44)
    a("KD_NOEP:")
    for u in range(6): e_dma_now(a, u)
    a("s_waitcnt vmcnt(0)")
    for u in range(6):
        for x in e_read_a(u): a(x)
    a("s_waitcnt lgkmcnt(0)")
    for u in range(6, 12): e_dma_now(a, u)
    a("s_waitcnt vmcnt(16)")
    for u in range(6, 8):
        for x in e_read_a(u): a(x)
    a("s_waitcnt lgkmcnt(0)")
    for u in range(12, 14): e_dma_now(a, u)
    e_pre(a)
    a("KD_DONE:")
    stamp(a, 12)

EGB, EX1 = 192, 208
def e_pre(a):
    srd(a, SX, POUT, 2048*1024)
    a(f"""
    s_lshl_b32 s40, s{S_G}, 2
    s_and_b32 s30, s{S_TB}, 3
    s_add_u32 s40, s40, s30               ; tb
    s_lshr_b32 s41, s{S_TB}, 2            ; nb
    s_mul_i32 s42, s40, {112*2048}
    s_mul_i32 s30, s{S_W}, {28*2048}
    s_add_u32 s42, s42, s30
    s_add_u32 s42, s42, {hex(WS_G)}
    s_lshl_b32 s43, s{S_G}, 12
    s_mul_i32 s30, s{S_W}, {7*128}
    s_add_u32 s43, s43, s30
    s_add_u32 s43, s43, {hex(FG)}
    v_bfe_u32 v{VT+2}, v{VLIN}, 4, 5
    v_lshlrev_b32 v{VT+2}, 10, v{VT+2}
    v_lshrrev_b32 v{VT+3}, 9, v{VLIN}
    v_lshl_add_u32 v{VT+2}, v{VT+3}, 4, v{VT+2}
    v_lshlrev_b32 v{VT+3}, 5, v{VT+3}
    s_lshr_b32 s30, s{S_W}, 1
    s_and_b32 s31, s{S_W}, 1
    s_lshl_b32 s32, s40, 16
    s_lshl_b32 s33, s31, 15
    s_add_u32 s32, s32, s33
    s_lshl_b32 s33, s41, 7
    s_add_u32 s32, s32, s33
    s_lshl_b32 s34, s30, 6
    s_add_u32 s32, s32, s34
    s_add_u32 s33, s33, s34
    s_lshl_b32 s33, s33, 1
    s_add_u32 s33, s33, {WS_MOD + 5*2048}
    s_add_u32 s34, s32, {hex(WS_X1)}
    buffer_load_dwordx4 {vr(EGB,4)}, v{VT+3}, s[{SWS}:{SWS+3}], s33 offen sc1
    buffer_load_dwordx4 {vr(EGB+4,4)}, v{VT+3}, s[{SWS}:{SWS+3}], s33 offen offset:16 sc1
    buffer_load_dwordx4 {vr(EGB+8,4)}, v{VT+3}, s[{SWS}:{SWS+3}], s33 offen offset:64 sc1
    buffer_load_dwordx4 {vr(EGB+12,4)}, v{VT+3}, s[{SWS}:{SWS+3}], s33 offen offset:80 sc1
    """)

def phaseE(a):
    poll(a, "KE", 43, 7)
    vq = VQ()
    stamp(a, 13)
    def breg(u, q):
        if u < 8: return ar(128 + 16*u + 4*q, 4)
        if u < 12: return vr(64 + 16*(u-8) + 4*q, 4)
        return vr(160 + 16*(u-12) + 4*q, 4)
    def areg(u, j):
        return ar(16*u + 4*j, 4) if u < 8 else vr(FA + 16*(u & 1) + 4*j, 4)
    def bl(u):
        r = [f"buffer_load_dwordx4 {breg(u,q)}, v{VLIN}, s[{SWS}:{SWS+3}], s42 offen offset:{q*1024} sc1" for q in range(4)] + ["s_add_u32 s42, s42, 4096"]
        vq.issue(('B', u, 0), 2); vq.issue(('B', u, 1), 2)
        return r
    NPRE = 6
    for u in range(NPRE):
        for x in bl(u): a(x)
    for u in (8, 9):
        for x in e_read(u, lambda o: vr(FA + 16*(u & 1) + o, 2)): a(x)
    for u in range(14):
        for kk in range(2):
            a(f"s_waitcnt vmcnt({vq.need(('B', u, kk))})" + (" lgkmcnt(0)" if u >= 8 and kk == 0 else ""))
            ex = []
            if kk == 0 and u + NPRE < 14: ex = bl(u + NPRE)
            if kk == 0 and u + NPRE == 14:
                ex = [f"buffer_load_dwordx4 {vr(EX1,4)}, v{VT+2}, s[{SWS}:{SWS+3}], s34 offen sc1",
                      f"buffer_load_dwordx4 {vr(EX1+4,4)}, v{VT+2}, s[{SWS}:{SWS+3}], s34 offen offset:32 sc1"]
                vq.issue(('X', 1), 2)
            n = 0
            for i in range(2):
                for th in range(2):
                    d = vr(ACC + (i*2+th)*16, 16)
                    a(mfma(d, areg(u, kk*2+i), breg(u, kk*2+th), "0" if (u == 0 and kk == 0) else d))
                    for x in (ex[n:n+1] if n < 3 else ex[n:]): a(x)
                    n += 1
        if 8 <= u < 12:
            for x in e_read(u+2, lambda o: vr(FA + 16*(u & 1) + o, 2)): a(x)
    stamp(a, 14)
    a(f"""
    v_add_u32 v{VT+4}, s62, v{VLIN}
    s_lshl_b32 s50, s{S_W}, 12
    v_add_u32 v{VT+5}, s50, v{VLIN}
    s_nop 7
    s_nop 1
    """)
    for q in range(16):
        a(f"ds_write_b128 v{VT+4}, {vr(ACC+4*q,4)} offset:{q*1024}")
    a("s_waitcnt lgkmcnt(0)")
    a("s_barrier")
    for w in range(4):
        for q in range(4):
            a(f"ds_read_b128 {vr(ACC+16*w+4*q,4)}, v{VT+5} offset:{w*16384 + q*1024}")
    a("s_waitcnt vmcnt(0)")
    for d in range(8):
        a(f"v_lshlrev_b32 v{104+2*d}, 16, v{EX1+d}")
        a(f"v_and_b32 v{105+2*d}, 0xffff0000, v{EX1+d}")
    a("s_waitcnt lgkmcnt(0)")
    for k in range(0, 16, 2):
        a(f"v_pk_add_f32 v[{k}:{k+1}], v[{k}:{k+1}], v[{16+k}:{17+k}]")
        a(f"v_pk_add_f32 v[{32+k}:{33+k}], v[{32+k}:{33+k}], v[{48+k}:{49+k}]")
    for k in range(0, 16, 2):
        a(f"v_pk_add_f32 v[{k}:{k+1}], v[{k}:{k+1}], v[{32+k}:{33+k}]")
    for k in range(0, 16, 2):
        a(f"v_pk_fma_f32 v[{k}:{k+1}], v[{k}:{k+1}], v[{EGB+k}:{EGB+1+k}], v[{104+k}:{105+k}]")
    for d in range(8):
        a(f"v_cvt_pk_bf16_f32 v{32+d}, v{2*d}, v{2*d+1}")
    a(f"""
    buffer_store_dwordx4 v[32:35], v{VT+2}, s[{SX}:{SX+3}], s32 offen {OUTF}
    buffer_store_dwordx4 v[36:39], v{VT+2}, s[{SX}:{SX+3}], s32 offen offset:32 {OUTF}
    """)
    if STAMP: a("s_waitcnt vmcnt(0)")
    stamp(a, 15)

def finish(a, name, kidx):
    stamp_out(a)
    rt_end(a, kidx, SWS)
    a(f"{name}_END:")
    a("s_endpgm")

def gen():
    a = Asm(); setup(a, "KM", 256)
    phaseB(a); phaseC(a); phaseD(a); phaseE(a); finish(a, "KM", 0); slow_paths(a)
    a("CODE_END:")
    a("s_endpgm")
    return kernel_text(KNAME, a.text(), 512, 256)
```

```python
from common import *
from gemm import *
import math
ACC = 0
S = [128, 144]
M = [160, 176]
P = [192, 200]
E = 208
L = [216, 217]
LT = [218, 219]
VLIN = 220
VTR = 221
VDMA = 225
VB = 229
VKV = 230
VT = 232
VWO = 248
VT2 = 252
VST = 255
VPS = 253
FA = 128
AQ, AK, AV, AA, AB = 0, 64, 128, 192, 224
HB, KVD, WR = 0, 65536, 98304
KM_LDS = 163840
SW, SWS, SX = 8, 12, 16
S_W, S_WOFF, S_WSTEP, S_RING, S_CNT, S_RSLOT, S_DSLOT, S_DOFF, S_RET = 20, 21, 22, 23, 24, 25, 26, 27, 28
S_T0 = 30
S_AM0, S_AOFF = 34, 35
S_G, S_TB = 38, 39
S_AG, S_ATB = 3, 37
PX, PK, PV_, PWQ, PWO, PBX, PWG, PWU, PWD, PC, PWM, POUT, PDBG, PWS = 64, 66, 68, 70, 72, 74, 76, 78, 80, 82, 84, 86, 88, 90
TAG = 4
KNAME = 'adaLN_cond__sliding_block_cached__geglu_ffn__prompt_kernel'
QS = math.log2(math.e) / math.sqrt(128.0)
WS_EPOCH = WS_FLAG + 0x1C000
FP, FH, FG, FA_, MODG = WS_FLAG, WS_FLAG + 0x8000, WS_FLAG + 0x10000, WS_FLAG + 0x18000, WS_FLAG + 0x1A000
import os
BIAS = float(os.environ.get('BIAS', '64'))
THR = 2.0**float(os.environ.get('THR', '64'))
FUSED = True
STAMP = False
SPIN_MAX = 1 << 15
CMODE = int(os.environ.get('CMODE', '0'))
CMIN = int(os.environ.get('CMIN', '4'))
OT = int(os.environ.get('OT', '0'))
CDMA = os.environ.get('CDMA', '0') == '1'
OUTF = os.environ.get('OUTF', '')
import os
SLEEP0 = int(os.environ.get('SLEEP0', '2'))
SLEEP1 = int(os.environ.get('SLEEP1', '0'))
SPF = 48
S_PFO, S_PFS, S_PF2 = 52, 53, 54
VPF = 243

def sc(): return " sc1" if FUSED else ""
def stamp(a, k):
    if STAMP:
        a("s_memrealtime s[94:95]" if os.environ.get('RTS') else "s_memtime s[94:95]")
        a("s_waitcnt lgkmcnt(0)")
        a(f"v_writelane_b32 v{VST}, s94, {k}")
def stamp_out(a):
    if STAMP:
        a(f"""
        s_lshl_b32 s44, s2, 9
        s_lshl_b32 s45, s{S_W}, 7
        s_add_u32 s44, s44, s45
        s_add_u32 s44, s44, 0x3000000
        v_lshrrev_b32 v0, 2, v{VLIN}
        s_mov_b64 exec, 0xffffffff
        buffer_store_dword v{VST}, v0, s[{SWS}:{SWS+3}], s44 offen
        s_mov_b64 exec, -1
        """)

def setup(a, name, nwg):
    a(f"""
    s_cmp_ge_u32 s2, {nwg}
    s_cbranch_scc1 {name}_END
    {"s_memrealtime s[96:97]" if RT else ""}
    {("s_memrealtime s[92:93]" if os.environ.get('RTS') else "s_memtime s[92:93]") if STAMP else ""}
    s_load_dwordx16 s[64:79], s[0:1], 0
    s_load_dwordx8 s[80:87], s[0:1], 64
    s_load_dwordx4 s[88:91], s[0:1], {KARG['dbg']}
    v_and_b32 v{VT}, 63, v0
    v_lshrrev_b32 v{VT+1}, 6, v0
    v_lshlrev_b32 v{VLIN}, 4, v{VT}
    v_readfirstlane_b32 s{S_W}, v{VT+1}
    s_and_b32 s{S_G}, s2, 7
    s_lshr_b32 s{S_TB}, s2, 3
    s_and_b32 s{S_AG}, s2, 6
    s_and_b32 s44, s{S_TB}, 1
    s_add_u32 s{S_AG}, s{S_AG}, s44
    s_and_b32 s{S_ATB}, s2, 1
    s_lshl_b32 s{S_ATB}, s{S_ATB}, 4
    s_lshr_b32 s44, s2, 4
    s_add_u32 s{S_ATB}, s{S_ATB}, s44
    {f"s_mov_b32 s{S_AG}, s{S_G}" if os.environ.get('G1') else ""}
    {f"s_mov_b32 s{S_ATB}, s{S_TB}" if os.environ.get('G1') else ""}
    v_lshrrev_b32 v{VT+2}, 2, v{VT}
    v_lshlrev_b32 v{VT+2}, 7, v{VT+2}
    v_bfe_u32 v{VT+3}, v{VT}, 3, 2
    v_lshl_add_u32 v{VT+2}, v{VT+3}, 5, v{VT+2}
    v_and_b32 v{VT+3}, 3, v{VT}
    v_lshl_add_u32 v{VT2}, v{VT+3}, 3, v{VT+2}
    v_lshrrev_b32 v{VT+2}, 3, v{VT}
    v_and_b32 v{VT+3}, 7, v{VT}
    v_bfe_u32 v{VT+4}, v{VT}, 4, 2
    v_lshlrev_b32 v{VT+4}, 1, v{VT+4}
    v_xor_b32 v{VT+3}, v{VT+3}, v{VT+4}
    v_lshlrev_b32 v{VT+3}, 4, v{VT+3}
    v_lshl_add_u32 v{VWO}, v{VT+2}, 10, v{VT+3}
    """)
    for j in range(1, 4):
        a(f"v_add_u32 v{VWO+j}, {j*(8*1024-1024)}, v{VWO}")
    if STAMP: a(f"v_mov_b32 v{VST}, 0")

LTCH = int(os.environ.get('LT', '0'))
def lin_touch(a, ptr, size, per, sh):
    srd(a, 56, ptr, size)
    a(f"s_lshl_b32 s46, s2, 2")
    a(f"s_add_u32 s46, s46, s{S_W}")
    a(f"s_mul_i32 s46, s46, {per}")
    a(f"v_lshlrev_b32 v{VT+10}, {sh}, v{VLIN}")
    a(f"buffer_load_dword a243, v{VT+10}, s[56:59], s46 offen")
def setup2(a):
    a("s_waitcnt lgkmcnt(0)")
    if LTCH >= 3: lin_touch(a, PWM, 512*6144, 3072, 2)
    if LTCH >= 2: lin_touch(a, PWQ, 512*8192, 4096, 2)
    a(f"s_load_dwordx2 s[{TAG}:{TAG+1}], s[{PWS}:{PWS+1}], {hex(WS_EPOCH)}")
    srd(a, SWS, PWS, WS_SIZE)

def poll(a, tag, soff, nflags, dma=False, stride=128):
    sh = {128: "v_lshlrev_b32 v%d, 3, v%d", 64: "v_lshlrev_b32 v%d, 2, v%d", 8: "v_lshrrev_b32 v%d, 1, v%d"}[stride] % (VT+13, VLIN)
    a(f"""
    {sh}
    v_min_u32 v{VT+13}, {stride*(nflags-1)}, v{VT+13}
    s_mov_b32 s47, {SPIN_MAX}
    {tag}_POLL:
    buffer_load_dwordx2 v[{VT+14}:{VT+15}], v{VT+13}, s[{SWS}:{SWS+3}], s{soff} offen sc1
    s_sub_u32 s47, s47, 1
    s_waitcnt vmcnt(0)
    v_cmp_ne_u64 vcc, s[{TAG}:{TAG+1}], v[{VT+14}:{VT+15}]
    s_cbranch_vccz {tag}_GO
    s_cmp_eq_u32 s47, 0
    s_cbranch_scc1 {tag}_GO
    """)
    if SLEEP1: a(f"s_sleep {SLEEP1}")
    if dma:
        a(f"""
        s_cmp_ge_u32 s{S_DM0}, 131072
        s_cbranch_scc1 {tag}_POLL
        """)
        for _ in range(8):
            for x in d_wdma(): a(x)
    a(f"""
    s_branch {tag}_POLL
    {tag}_GO:
    """)

def flag_store(a, tag, soff):
    a(f"""
    s_cmp_lg_u32 s{S_W}, 0
    s_cbranch_scc1 {tag}_PUB
    v_mov_b32 v{VT+13}, 0
    v_mov_b32 v{VT+14}, s{TAG}
    v_mov_b32 v{VT+15}, s{TAG+1}
    s_mov_b64 exec, 1
    buffer_store_dwordx2 v[{VT+14}:{VT+15}], v{VT+13}, s[{SWS}:{SWS+3}], s{soff} offen sc1
    s_mov_b64 exec, -1
    {tag}_PUB:
    """)
def publish(a, tag, soff):
    a("s_waitcnt vmcnt(0) lgkmcnt(0)")
    a("s_barrier")
    flag_store(a, tag, soff)

def gemm_reads(buf, slot, kofs):
    A = lambda i: AA + 16*buf + 4*i
    B = lambda th: AB + 8*buf + 4*th
    rb = lambda th: f"ds_read_b128 {ar(B(th),4)}, v{VB} offset:{kofs + th*1024}"
    ra = lambda i, h: f"ds_read_b64_tr_b16 {ar(A(i)+2*h,2)}, v{VTR+i} offset:{slot*4096 + h*1024}"
    return [rb(0), ra(0,0), ra(0,1), rb(1), ra(1,0), ra(1,1), ra(2,0), ra(2,1), ra(3,0), ra(3,1)]
def w_dma(slot):
    r = [f"s_add_u32 m0, s{S_RING}, {slot*4096}"]
    d = [f"buffer_load_dwordx4 v{VDMA+j}, s[{SW}:{SW+3}], s{S_WOFF} offen offset:{j*1024} lds" for j in range(4)]
    return r, d, [f"s_add_u32 s{S_WOFF}, s{S_WOFF}, s{S_WSTEP}"]
def aux_dma():
    pre = [f"s_mov_b32 m0, s{S_AM0}"]
    d = [f"buffer_load_dwordx4 v{VLIN}, s[{SWS}:{SWS+3}], s{S_AOFF} offen lds"]
    post = [f"s_add_u32 s{S_AM0}, s{S_AM0}, 4096", f"s_add_u32 s{S_AOFF}, s{S_AOFF}, 4096",
            f"s_cmp_eq_u32 s{S_AM0}, s{S_AM0+2}", f"s_cselect_b32 s{S_AOFF}, s{S_AM0+3}, s{S_AOFF}"]
    return pre, d, post
def kv_dma():
    pre = [f"s_mov_b32 m0, s{S_DSLOT}"]
    d = [f"buffer_load_dwordx4 v{VDMA+j}, s[{SW}:{SW+3}], s{S_DOFF} offen offset:{j*1024} sc1 lds" for j in range(4)]
    return pre, d

def exp_stream(h):
    e = lambda k: f"v{E + (k % 8)}"
    lt = f"v{LT[h]}"
    seq = []
    for k in range(16):
        seq.append((f"v_exp_f32 {e(k)}, v{S[h]+k}", 8))
        if k >= 2 and k % 2 == 0:
            j = k - 2
            if j == 0: seq.append((f"v_add_f32 {lt}, {e(0)}, {e(1)}", 4))
            else:
                seq.append((f"v_add_f32 {lt}, {lt}, {e(j)}", 4))
                seq.append((f"v_add_f32 {lt}, {lt}, {e(j+1)}", 4))
        if k >= 3 and k % 2 == 1:
            j = k - 3
            seq.append((f"v_cvt_pk_bf16_f32 v{P[h]+j//2}, {e(j)}, {e(j+1)}", 5))
    seq.append((f"v_add_f32 {lt}, {lt}, {e(14)}", 4))
    seq.append((f"v_add_f32 {lt}, {lt}, {e(15)}", 4))
    seq.append((f"v_cmp_lt_f32 vcc, s{S_T0}, {lt}", 4))
    seq.append((f"v_cvt_pk_bf16_f32 v{P[h]+7}, {e(14)}, {e(15)}", 5))
    return seq

def spread(gaps, fixed_cost, stream, g0, g1):
    total = sum(c for _, c in stream) + sum(fixed_cost[g0:g1+1])
    per = total / (g1 - g0 + 1)
    it = 0; acc = 0.0
    for g in range(g0, g1+1):
        acc += fixed_cost[g]
        target = per * (g - g0 + 1)
        while it < len(stream) and (g == g1 or acc + stream[it][1]/2 <= target):
            gaps[g].append(stream[it][0]); acc += stream[it][1]; it += 1

site_counter = [0]
sites = {0: [], 1: []}
def check_site(h):
    k = site_counter[0]; site_counter[0] += 1
    sites[h].append(k)
    return [f"s_cbranch_vccnz KA_TR{k}", f"KA_RET{k}:", f"v_add_f32 v{L[h]}, v{L[h]}, v{LT[h]}"]

def qk_mf(h, buf, czero=False):
    return [mfma(vr(S[h],16), ar(AK+32*buf+4*ks,4), ar(AQ+(ks*2+h)*4,4),
                 ("0" if czero else vr(M[h],16)) if ks == 0 else vr(S[h],16)) for ks in range(8)]
def pv_mf(h, buf, czero=False):
    r = []
    for kk in range(2):
        for dt in range(4):
            d = vr(ACC + (dt*2+h)*16, 16)
            r.append(mfma(d, ar(AV+32*buf+(kk*4+dt)*4,4), vr(P[h]+4*kk,4), "0" if (czero and kk == 0) else d))
    return r
def kvloc(t): return (VKV, t*16384) if t < 2 else (VLIN, ((t-2) & 3)*16384)
def k_reads(t): return [f"ds_read_b128 {ar(AK+32*(t&1)+4*j,4)}, v{kvloc(t)[0]} offset:{kvloc(t)[1]+j*1024}" for j in range(8)]
def v_reads(t): return [f"ds_read_b128 {ar(AV+32*(t&1)+4*j,4)}, v{kvloc(t)[0]} offset:{kvloc(t)[1]+8192+j*1024}" for j in range(8)]
def kv_grp(t):
    return ([f"s_add_u32 m0, s{S_DSLOT}, {((t-2) & 3)*16384}"],
            [f"buffer_load_dwordx4 v{VLIN}, s[{SWS}:{SWS+3}], s{S_DOFF} offen offset:{j*1024} sc1 lds" for j in range(4)],
            [f"s_add_u32 s{S_DOFF}, s{S_DOFF}, 16384"])
def wo_m0(sl): return (S_RING, sl*4096) if sl < 4 else (29, KVD + (sl-4)*4096)
def wo_grp(u, sl):
    off = (u % 16)*32768 + (u // 16)*128
    return ([f"s_add_u32 m0, s{wo_m0(sl)[0]}, {wo_m0(sl)[1]}", f"s_add_u32 s{S_WSTEP}, s{S_WOFF}, {off}"],
            [f"buffer_load_dwordx4 v{VWO+j}, s[{SW}:{SW+3}], s{S_WSTEP} offen offset:{j*1024} lds" for j in range(4)], [])

def init_stream(h):
    t = VT + 4 + 2*h
    r = [f"v_max3_f32 v{t}, v{S[h]}, v{S[h]+1}, v{S[h]+2}"]
    for k in range(3, 15, 2): r.append(f"v_max3_f32 v{t}, v{t}, v{S[h]+k}, v{S[h]+k+1}")
    r += [f"v_max_f32 v{t}, v{t}, v{S[h]+15}", f"v_mov_b32 v{t+1}, v{t}", "s_nop 1", f"v_permlane32_swap_b32 v{t}, v{t+1}", "s_nop 0",
          f"v_max_f32 v{t}, v{t}, v{t+1}", f"v_sub_f32 v{t}, {f32(-BIAS)}, v{t}"]
    r += [f"v_add_f32 v{S[h]+k}, v{S[h]+k}, v{t}" for k in range(16)]
    return [(x, 4) for x in r], [(f"v_mov_b32 v{M[h]+k}, v{t}", 4) for k in range(16)]

def cvtq_stream(th):
    r = []
    n = 0
    for i in range(4):
        for sub in range(2):
            base = ACC + (i*2+th)*16 + 8*sub
            t = E + 4*(n & 1); n += 1
            for d in range(4): r.append((f"v_cvt_pk_bf16_f32 v{t+d}, v{base+2*d}, v{base+2*d+1}", 5))
            for d in range(4): r.append((f"v_accvgpr_write_b32 a{AQ + ((2*i+sub)*2+th)*4 + d}, v{t+d}", 5))
    return r

def split_st1(st1):
    tot = sum(c for _, c in st1); accu = 0; cut = 0
    while accu + st1[cut][1] <= tot*0.52: accu += st1[cut][1]; cut += 1
    return st1[:cut], st1[cut:]

CPF = f"global_load_dwordx2 v[{VT+14}:{VT+15}], v254, s[6:7]"
XCPF = bool(os.environ.get('XCPF'))
def period(a, p, vq, pend1, extra1=(), groups=(), pf=None):
    par = p & 1
    mf = qk_mf(0, par) + pv_mf(1, par ^ 1, czero=(p == 1)) + qk_mf(1, par) + pv_mf(0, par)
    gaps = [[] for _ in range(32)]
    cost = [0]*32
    def put(g, instrs, c=None):
        gaps[g] += instrs
        cost[g] += (4*len(instrs) if c is None else c)
    if p < 15:
        put(0, [f"s_waitcnt vmcnt({vq.need(('KV', p+1))})", "s_barrier"], 20)
        kr = k_reads(p+1); vr_ = v_reads(p+1)
        put(7, kr[0:1]); put(8, kr[1:5]); put(9, kr[5:8])
        put(23, vr_[0:1]); put(24, vr_[1:5]); put(25, vr_[5:8])
        put(31, ["s_waitcnt lgkmcnt(0)"], 0)
    else:
        put(0, ["s_barrier"], 20)
        for g_ in (8, 24): put(g_, ["s_nop 5"], 24)
        for g_ in (9, 25): put(g_, ["s_nop 1"], 8)
    if pf:
        for k, x in enumerate(pf[0]): gaps[1 + k] = [x] + gaps[1 + k]
        put(8, [pf[1]], 8)
        vq.issue(('PF', p))
    pos = [(10, [12, 14, 16, 18]), (19, [20, 22, 27, 29])]
    for (tag, (pre, d, post)), (g0, gs) in zip(groups, pos):
        for k, x in enumerate(pre): gaps[g0 + k] = [x] + gaps[g0 + k]
        if len(pre) > 1 and g0 + 1 == gs[0]: pass
        for x, g in zip(d, gs): put(g, [x], 8)
        for x in post: gaps[gs[len(d)-1] + 1] = [x] + gaps[gs[len(d)-1] + 1]
        vq.issue(tag, len(d))
    if XCPF and p in (3, 9, 14):
        put(24, [CPF], 8); vq.issue(('CP', p))
    spread(gaps, cost, pend1, 0, 6)
    gaps[7] = check_site(1) + gaps[7]
    if extra1: spread(gaps, cost, list(extra1), 7, 9)
    spread(gaps, cost, exp_stream(0), 10 if extra1 else 9, 22)
    gaps[23] = check_site(0) + gaps[23]
    h1, h2 = split_st1(exp_stream(1))
    spread(gaps, cost, h1, 25, 31)
    emit(a, mf, gaps)
    return h2

def norm_stream(h, pk):
    r = []
    n = 0
    for dt in range(4):
        base = ACC + (dt*2+h)*16
        for sub in range(2):
            b = base + 8*sub
            t = VT + 4*(n & 1); n += 1
            if pk:
                for k in range(0, 8, 2): r.append((f"v_pk_mul_f32 v[{b+k}:{b+k+1}], v[{b+k}:{b+k+1}], v[{LT[0]}:{LT[1]}] op_sel:[0,{h}] op_sel_hi:[1,{h}]", 4))
            else:
                for k in range(8): r.append((f"v_mul_f32 v{b+k}, v{b+k}, v{LT[h]}", 4))
            for d in range(4): r.append((f"v_cvt_pk_bf16_f32 v{t+d}, v{b+2*d}, v{b+2*d+1}", 5))
            r.append((f"ds_write_b128 v{VT+8}, {vr(t,4)} offset:{HB + dt*4096 + h*2048 + sub*512}", 20))
    return r
def linv(h):
    return [f"v_mov_b32 v{VT+9}, v{L[h]}", "s_nop 1", f"v_permlane32_swap_b32 v{L[h]}, v{VT+9}", "s_nop 0",
            f"v_add_f32 v{L[h]}, v{L[h]}, v{VT+9}", f"v_rcp_f32 v{LT[h]}, v{L[h]}", "s_nop 0"]

def mfma16(d, a_, b_, c):
    return f"v_mfma_f32_16x16x32_bf16 {d}, {a_}, {b_}, {c}"
def acc16(base, mt, tt): return vr(base + ((mt >> 1)*4 + tt)*8 + (mt & 1)*4, 4)
def addr4(dst, base):
    return [f"v_add_u32 v{dst}, {base}, v{VT2}"] + [f"v_xor_b32 v{dst+m}, {m << 5}, v{dst}" for m in (1, 2, 3)]
def rb_unit(a, u, areads_next, head, mid, fill, acc_base, first, uu=None):
    buf = u & 1; ku = (u % 16 if uu is None else uu)
    mf = []
    for mt in range(4):
        for tt in range(4):
            d = acc16(acc_base, mt, tt)
            mf.append(mfma16(d, vr(FA + 16*buf + 4*mt, 4), ar(16*ku + 4*tt, 4), "0" if first else d))
    gaps = [[] for _ in range(16)]; cost = [0]*16
    def cst(x): return 6 if x.startswith(("buffer", "global")) else (0 if x.endswith(":") else 4)
    hs = list(head)
    g = 0
    while hs:
        gaps[g] += hs[:2]; cost[g] += 4*len(hs[:2]) - 4; hs = hs[2:]; g += 1
    g0 = max(g - 1, 0)
    for gm, x in mid.items():
        if len(x) > 2 and not any(y.startswith(("s_cselect", "s_addc", "s_cbranch")) or y.endswith(":") for y in x) and gm < 7:
            h_ = (len(x) + 1)//2
            gaps[2*gm] += x[:h_]; gaps[2*gm+1] += x[h_:]
            cost[2*gm] += sum(map(cst, x[:h_])); cost[2*gm+1] += sum(map(cst, x[h_:]))
        else:
            k_ = 2*gm + 1
            gaps[k_] += x; cost[k_] += sum(map(cst, x))
    n = len(areads_next)
    if n:
        lim = 4
        while sum(max(0, (lim - cost[k])//4) for k in range(g0, 12)) < n: lim += 4
        it = 0
        for k in range(g0, 12):
            while it < n and cost[k] + 4 <= lim:
                gaps[k].append(areads_next[it]); cost[k] += 4; it += 1
        assert it == n
        gaps[15] = ["s_waitcnt lgkmcnt(0)"] + gaps[15]
    if fill: spread(gaps, cost, fill, 0, 15)
    emit(a, mf, gaps)

def take(stream, frac_cost):
    out = []; c = 0
    while stream and c + stream[0][1]/2 <= frac_cost:
        x = stream.pop(0); out.append(x); c += x[1]
    return out


def silu_pack(a, src, n, t0, t1, dst):
    for i in range(n):
        a(f"v_lshlrev_b32 v{t0+2*i}, 16, v{src+i}")
        a(f"v_and_b32 v{t0+2*i+1}, 0xffff0000, v{src+i}")
    for i in range(2*n): a(f"v_mul_f32 v{t1+i}, {f32(-math.log2(math.e))}, v{t0+i}")
    for i in range(2*n): a(f"v_exp_f32 v{t1+i}, v{t1+i}")
    a("s_nop 0")
    for i in range(2*n): a(f"v_add_f32 v{t1+i}, 1.0, v{t1+i}")
    for i in range(2*n): a(f"v_rcp_f32 v{t1+i}, v{t1+i}")
    a("s_nop 0")
    for i in range(2*n): a(f"v_mul_f32 v{t0+i}, v{t0+i}, v{t1+i}")
    for i in range(n): a(f"v_cvt_pk_bf16_f32 v{dst+i}, v{t0+2*i}, v{t0+2*i+1}")

PRE = [14, 24]
RING = [k for k in range(32) if k not in PRE]
STG = [24576, 24576+4096]
VTK = [128, 129, 130, 131]
XP = 128
VBQ = 192
VHW = 196
VMA = 197
VSTAT = 198
VTSL = [232, 233, 234, 235]
VFL = 202
MB = [208, 236]
MT = 216
SCR = WR + 3*4096
MSC = HB + 7*8192
VTS2 = 246

def wq_dma(k, m0):
    pre = [f"s_add_u32 m0, s{m0[0]}, {m0[1]}", f"s_add_u32 s{S_WSTEP}, s{S_WOFF}, {k*16*8192}", f"s_and_b32 s{S_WSTEP}, s{S_WSTEP}, 0x3fffff"]
    d = [f"buffer_load_dwordx4 v{VDMA+j}, s[{SW}:{SW+3}], s{S_WSTEP} offen offset:{j*1024} lds" for j in range(4)]
    return pre, d

def x_loads(a):
    for rg in range(2):
        for i in range(8):
            a(f"buffer_load_dwordx4 {vr(XP+(rg*8+i)*4,4)}, v{208+i}, s[{SX}:{SX+3}], s{40+rg} offen")

def front(a):
    a(f"""
    v_lshrrev_b32 v{VT+2}, 4, v{VT}
    v_and_b32 v{VT+3}, 15, v{VT}
    v_lshlrev_b32 v{VT+4}, 2, v{VT+2}
    v_xor_b32 v{VT+3}, v{VT+3}, v{VT+4}
    v_lshlrev_b32 v{VT+3}, 4, v{VT+3}
    v_lshl_add_u32 v{VDMA}, v{VT+2}, 13, v{VT+3}
    """)
    for j in range(1, 4):
        a(f"v_add_u32 v{VDMA+j}, {j*(4*8192-1024)}, v{VDMA}")
    a(f"""
    s_movk_i32 s60, 0x3ff
    v_lshrrev_b32 v{VT+6}, 3, v{VT}             ; r
    v_and_b32 v{VT+7}, 7, v{VT}                 ; ch
    v_lshlrev_b32 v{VT+5}, 10, v{VT+6}
    {'s_bfe_u32 s43, s2, 0x30004' if os.environ.get('ROT') else 's_mov_b32 s43, 0'}
    s_lshl_b32 s44, s43, 7
    v_lshl_add_u32 v{VT+4}, v{VT+7}, 4, s44
    """)
    for i in range(8):
        a(f"v_add_u32 v{VT+3}, {i*128}, v{VT+4}")
        a(f"v_and_or_b32 v{208+i}, v{VT+3}, s60, v{VT+5}")
    a(f"""
    s_lshl_b32 s40, s{S_ATB}, 16
    s_lshl_b32 s41, s{S_W}, 14
    s_add_u32 s40, s40, s41
    s_add_u32 s41, s40, 8192
    s_lshl_b32 s{S_RING}, s{S_W}, 14
    s_add_u32 s{S_RING}, s{S_RING}, {WR}
    s_lshl_b32 s29, s{S_W}, 13
    s_lshl_b32 s44, s{S_AG}, 10
    s_lshl_b32 s45, s{S_W}, 8
    s_add_u32 s{S_WOFF}, s44, s45
    s_lshl_b32 s44, s43, 19
    s_add_u32 s{S_WOFF}, s{S_WOFF}, s44
    s_mov_b32 s62, 0x05040100
    s_mov_b32 s63, 0x07060302
    s_getpc_b64 s[6:7]
    KF_PC:
    s_sub_u32 s6, s6, KF_PC-{KNAME}
    s_subb_u32 s7, s7, 0
    v_lshlrev_b32 v254, 3, v0
    s_lshl_b32 s44, s{S_TB}, 11
    v_add_u32 v254, s44, v254
    v_min_u32 v254, CODE_END-{KNAME}-8, v254
    global_load_dwordx2 a[240:241], v254, s[6:7]
    s_cmp_ge_u32 s2, 192
    s_cbranch_scc1 KF_KV
    s_lshr_b32 s44, s{S_TB}, 2
    s_lshl_b32 s44, s44, 5
    s_lshl_b32 s45, s{S_G}, 2
    s_add_u32 s44, s44, s45
    s_and_b32 s45, s{S_TB}, 3
    s_add_u32 s44, s44, s45
    s_lshl_b32 s42, s44, 5
    s_mul_i32 s45, s{S_W}, {128*6144}
    s_add_u32 s30, s42, s45
    s_add_u32 s31, s30, 6144
    s_add_u32 s32, s30, {64*6144}
    s_add_u32 s33, s30, {65*6144}
    v_lshrrev_b32 v0, 1, v{VT}                  ; rr
    v_mul_u32_u24 v1, {2*6144}, v0
    v_and_b32 v2, 1, v{VT}
    v_lshl_add_u32 v1, v2, 4, v1
    v_lshlrev_b32 v0, 2, v0
    s_lshl_b32 s34, s{S_W}, 8
    """)
    setup2(a)
    srd(a, 48, PWM, 512*6144)
    srd(a, 52, PC, 1024)
    a(f"""
    buffer_load_dword v4, v0, s[52:55], s34 offen
    buffer_load_dword v5, v0, s[52:55], s34 offen offset:128
    """)
    for q in range(4):
        a(f"buffer_load_dwordx4 {vr(8+4*q,4)}, v1, s[48:51], s{30+q} offen")
    srd(a, SX, PX, 2048*1024)
    a(f"s_cmp_lt_u32 s2, 64")
    a("s_cbranch_scc1 KF_W0")
    x_loads(a)
    a("s_branch KF_W1")
    a("KF_W0:")
    a("s_waitcnt vmcnt(0)")
    a("KF_W1:")
    stamp(a, 0)
    if STAMP: a(f"v_writelane_b32 v{VST}, s92, 27")
    a("s_waitcnt vmcnt(20)")
    silu_pack(a, 4, 2, 24, 28, 32)
    for st in range(2):
        a(f"s_waitcnt vmcnt({18-2*st})")
        r0 = 8 + 8*st; r1 = r0 + 4
        for d in range(4):
            a(f"v_perm_b32 v{24+2*d}, v{r1+d}, v{r0+d}, s62")
            a(f"v_perm_b32 v{25+2*d}, v{r1+d}, v{r0+d}, s63")
        for j in range(8):
            a(f"v_dot2_f32_bf16 v{40+j}, v{24+j}, v{32+st}, {'0' if st == 0 else f'v{40+j}'}")
    a("s_nop 2")
    for j in range(4): a(f"v_permlane32_swap_b32 v{40+j}, v{44+j}")
    a("s_nop 0")
    for j in range(4): a(f"v_add_f32 v{40+j}, v{40+j}, v{44+j}")
    a("s_nop 1")
    for j in range(2): a(f"v_permlane16_swap_b32 v{40+j}, v{42+j}")
    a("s_nop 0")
    for j in range(2): a(f"v_add_f32 v{40+j}, v{40+j}, v{42+j}")
    for r in (8, 4, 2):
        a("s_nop 1")
        for j in range(2): a(f"v_add_f32_dpp v{40+j}, v{40+j}, v{40+j} row_ror:{r} row_mask:0xf bank_mask:0xf")
    a(f"""
    v_lshlrev_b32 v34, 5, v2
    v_lshrrev_b32 v35, 5, v{VT}
    v_lshl_add_u32 v34, v35, 4, v34
    v_bfe_u32 v35, v{VT}, 4, 1
    v_lshl_add_u32 v34, v35, 3, v34
    s_lshl_b32 s45, s{S_W}, 6
    s_add_u32 s45, s45, {SCR}
    v_add_u32 v34, s45, v34
    ds_write_b64 v34, v[40:41]
    v_and_b32 v36, 15, v{VT}
    v_lshlrev_b32 v36, 2, v36
    v_add_u32 v37, {SCR}, v36
    s_waitcnt lgkmcnt(0)
    s_barrier
    s_cmp_lg_u32 s{S_W}, 0
    s_cbranch_scc1 KF_X1
    ds_read_b32 v40, v37
    ds_read_b32 v41, v37 offset:64
    ds_read_b32 v42, v37 offset:128
    ds_read_b32 v43, v37 offset:192
    s_lshl_b32 s42, s42, 1
    s_waitcnt lgkmcnt(0)
    v_add_f32 v40, v40, v41
    v_add_f32 v42, v42, v43
    v_add_f32 v40, v40, v42
    v_cvt_pk_bf16_f32 v40, v40, v40
    v_and_b32 v40, 0xffff0000, v40
    s_mov_b64 exec, 0xffff
    s_cmp_lt_u32 s2, 64
    s_cbranch_scc1 KF_CRIT
    buffer_store_dword v40, v36, s[{SWS}:{SWS+3}], s42 offen sc1
    s_mov_b64 exec, -1
    s_branch KF_JOIN
    KF_CRIT:
    s_add_u32 s45, s{TAG}, 1
    v_mov_b32 v41, s45
    v_lshlrev_b32 v36, 1, v36
    s_lshl_b32 s42, s42, 1
    s_add_u32 s42, s42, {hex(MODG)}
    buffer_store_dwordx2 v[40:41], v36, s[{SWS}:{SWS+3}], s42 offen sc1
    s_mov_b64 exec, -1
    KF_X1:
    s_cmp_ge_u32 s2, 64
    s_cbranch_scc1 KF_JOIN
    """)
    x_loads(a)
    a(f"""
    s_branch KF_JOIN
    KF_KV:
    s_sub_u32 s44, s{S_TB}, 24
    s_lshl_b32 s44, s44, 1
    s_lshr_b32 s45, s{S_W}, 1
    s_add_u32 s44, s44, s45                     ; tile
    s_and_b32 s45, s{S_W}, 1
    s_lshl_b32 s30, s{S_G}, 19
    s_lshl_b32 s31, s44, 13
    s_add_u32 s30, s30, s31
    s_add_u32 s30, s30, {1536*256}
    s_lshl_b32 s31, s45, 12
    s_add_u32 s31, s31, s30
    s_lshl_b32 s32, s45, 7
    s_add_u32 s30, s30, s32                     ; K source: + 4(w&1)*32
    s_lshl_b32 s32, s{S_G}, 18
    s_lshl_b32 s33, s44, 14
    s_add_u32 s32, s32, s33
    s_lshl_b32 s33, s45, 12
    s_add_u32 s32, s32, s33
    s_add_u32 s32, s32, {hex(WS_KV)}
    s_add_u32 s33, s32, 8192
    v_and_b32 v4, 31, v{VT}
    v_lshrrev_b32 v5, 5, v{VT}
    v_lshlrev_b32 v6, 8, v4
    v_lshl_add_u32 v6, v5, 4, v6
    v_and_b32 v0, 7, v4
    v_and_b32 v1, 8, v4
    v_lshl_or_b32 v0, v1, 1, v0
    v_and_b32 v1, 16, v4
    v_lshrrev_b32 v1, 1, v1
    v_or_b32 v0, v0, v1
    v_lshlrev_b32 v0, 1, v0
    v_lshl_add_u32 v0, v5, 10, v0
    """)
    setup2(a)
    srd(a, 48, PK, 8*2048*256)
    srd(a, 52, PV_, 8*2048*256)
    srd(a, SX, PX, 2048*1024)
    stamp(a, 0)
    if STAMP: a(f"v_writelane_b32 v{VST}, s92, 27")
    x_loads(a)
    for q in range(4):
        a(f"buffer_load_dwordx4 {vr(96+4*q,4)}, v6, s[48:51], s30 offen offset:{q*32}")
    for dt in range(4):
        for j in range(8):
            key = (j & 3) + 8*(j >> 2)
            a(f"buffer_load_ushort v{64+8*dt+j}, v0, s[52:55], s31 offen offset:{key*256 + dt*64}")
    a("s_mov_b32 s62, s32")
    a("s_mov_b32 s63, s33")
    a("KF_JOIN:")
    a("s_waitcnt lgkmcnt(0)")
    a(f"s_add_u32 s{TAG}, s{TAG}, 1")
    a(f"s_add_u32 s{TAG+1}, s{TAG+1}, 1")
    stamp(a, 28)
    srd(a, SW, PWQ, 512*4096*2)
    units = [wq_dma(RING[q], (S_RING, q*4096)) for q in range(4)]
    def unit():
        pre, d = units.pop(0)
        for x in pre + d: a(x)
    if not os.environ.get('NOTOUCH'):
        a(f"""
        s_lshr_b32 s44, s2, 4
        s_lshl_b32 s44, s44, 13
        s_lshl_b32 s45, s{S_AG}, 10
        s_add_u32 s44, s44, s45
        s_lshl_b32 s45, s{S_W}, 8
        s_add_u32 s44, s44, s45
        v_lshrrev_b32 v{VT+2}, 1, v{VT}
        v_lshlrev_b32 v{VT+2}, 17, v{VT+2}
        v_and_b32 v{VT+3}, 1, v{VT}
        v_lshl_add_u32 v{VT+2}, v{VT+3}, 7, v{VT+2}
        """)
    unit(); unit()
    if LTCH == 1: lin_touch(a, PWQ, 512*8192, 4096, 2)
    elif not os.environ.get('NOTOUCH'):
        a(f"buffer_load_dword a242, v{VT+2}, s[{SW}:{SW+3}], s44 offen")
    a(f"""
    v_lshrrev_b32 v{VT+2}, 5, v{VT}
    v_lshlrev_b32 v{VT+2}, 11, v{VT+2}
    v_bfe_u32 v{VT+3}, v{VT}, 2, 2
    v_lshl_add_u32 v{VT+2}, v{VT+3}, 8, v{VT+2}
    v_and_b32 v{VT+4}, 16, v{VT}
    v_lshl_add_u32 v{VT+2}, v{VT+4}, 1, v{VT+2}
    v_and_b32 v{VT+4}, 1, v{VT}
    v_lshl_add_u32 v{VT+2}, v{VT+4}, 4, v{VT+2}
    v_and_b32 v{VT+4}, 2, v{VT}
    v_lshl_add_u32 v{VT+2}, v{VT+4}, 2, v{VT+2}
    """)
    for i in range(4):
        a(f"v_xor_b32 v{VT+4}, {i}, v{VT+3}")
        a(f"v_lshl_add_u32 v{VT+4}, v{VT+4}, 6, v{VT+2}")
        a(f"v_add_u32 v{VTR+i}, s{S_RING}, v{VT+4}")
    a(f"v_lshrrev_b32 v{VT+2}, 5, v{VT}")
    for m in range(4):
        a(f"v_or_b32 v{VT+3}, {2*m}, v{VT+2}")
        a(f"v_xor_b32 v{VT+3}, v{VT+3}, v{VT}")
        a(f"v_lshlrev_b32 v{VBQ+m}, 4, v{VT+3}")
    a(f"""
    v_xor_b32 v{VT+2}, v{VT+6}, v{VT+7}
    v_lshlrev_b32 v{VT+2}, 4, v{VT+2}
    v_lshrrev_b32 v{VT+3}, 1, v{VT+7}
    v_lshl_add_u32 v{VT+2}, v{VT+3}, 11, v{VT+2}
    v_and_b32 v{VT+3}, 1, v{VT+7}
    v_lshl_add_u32 v{VT+2}, v{VT+3}, 9, v{VT+2}
    s_lshr_b32 s44, s{S_W}, 1
    s_lshl_b32 s44, s44, 10
    s_and_b32 s45, s{S_W}, 1
    s_lshl_b32 s45, s45, 8
    s_add_u32 s44, s44, s45
    v_add_u32 v{VHW}, s44, v{VT+2}
    s_mov_b32 s61, 0x3f803f80
    s_waitcnt vmcnt({8 if os.environ.get('NOTOUCH') else 9})
    """)
    st = VSTAT
    for rg in range(2):
        for k in range(32):
            x = XP + rg*32 + k
            a(f"v_dot2_f32_bf16 v{st+2*rg}, v{x}, s61, {'0' if k == 0 else f'v{st+2*rg}'}")
            a(f"v_dot2_f32_bf16 v{st+2*rg+1}, v{x}, v{x}, {'0' if k == 0 else f'v{st+2*rg+1}'}")
            if k == 15: unit()
    for mod in ("quad_perm:[1,0,3,2]", "quad_perm:[2,3,0,1]", "row_half_mirror"):
        for q in range(4):
            a(f"v_add_f32_dpp v{st+q}, v{st+q}, v{st+q} {mod} row_mask:0xf bank_mask:0xf")
    for rg in range(2):
        m_, q_ = st+2*rg, st+2*rg+1
        a(f"""
        v_mul_f32 v{VT+2}, {f32(1/512)}, v{m_}
        v_mul_f32 v{q_}, {f32(1/512)}, v{q_}
        v_fma_f32 v{q_}, -v{VT+2}, v{VT+2}, v{q_}
        v_max_f32 v{q_}, 0, v{q_}
        v_add_f32 v{q_}, {f32(1e-5)}, v{q_}
        v_rsq_f32 v{m_}, v{q_}
        s_nop 0
        v_mul_f32 v{q_}, v{VT+2}, v{m_}
        v_sub_f32 v{q_}, 0, v{q_}
        """)
    for rg in range(2):
        for d in range(4):
            a(f"v_lshlrev_b32 v{rg*8+2*d}, 16, v{XP+rg*32+d}")
            a(f"v_and_b32 v{rg*8+2*d+1}, 0xffff0000, v{XP+rg*32+d}")
        for k in range(0, 8, 2):
            y = rg*8 + k
            a(f"v_pk_fma_f32 v[{y}:{y+1}], v[{y}:{y+1}], v[{st+2*rg}:{st+2*rg+1}], v[{st+2*rg}:{st+2*rg+1}] op_sel:[0,0,1] op_sel_hi:[1,0,1]")
    assert not units
    a(f"s_lshl_b32 s44, s{S_AG}, 19")
    srd_dyn(a, SX, PWO, 44, 512*1024)
    a(f"""
    s_mov_b32 s{S_T0}, {f32(THR)}
    s_lshl_b32 s44, s{S_AG}, 18
    s_lshl_b32 s45, s{S_W}, 12
    s_add_u32 s{S_DOFF}, s44, s45
    s_add_u32 s{S_DOFF}, s{S_DOFF}, {hex(WS_KV)}
    s_mov_b32 s{S_DSLOT}, s45
    s_lshl_b32 s44, s{S_TB}, 1
    s_and_b32 s45, s{S_W}, 1
    s_add_u32 s44, s44, s45
    s_mul_i32 s44, s44, {8*3584}
    s_lshr_b32 s45, s{S_G}, 1
    s_mul_i32 s45, s45, 896
    s_add_u32 s{S_PF2}, s44, s45
    s_lshl_b32 s44, s{S_TB}, 2
    s_add_u32 s44, s44, s{S_W}
    s_mul_i32 s{S_PF2+1}, s44, {14*1024}
    v_add_u32 v{VKV}, {KVD}, v{VLIN}
    s_lshl_b32 s34, s{S_AG}, 3
    s_add_u32 s34, s34, {hex(FA_ + 192*8)}
    s_mov_b32 s35, {hex(FA_ + 64*8)}
    s_mov_b32 s36, {hex(FA_ + 128*8)}
    v_lshlrev_b32 v{VT+12}, 2, v{VLIN}
    v_min_u32 v{VT+12}, {7*64}, v{VT+12}
    s_lshl_b32 s42, s2, 3
    s_add_u32 s42, s42, {hex(FA_)}
    """)
    stamp(a, 29)
    a(f"""
    v_lshrrev_b32 v{VT+13}, 2, v{VLIN}
    s_mov_b32 s47, {SPIN_MAX}
    s_lshl_b32 s44, s{S_W}, 10
    v_add_u32 v{VT+2}, s44, v{VLIN}
    s_lshl_b32 s45, s43, 8
    v_subrev_u32 v{VT+3}, s45, v{VT+2}
    v_and_b32 v{VT+3}, 0x7ff, v{VT+3}
    v_and_b32 v{VT+2}, 0x800, v{VT+2}
    v_or_b32 v{VT+2}, v{VT+2}, v{VT+3}
    v_lshlrev_b32 v{VMA}, 5, v{VT+7}
    v_add_u32 v{VMA}, {MSC}, v{VMA}
    v_add_u32 v{VT+2}, {MSC}, v{VT+2}
    v_lshlrev_b32 v{VT+13}, 1, v{VLIN}
    s_lshl_b32 s44, s{S_W}, 11
    s_add_u32 s44, s44, {hex(MODG)}
    KF_POLL:
    buffer_load_dwordx4 v[40:43], v{VT+13}, s[{SWS}:{SWS+3}], s44 offen sc1
    buffer_load_dwordx4 v[44:47], v{VT+13}, s[{SWS}:{SWS+3}], s44 offen offset:16 sc1
    s_sub_u32 s47, s47, 1
    s_waitcnt vmcnt(0)
    v_xor_b32 v41, s{TAG}, v41
    v_xor_b32 v43, s{TAG}, v43
    v_xor_b32 v45, s{TAG}, v45
    v_xor_b32 v47, s{TAG}, v47
    v_or3_b32 v41, v41, v43, v45
    v_or_b32 v41, v41, v47
    v_cmp_ne_u32 vcc, 0, v41
    s_cbranch_vccz KF_GO
    s_sleep {SLEEP0}
    s_cmp_lg_u32 s47, 0
    s_cbranch_scc1 KF_POLL
    KF_GO:
    v_mov_b32 v32, v40
    v_mov_b32 v33, v42
    v_mov_b32 v34, v44
    v_mov_b32 v35, v46
    """)
    a(f"""
    s_cmp_lt_u32 s{S_W}, 2
    s_cbranch_scc1 KF_SA
    """)
    for j in range(4): a(f"v_add_f32 v{32+j}, 1.0, v{32+j}")
    for d in range(2): a(f"v_cvt_pk_bf16_f32 v{36+d}, v{32+2*d}, v{33+2*d}")
    for d in range(2):
        a(f"v_lshlrev_b32 v{32+2*d}, 16, v{36+d}")
        a(f"v_and_b32 v{33+2*d}, 0xffff0000, v{36+d}")
    a("KF_SA:")
    for j in range(4): a(f"v_mul_f32 v{32+j}, {f32(QS)}, v{32+j}")
    a(f"""
    ds_write_b128 v{VT+2}, v[32:35]
    s_cmp_lt_u32 s2, 192
    s_cbranch_scc1 KF_NKV
    """)
    for q in range(4):
        a(f"buffer_store_dwordx4 {vr(96+4*q,4)}, v{VLIN}, s[{SWS}:{SWS+3}], s62 offen offset:{q*1024} sc1")
    for dt in range(4):
        for d in range(4):
            a(f"v_lshl_or_b32 v{112+4*dt+d}, v{65+8*dt+2*d}, 16, v{64+8*dt+2*d}")
        a(f"buffer_store_dwordx4 {vr(112+4*dt,4)}, v{VLIN}, s[{SWS}:{SWS+3}], s63 offen offset:{dt*1024} sc1")
    a("KF_NKV:")
    for m in range(2):
        pre, d = wq_dma(RING[4+m], (29, KVD + m*4096))
        for x in pre + d: a(x)
    a(f"""
    s_sub_u32 s45, s29, s{S_RING}
    s_waitcnt lgkmcnt(0)
    s_barrier
    ds_read_b128 v[16:19], v{VMA}
    ds_read_b128 v[20:23], v{VMA} offset:16
    ds_read_b128 v[24:27], v{VMA} offset:2048
    ds_read_b128 v[28:31], v{VMA} offset:2064
    """)
    for x in hb_reads(0): a(x)
    for i in range(4): a(f"v_add_u32 v{VTSL[i]}, s45, v{VTR+i}")
    for i in range(4): a(f"v_add_u32 v{VTK[i]}, {KVD}, v{VTSL[i]}")
    a("s_waitcnt lgkmcnt(2)")
    for rg in range(2):
        y = rg*8
        for k in range(0, 8, 2):
            a(f"v_pk_fma_f32 v[{y+k}:{y+k+1}], v[{y+k}:{y+k+1}], v[{24+k}:{25+k}], v[{16+k}:{17+k}]")
        for d in range(4):
            a(f"v_cvt_pk_bf16_f32 v{y+d}, v{y+2*d}, v{y+2*d+1}")
        a(f"ds_write_b128 v{VHW}, {vr(y,4)} offset:{HB + rg*128}")
    for m in range(2):
        pre, d = wq_dma(PRE[m], (29, STG[m]))
        for x in pre + d: a(x)
    a("s_waitcnt lgkmcnt(0)")
    a("s_barrier")

def hb_reads(n):
    i = 1 + n//2; hf = n & 1; b = MB[n & 1]
    return [f"ds_read_b128 {vr(b,4)}, v{VMA} offset:{i*256 + hf*16}", f"ds_read_b128 {vr(b+4,4)}, v{VMA} offset:{2048 + i*256 + hf*16}"]
def hb_valu(n, rg):
    i = 1 + n//2; hf = n & 1; b = MB[n & 1]
    x = XP + rg*32 + i*4 + hf*2
    r = []
    for d in range(2):
        r.append((f"v_lshlrev_b32 v{MT+2*d}, 16, v{x+d}", 4))
        r.append((f"v_and_b32 v{MT+2*d+1}, 0xffff0000, v{x+d}", 5))
    for k in range(4): r.append((f"v_fma_f32 v{MT+k}, v{MT+k}, v{VSTAT+2*rg}, v{VSTAT+2*rg+1}", 5))
    for k in range(4): r.append((f"v_fma_f32 v{MT+k}, v{MT+k}, v{b+4+k}, v{b+k}", 5))
    for d in range(2): r.append((f"v_cvt_pk_bf16_f32 v{x+d}, v{MT+2*d}, v{MT+2*d+1}", 5))
    return r
def hb_write(i, rg):
    return f"ds_write_b128 v{VHW}, {vr(XP + rg*32 + i*4, 4)} offset:{HB + i*8192 + rg*128}"

def qproj(a):
    vq = VQ()
    vq.issue(('W', RING[4]), 4); vq.issue(('W', RING[5]), 4)
    for m in range(2): vq.issue(('P', m), 4)
    slot = {RING[q]: q for q in range(6)}
    nextq = 6
    def areg(s_, i):
        if s_ in PRE: return ar(64 + 16*PRE.index(s_) + 4*i, 4)
        return ar(AA + 16*(RING.index(s_) & 1) + 4*i, 4)
    def a_reads(s_):
        q = RING.index(s_); sl = slot[s_]
        adr = (lambda i: VTR+i) if sl < 4 else (lambda i: VTK[i])
        return [f"ds_read_b64_tr_b16 {ar(AA+16*(q&1)+4*i+2*h,2)}, v{adr(i)} offset:{(sl&3)*4096 + h*1024}" for i in range(4) for h in range(2)]
    def b_reads(s_):
        return [f"ds_read_b128 {ar(AB+8*(s_&1)+4*th,4)}, v{VBQ+(s_&3)} offset:{HB + s_*2048 + th*1024}" for th in range(2)]
    for x in b_reads(0) + a_reads(0): a(x)
    a("s_waitcnt lgkmcnt(0)")
    pending_w = []
    for s_ in range(32):
        mf = []
        for i in range(4):
            for th in range(2):
                d = vr(ACC + (i*2+th)*16, 16)
                mf.append(mfma(d, areg(s_, i), ar(AB+8*(s_&1)+4*th,4), "0" if s_ == 0 else d))
        gaps = [[] for _ in range(8)]
        if s_ + 1 < 32:
            rb = b_reads(s_+1)
            if s_ + 1 in RING:
                ra = a_reads(s_+1)
                if ('W', s_+1) in vq.q: gaps[0].append(f"s_waitcnt vmcnt({vq.need(('W', s_+1))})")
                gaps[0] += rb[0:1]; gaps[1] = ra[0:2]; gaps[2] = rb[1:2] + ra[2:4]; gaps[3] = ra[4:5]; gaps[4] = ra[5:8]
            else:
                gaps[0] += rb
        did = False
        if s_ in RING and nextq < len(RING) and not (slot[s_] >= 4 and RING[nextq] >= 28):
            sl = slot[s_]; k = RING[nextq]; slot[k] = sl; nextq += 1
            pre, d = wq_dma(k, (S_RING, sl*4096) if sl < 4 else (29, KVD + (sl-4)*4096))
            gaps[0] = gaps[0][:1] + pre + gaps[0][1:]
            for j in range(4): gaps[1+2*j] = [d[j]] + gaps[1+2*j]
            vq.issue(('W', k), 4); did = True
        prd = {5: 0, 6: 1}
        if s_ in prd:
            m = prd[s_]
            assert vq.landed(('P', m)), s_
            rr = [f"ds_read_b64_tr_b16 {ar(64+16*m+4*i+2*h,2)}, v{VTSL[i]} offset:{24576 + (m&1)*4096 + h*1024}" for i in range(4) for h in range(2)]
            for j in range(4): gaps[2+j] = gaps[2+j] + rr[2*j:2*j+2]
        if XCPF and s_ == 24: gaps[6] = [CPF]
        if s_ == 7:
            assert vq.landed(('W', RING[4]))
            ft = Asm(); flag_store(ft, "KFA", 42); gaps[6] = [l.strip() for l in ft.lines]
        if s_ == 14:
            gaps[6] = [f"buffer_load_dwordx2 v[{VFL}:{VFL+1}], v{VT+12}, s[{SWS}:{SWS+3}], s34 offen sc1"]
            gaps[5] = [f"buffer_load_dwordx4 v[{VFL+2}:{VFL+5}], v{VLIN}, s[{SWS}:{SWS+3}], s35 offen sc1"]
            vq.issue(('F', 0), 2)
        if s_ == 24:
            assert vq.landed(('F', 0))
            gaps[4] += [f"v_cmp_ne_u64 vcc, s[{TAG}:{TAG+1}], v[{VFL}:{VFL+1}]", f"v_cmp_ne_u64 s[44:45], s[{TAG}:{TAG+1}], v[{VFL+2}:{VFL+3}]",
                       f"v_cmp_ne_u64 s[46:47], s[{TAG}:{TAG+1}], v[{VFL+4}:{VFL+5}]"]
            gaps[5] = ["s_or_b64 s[44:45], s[44:45], s[46:47]", "s_or_b64 s[44:45], s[44:45], vcc", "s_cbranch_scc1 KQ_SLOW", "KQ_RET:"]
        if s_ in (28, 29):
            assert not did and nextq == len(RING)
            t = s_ - 28
            gaps[0] = gaps[0] + [f"s_add_u32 m0, s{S_DSLOT}, {KVD + t*16384}"]
            for j in range(4): gaps[1+2*j] = [f"buffer_load_dwordx4 v{VLIN}, s[{SWS}:{SWS+3}], s{S_DOFF} offen offset:{j*1024} sc1 lds"] + gaps[1+2*j]
            gaps[7].append(f"s_add_u32 s{S_DOFF}, s{S_DOFF}, 16384")
            vq.issue(('KV', t), 4)
        work = [(s_, 0), (s_, 1)] if s_ < 4 else ([(4 + (s_-4)//2, (s_-4) & 1)] if s_ < 24 else [])
        nxt = s_ + 1 if s_ < 4 else (5 + (s_-4)//2 if (s_-4) & 1 else None)
        if nxt is not None and nxt < 14: gaps[3] = gaps[3] + hb_reads(nxt)
        for k_, wr in enumerate(pending_w): gaps[2*k_].append(wr)
        pending_w = [hb_write(1 + n//2, rg) for n, rg in work if n & 1]
        if s_ % 4 == 3 and s_ < 28: gaps[0] = ["s_barrier"] + gaps[0]
        if s_ + 1 < 32: gaps[7] = ["s_waitcnt lgkmcnt(0)"] + gaps[7]
        st_ = [x for n, rg in work for x in hb_valu(n, rg)]
        if s_ == 26: st_ = c_early()
        if os.environ.get('XNOMOD'): st_ = []
        if os.environ.get('XNOBAR'): gaps[0] = [x for x in gaps[0] if x != 's_barrier']
        if os.environ.get('XNOVM'): gaps = [[x for x in g if 'vmcnt' not in x] for g in gaps]
        if os.environ.get('XNODMA'): gaps = [[x for x in g if not (x.endswith(' lds') and 'sc1' not in x)] for g in gaps]
        if st_:
            cost = [sum(12 if 'ds_write' in x else (6 if 'buffer' in x else (0 if x.startswith('s_') else 4)) for x in g) for g in gaps]
            spread(gaps, cost, st_, 0, 7)
        if s_ in (4, 8, 16, 24): stamp(a, {4: 21, 8: 24, 16: 25, 24: 26}[s_])
        emit(a, mf, gaps)
    return vq

def phaseB(a):
    site_counter[0] = 0; sites[0].clear(); sites[1].clear()
    front(a)
    stamp(a, 1)
    vq = qproj(a)
    stamp(a, 2)
    a(f"""
    s_mov_b32 s{SW}, s{SX}
    s_mov_b32 s{SW+1}, s{SX+1}
    s_mov_b32 s{SW+2}, s{SX+2}
    s_lshl_b32 s{S_WOFF}, s{S_W}, 8
    s_waitcnt vmcnt({vq.need(('KV', 0))})
    s_barrier
    """)
    for x in k_reads(0): a(x)
    def kv_now(t):
        pre, d, post = kv_grp(t); vq.issue(('KV', t), 4)
        return pre + ["s_nop 0"] + d + post
    for x in kv_now(2): a(x)
    for x, _ in cvtq_stream(0): a(x)
    a("s_waitcnt lgkmcnt(0)")
    gaps = [[] for _ in range(8)]; cost = [0]*8
    vr0 = v_reads(0)
    pre, d, post = kv_grp(3); vq.issue(('KV', 3), 4)
    gaps[0] += pre
    for j in range(8): gaps[j].append(vr0[j]); cost[j] += 4
    for j in range(4): gaps[2*j+1].append(d[j]); cost[2*j+1] += 8
    gaps[7] += post
    spread(gaps, cost, cvtq_stream(1), 0, 7)
    emit(a, qk_mf(0, 0, czero=True), gaps)
    a(f"""
    s_waitcnt vmcnt({vq.need(('KV', 1))}) lgkmcnt(0)
    s_barrier
    """)
    i0, m0 = init_stream(0)
    i1, m1 = init_stream(1)
    gaps = [[] for _ in range(8)]; cost = [0]*8
    kr = k_reads(1); vr1 = v_reads(1)
    for j in range(8): gaps[j] += [kr[j], vr1[j]]; cost[j] += 8
    spread(gaps, cost, i0, 1, 7)
    emit(a, qk_mf(1, 0, czero=True), gaps)
    for x, _ in exp_stream(0): a(x)
    a(f"v_mov_b32 v{L[0]}, v{LT[0]}")
    a(f"v_mov_b32 v{L[1]}, 0")
    h1, pend = split_st1(exp_stream(1))
    gaps = [[] for _ in range(8)]; cost = [0]*8
    pre, d, post = kv_grp(4); vq.issue(('KV', 4), 4)
    gaps[0] += pre
    for j in range(4): gaps[2*j+1].append(d[j]); cost[2*j+1] += 8
    gaps[7] += post + ["s_waitcnt lgkmcnt(0)"]
    pfa = [(f"v_lshlrev_b32 v{VPF}, 1, v{VLIN}", 4), (f"v_lshrrev_b32 v{VT+8}, 9, v{VLIN}", 4), (f"v_mul_u32_u24 v{VT+8}, 3584, v{VT+8}", 4),
           (f"v_and_b32 v{VT+9}, 0x3ff, v{VPF}", 4), (f"v_min_u32 v{VT+9}, 864, v{VT+9}", 4), (f"v_add_u32 v{VPF+1}, v{VT+8}, v{VT+9}", 4)]
    spread(gaps, cost, i1 + m0 + h1 + pfa, 0, 7)
    emit(a, pv_mf(0, 0, czero=True), gaps)
    stamp(a, 3)
    tl = lambda v, srd_: f"buffer_load_dword a252, v{v}, s[{srd_}:{srd_+3}], s{S_PFO} offen"
    def sw(ptr, size, off): return [f"s_mov_b32 s{SPF}, s{ptr}", f"s_mov_b32 s{SPF+1}, s{ptr+1}", f"s_mov_b32 s{SPF+2}, {size}", f"s_mov_b32 s{SPF+3}, 0x20000", off]
    if os.environ.get('PFOLD'):
        pfs = {
            1: ([f"s_lshr_b32 s44, s2, 4", f"s_lshl_b32 s44, s44, 15", f"s_lshl_b32 s45, s{S_W}, 13", f"s_add_u32 s{S_PFO}, s44, s45"], tl(VPF, SW)),
            5: ([f"s_cmp_lt_u32 s{S_W}, 2", f"s_cselect_b32 s{SPF}, s{PWG}, s{PWU}", f"s_cselect_b32 s{SPF+1}, s{PWG+1}, s{PWU+1}", f"s_mov_b32 s{SPF+2}, {512*3584}",
                 f"s_mov_b32 s{SPF+3}, 0x20000", f"s_mov_b32 s{S_PFO}, s{S_PF2}"], tl(VPF+1, SPF)),
            9: ([f"s_mov_b32 s{SPF}, s{PWD}", f"s_mov_b32 s{SPF+1}, s{PWD+1}", f"s_mov_b32 s{SPF+2}, {1792*1024}", f"s_mov_b32 s{S_PFO}, s{S_PF2+1}"], tl(VPF, SPF)),
        }
        for p_ in (2, 3, 4): pfs[p_] = ([f"s_add_u32 s{S_PFO}, s{S_PFO}, 2048"], tl(VPF, SW))
        for p_ in (6, 7, 8): pfs[p_] = ([f"s_add_u32 s{S_PFO}, s{S_PFO}, {2*3584}"], tl(VPF+1, SPF))
        for p_ in range(10, 16): pfs[p_] = ([f"s_add_u32 s{S_PFO}, s{S_PFO}, 2048"], tl(VPF, SPF))
    else:
        st_ = int(os.environ.get('PFS', '2'))
        seq = [sw(PWO, 4096*1024, f"s_lshl_b32 s{S_PFO}, s{S_PFS}, 12"), [f"s_add_u32 s{S_PFO}, s{S_PFO}, 2048"],
               sw(PWG, 512*3584, f"s_mul_i32 s{S_PFO}, s{S_PFS}, 1792"), sw(PWU, 512*3584, "s_nop 0")[:2], sw(PWD, 512*3584, "s_nop 0")[:2]]
        pfs = {1 + st_*k: (q, tl(VPF, SPF)) for k, q in enumerate(seq)}
        a(f"s_lshl_b32 s{S_PFS}, s2, 2")
        a(f"s_add_u32 s{S_PFS}, s{S_PFS}, s{S_W}")
    NWO = 6
    wsched = {10: [0], 11: [1], 12: [2], 13: [3], 14: [4], 15: [5]}
    for p_ in range(1, 16):
        groups = []
        if p_ + 4 <= 15: groups.append((('KV', p_+4), kv_grp(p_+4)))
        for u in wsched.get(p_, []): groups.append((('W', u), wo_grp(u, u)))
        if 6 <= p_ < 10: groups.append((('C', p_), ([], c_loads()[4*(p_-6):4*(p_-6)+4], [])))
        pend = period(a, p_, vq, pend, extra1=(m1 if p_ == 1 else ()), groups=groups, pf=(None if os.environ.get('XNOPF') else pfs.get(p_)))
    for x, _ in pend: a(x)
    a(f"""
    s_lshl_b32 s44, s{S_W}, 14
    v_and_b32 v{VT+8}, 0xf0, v{VLIN}
    v_bfe_u32 v{VT+9}, v{VLIN}, 8, 1
    v_lshl_add_u32 v{VT+8}, v{VT+9}, 10, v{VT+8}
    v_lshrrev_b32 v{VT+9}, 9, v{VLIN}
    v_lshl_add_u32 v{VT+8}, v{VT+9}, 8, v{VT+8}
    v_add_u32 v{VT+8}, s44, v{VT+8}
    s_add_u32 s44, s29, {KVD}
    """)
    for x in addr4(VTR, f"s{S_RING}") + addr4(VTR+4, "s44"): a(x)
    for x in check_site(1): a(x)
    for x in linv(0): a(x)
    n0 = norm_stream(0, False)
    gaps = [[] for _ in range(8)]
    spread(gaps, [0]*8, take(n0, 8*26), 0, 7)
    emit(a, pv_mf(1, 1), gaps)
    stamp(a, 4)
    for x, _ in n0: a(x)
    for x in linv(1): a(x)
    for x, _ in norm_stream(1, True): a(x)
    a(f"""
    v_bfe_u32 v{VT+9}, v{VLIN}, 7, 1
    v_lshlrev_b32 v{VT+9}, 13, v{VT+9}
    v_lshrrev_b32 v{VT+10}, 8, v{VLIN}
    v_lshl_add_u32 v{VT+9}, v{VT+10}, 7, v{VT+9}
    v_and_b32 v{VT+10}, 0x70, v{VLIN}
    v_add_u32 v{VPS}, v{VT+9}, v{VT+10}
    s_lshl_b32 s44, s{S_AG}, 21
    s_lshl_b32 s45, s{S_ATB}, 16
    s_add_u32 s44, s44, s45
    s_lshl_b32 s45, s{S_W}, 11
    s_add_u32 s44, s44, s45
    s_add_u32 s44, s44, {hex(WS_PART)}
    s_add_u32 s45, s44, 16384
    s_add_u32 s24, s44, 32768
    s_add_u32 s25, s44, 49152
    s_waitcnt vmcnt({vq.need(('W', 0))}) lgkmcnt(0)
    s_barrier
    """)
    stamp(a, 5)
    def ar_(u):
        buf = u & 1; slot = u % NWO
        r = [f"ds_read_b64_tr_b16 {vr(FA+16*buf+4*mt+2*h,2)}, v{VTR+mt+(4 if slot >= 4 else 0)} offset:{(slot&3)*4096 + h*2048}" for mt in range(4) for h in range(2)]
        if u < 16:
            r = r[0:2] + [f"ds_read_b128 {ar((4*u+q)*4,4)}, v{VLIN} offset:{HB + u*4096 + q*1024}" for q in range(4)] + r[2:]
        return r
    def pstore(c):
        r = []
        for ap in range(2):
            for tt in range(4):
                base = ACC + 64*c + (ap*4+tt)*8
                for d in range(4): r.append((f"v_cvt_pk_bf16_f32 v{base+d}, v{base+2*d}, v{base+2*d+1}", 5))
                r.append((f"buffer_store_dwordx4 {vr(base,4)}, v{VPS}, s[{SWS}:{SWS+3}], s{(44,45,24,25)[tt]} offen offset:{(2*c+ap)*512} sc1", 12))
        return r
    for x in ar_(0): a(x)
    a("s_waitcnt lgkmcnt(0)")
    st0 = pstore(0)
    tmp = Asm(); c_setup(tmp); d_setup(tmp); e_setup(tmp)
    tmp(f"s_cmp_ge_u32 s{S_TB}, 28")
    tmp(f"s_cselect_b32 s{SD+2}, 0, s{SD+2}")
    misc = [l.strip() for l in tmp.lines]
    mchunks = [[]]
    for k, l in enumerate(misc):
        cons = l.startswith(("s_cselect", "s_addc"))
        if len(mchunks[-1]) >= 6 and not cons: mchunks.append([])
        mchunks[-1].append(l)
    assert len(mchunks) <= 12, len(mchunks)
    for u in range(32):
        head = []; nxt = []; mid = {}
        if u + 1 < 32:
            head = [f"s_waitcnt vmcnt({vq.need(('W', u+1))})"]
            nxt = ar_(u+1)
        if u + NWO < 32:
            pre, d, post = wo_grp(u + NWO, u % NWO)
            head = head + pre; mid = {1: d[0:1], 3: d[1:2], 5: d[2:3], 7: d[3:4]}
            vq.issue(('W', u+NWO), 4)
        fill = []
        if 17 <= u < 25:
            fill = st0[(u-17)*5:(u-17)*5+4]
        if 4 <= u < 4 + len(mchunks):
            mid[4] = mchunks[u-4]
        if XCPF and u == 20:
            mid[6] = [CPF]
        if u == 20: head = head + ["s_barrier"]
        if u < 7:
            fill = [(f"v_accvgpr_read_b32 v{CX+k}, a{CX+32+k}", 4) for k in range(8*u, 8*u+8)]
        d0 = {0: 26, 1: 28, 2: 26, 3: 26}[OT]
        if d0 <= u < d0 + 4:
            for g_ in (1, 3, 5, 7): mid[g_] = d_wdma()
            vq.issue(('DW', u), 4)
        if OT == 0 and 26 <= u < 30 or OT == 3 and 28 <= u < 32:
            k = u - (26 if OT == 0 else 28)
            mid[2] = [st0[(2*k)*5+4][0]]; mid[6] = [st0[(2*k+1)*5+4][0]]
            vq.issue(('S', u), 2)
        if OT in (1, 2):
            s0 = {1: 20, 2: 24}[OT]
            if s0 <= u < s0 + 8:
                mid[7] = mid.get(7, []) + [st0[(u-s0)*5+4][0]]
                vq.issue(('S', u))
        if u in (8, 16, 26): stamp(a, {8: 17, 16: 18, 26: 19}[u])
        rb_unit(a, u, nxt, head, mid, fill, ACC + 64*(u // 16), u % 16 == 0)
    stamp(a, 6)
    a("s_nop 7")
    a("s_nop 3")
    for x, _ in pstore(1): a(x)
    a(f"""
    s_lshl_b32 s46, s{S_ATB}, 10
    s_lshl_b32 s47, s{S_AG}, 7
    s_add_u32 s46, s46, s47
    s_add_u32 s46, s46, {hex(FP)}
    """)
    publish(a, "KB", 46)
    stamp(a, 7)

def slow_paths(a):
    a("KQ_SLOW:")
    poll(a, "KQ1", 34, 8, stride=64)
    poll(a, "KQ2", 35, 64, stride=8)
    poll(a, "KQ3", 36, 64, stride=8)
    a("s_branch KQ_RET")
    for h in range(2):
        for k in sites[h]:
            a(f"KA_TR{k}:")
            a(f"s_mov_b32 s{S_RET}, {k}")
            a(f"s_branch KA_SLOW{h}")
    for h in range(2):
        t = VT
        a(f"KA_SLOW{h}:")
        if STAMP:
            a(f"v_readlane_b32 s94, v{VST}, 31")
            a("s_nop 3")
            a("s_add_u32 s94, s94, 1")
            a(f"v_writelane_b32 v{VST}, s94, 31")
        a("s_nop 7")
        a("s_nop 7")
        a(f"v_max3_f32 v{t}, v{S[h]}, v{S[h]+1}, v{S[h]+2}")
        for k in range(3, 15, 2):
            a(f"v_max3_f32 v{t}, v{t}, v{S[h]+k}, v{S[h]+k+1}")
        a(f"v_max_f32 v{t}, v{t}, v{S[h]+15}")
        a(f"v_mov_b32 v{t+1}, v{t}")
        a("s_nop 1")
        a(f"v_permlane32_swap_b32 v{t}, v{t+1}")
        a("s_nop 0")
        a(f"v_max_f32 v{t}, v{t}, v{t+1}")
        a(f"v_add_f32 v{t}, {f32(BIAS)}, v{t}")
        a(f"v_max_f32 v{t}, 0, v{t}")
        a(f"v_ceil_f32 v{t}, v{t}")
        a(f"v_cvt_i32_f32 v{t+1}, -v{t}")
        for k in range(16): a(f"v_sub_f32 v{S[h]+k}, v{S[h]+k}, v{t}")
        for k in range(16): a(f"v_sub_f32 v{M[h]+k}, v{M[h]+k}, v{t}")
        a(f"v_ldexp_f32 v{L[h]}, v{L[h]}, v{t+1}")
        for dt in range(4):
            for k in range(16):
                r = ACC + (dt*2+h)*16 + k
                a(f"v_ldexp_f32 v{r}, v{r}, v{t+1}")
        for k in range(0, 16, 2):
            a(f"v_exp_f32 v{t+2}, v{S[h]+k}")
            a(f"v_exp_f32 v{t+3}, v{S[h]+k+1}")
            a("s_nop 0")
            if k == 0: a(f"v_add_f32 v{LT[h]}, v{t+2}, v{t+3}")
            else:
                a(f"v_add_f32 v{LT[h]}, v{LT[h]}, v{t+2}")
                a(f"v_add_f32 v{LT[h]}, v{LT[h]}, v{t+3}")
            a(f"v_cvt_pk_bf16_f32 v{P[h]+k//2}, v{t+2}, v{t+3}")
        a("s_nop 1")
        for k in sites[h][:-1]:
            a(f"s_cmp_eq_u32 s{S_RET}, {k}")
            a(f"s_cbranch_scc1 KA_RET{k}")
        a(f"s_branch KA_RET{sites[h][-1]}")

SD = 48
S_DM0, S_DWO = 52, 53
S_TG, S_FB = 54, 55
VDW = 231
def d_setup(a):
    a(f"""
    s_and_b32 s46, s{S_G}, 1
    s_lshl_b32 s46, s46, 2
    s_and_b32 s47, s{S_TB}, 3
    s_add_u32 s{S_TG}, s46, s47
    s_lshr_b32 s46, s{S_G}, 1
    s_mul_i32 s46, s46, 7
    s_lshr_b32 s47, s{S_TB}, 2
    s_add_u32 s{S_FB}, s46, s47
    s_cmp_lt_u32 s{S_W}, 2
    s_cselect_b32 s{SD}, s{PWG}, s{PWU}
    s_cselect_b32 s{SD+1}, s{PWG+1}, s{PWU+1}
    s_mov_b32 s{SD+2}, {512*3584}
    s_mov_b32 s{SD+3}, 0x20000
    s_and_b32 s46, s{S_W}, 1
    s_mul_i32 s46, s46, {8*3584}
    s_lshl_b32 s47, s{S_FB}, 7
    s_add_u32 s{S_DWO}, s46, s47
    s_lshl_b32 s{S_DM0}, s{S_W}, 10
    v_lshrrev_b32 v{VT+4}, 10, v{VWO}
    v_mul_u32_u24 v{VDW}, 3584, v{VT+4}
    v_and_b32 v{VT+4}, 0x3ff, v{VWO}
    v_add_u32 v{VDW}, v{VDW}, v{VT+4}
    """)
def d_wdma():
    return [f"s_mov_b32 m0, s{S_DM0}", f"s_add_u32 s{S_DM0}, s{S_DM0}, 4096",
            f"buffer_load_dwordx4 v{VDW}, s[{SD}:{SD+3}], s{S_DWO} offen lds", f"s_add_u32 s{S_DWO}, s{S_DWO}, {16*3584}"]

CL = 131072
CX, CGA, CSB, CCB = 160, 168, 184, 200
def c_early():
    t = Asm()
    t(f"""
    s_lshl_b32 s40, s{S_G}, 5
    s_add_u32 s40, s40, s{S_TB}
    s_lshl_b32 s41, s40, 13
    s_lshl_b32 s46, s{S_W}, 11
    s_add_u32 s42, s41, s46
    s_add_u32 s42, s42, {hex(WS_PART)}
    v_bfe_u32 v{MT}, v{VLIN}, 4, 3
    v_lshrrev_b32 v231, 9, v{VLIN}
    v_lshlrev_b32 v231, 6, v231
    v_bfe_u32 v229, v{VLIN}, 7, 2
    v_lshl_add_u32 v231, v229, 3, v231
    v_lshl_add_u32 v229, v{MT}, 10, v231
    v_lshlrev_b32 v231, 1, v231
    s_lshl_b32 s46, s{S_W}, 8
    s_add_u32 s43, s41, s46
    s_lshl_b32 s46, s{S_W}, 9
    s_add_u32 s32, s46, {WS_MOD + 2*2048}
    s_add_u32 s33, s46, {WS_MOD + 4*2048}
    """)
    srd(t, 56, PX, 2048*1024)
    return [(l.strip(), 4) for l in t.lines]
def c_setup(a):
    a(f"""
    v_bfe_u32 v{VT}, v{VLIN}, 4, 3        ; t
    v_lshrrev_b32 v{VT+1}, 7, v{VLIN}     ; Lq
    """)
def c_loads():
    r = []
    A = lambda v, n: ar(v + 32, n)
    for q in range(2):
        for hh in range(2):
            r.append(f"buffer_load_dwordx2 {A(CX+4*q+2*hh,2)}, v229, s[56:59], s43 offen offset:{q*128+hh*32}")
    for q in range(2):
        for hh in range(2):
            r.append(f"buffer_load_dwordx4 {A(CGA+8*q+4*hh,4)}, v231, s[{SWS}:{SWS+3}], s32 offen offset:{q*256+hh*64} sc1")
            r.append(f"buffer_load_dwordx4 {A(CSB+8*q+4*hh,4)}, v231, s[{SWS}:{SWS+3}], s32 offen offset:{2048+q*256+hh*64} sc1")
            r.append(f"buffer_load_dwordx4 {A(CCB+8*q+4*hh,4)}, v231, s[{SWS}:{SWS+3}], s33 offen offset:{q*256+hh*64} sc1")
    return r

def phaseC(a):
    def ld(g):
        return [f"s_add_u32 s33, s42, {g*0x200000}"] + [f"buffer_load_dwordx4 {vr(8*g+4*q,4)}, v{VLIN}, s[{SWS}:{SWS+3}], s33 offen offset:{q*1024} sc1" for q in range(2)]
    def accum(g):
        for d in range(8):
            a(f"v_lshlrev_b32 v{144+2*d}, 16, v{8*g+d}")
            a(f"v_and_b32 v{145+2*d}, 0xffff0000, v{8*g+d}")
        for j in range(0, 16, 2): a(f"v_pk_add_f32 v[{84+j}:{85+j}], v[{84+j}:{85+j}], v[{144+j}:{145+j}]")
    fl = f"buffer_load_dwordx2 v[{VT+14}:{VT+15}], v{VT+13}, s[{SWS}:{SWS+3}], s32 offen sc1"
    a(f"""
    s_lshr_b32 s32, s40, 3
    s_lshl_b32 s32, s32, 10
    s_add_u32 s32, s32, {hex(FP)}
    v_lshlrev_b32 v{VT+13}, 3, v{VLIN}
    v_min_u32 v{VT+13}, {7*128}, v{VT+13}
    {fl}
    """)
    for j in range(16): a(f"v_add_f32 v{CCB+j}, 1.0, v{CCB+j}")
    for d in range(8): a(f"v_cvt_pk_bf16_f32 v{144+d}, v{CCB+2*d}, v{CCB+1+2*d}")
    for d in range(8):
        a(f"v_lshlrev_b32 v{CCB+2*d}, 16, v{144+d}")
        a(f"v_and_b32 v{CCB+1+2*d}, 0xffff0000, v{144+d}")
    for d in range(8):
        a(f"v_lshlrev_b32 v{64+2*d}, 16, v{CX+d}")
        a(f"v_and_b32 v{65+2*d}, 0xffff0000, v{CX+d}")
    a(f"""
    s_add_u32 s43, s42, {hex(WS_X1 - WS_PART + (1 << 32))}
    v_lshrrev_b32 v80, 9, v{VLIN}
    v_lshlrev_b32 v80, 7, v80
    v_lshl_add_u32 v80, v{VT}, 4, v80
    s_lshl_b32 s44, s{S_W}, 2
    s_add_u32 s44, s44, {CL}
    v_add_u32 v80, s44, v80
    v_lshlrev_b32 v81, 4, v{VT}
    v_add_u32 v81, {CL}, v81
    v_lshrrev_b32 v82, 2, v{VT+1}
    v_lshlrev_b32 v82, 12, v82
    v_and_b32 v83, 3, v{VT+1}
    v_lshl_add_u32 v82, v83, 8, v82
    v_lshl_add_u32 v82, v{VT}, 4, v82
    s_lshr_b32 s44, s40, 3
    s_lshl_b32 s44, s44, 16
    s_bfe_u32 s45, s40, 0x20001
    s_lshl_b32 s45, s45, 10
    s_add_u32 s44, s44, s45
    s_and_b32 s45, s40, 1
    s_lshl_b32 s45, s45, 7
    s_add_u32 s44, s44, s45
    s_lshl_b32 s45, s{S_W}, 14
    s_add_u32 s44, s44, s45
    s_add_u32 s44, s44, {hex(WS_H2)}
    s_add_u32 s45, s44, 8192
    s_lshl_b32 s46, s40, 7
    s_add_u32 s46, s46, {hex(FH)}
    """)
    for j in range(16): a(f"v_mov_b32 v{84+j}, 0")
    a(f"""
    s_mov_b32 s34, 0                       ; done
    s_mov_b32 s35, 0                       ; pend
    s_mov_b32 s47, {SPIN_MAX}
    s_waitcnt vmcnt(0)
    v_cmp_ne_u64 vcc, s[{TAG}:{TAG+1}], v[{VT+14}:{VT+15}]
    s_cbranch_vccnz KC_DYN
    """)
    stamp(a, 8)
    for g in range(8):
        for x in ld(g): a(x)
    for g in range(8):
        a(f"s_waitcnt vmcnt({14-2*g})")
        accum(g)
    a(f"""
    s_branch KC_SUM
    KC_LOOP:
    s_cmp_eq_u32 s34, 0xff
    s_cbranch_scc1 KC_NOFL
    {fl}
    KC_NOFL:
    s_waitcnt vmcnt(0)
    v_cmp_ne_u64 vcc, s[{TAG}:{TAG+1}], v[{VT+14}:{VT+15}]
    KC_DYN:
    s_sub_u32 s47, s47, 1
    s_cmp_eq_u32 s47, 0
    s_cselect_b32 s36, 0, vcc_lo
    s_or_b32 s36, s36, s34
    s_andn2_b32 s36, 0xff, s36
    """)
    if CMODE:
        a(f"""
        s_or_b32 s33, s34, s36
        s_cmp_eq_u32 s33, 0xff
        s_cbranch_scc1 KC_TAKE
        s_bcnt1_i32_b32 s33, s36
        s_cmp_lt_u32 s33, {CMIN}
        s_cselect_b32 s36, 0, s36
        s_cmp_lg_u32 s34, 0
        s_cselect_b32 s36, 0, s36
        KC_TAKE:
        """)
    a(f"""
    s_or_b32 s34, s34, s36
    """)
    for g in range(8):
        a(f"s_bitcmp1_b32 s36, {g}")
        a(f"s_cbranch_scc0 KC_L{g}")
        for x in ld(g): a(x)
        a(f"KC_L{g}:")
    a("s_cmp_eq_u32 s35, 0")
    a("s_cbranch_scc1 KC_A7")
    for g in range(8):
        a(f"s_bitcmp1_b32 s35, {g}")
        a(f"s_cbranch_scc0 KC_A{g}")
        accum(g)
        a(f"KC_A{g}:")
    a(f"""
    s_mov_b32 s35, s36
    s_cmp_lg_u32 s36, 0
    s_cbranch_scc1 KC_LOOP
    s_cmp_eq_u32 s34, 0xff
    s_cbranch_scc1 KC_SUM
    """)
    if CDMA:
        a(f"s_cmp_lg_u32 s34, 0")
        a(f"s_cbranch_scc1 KC_LOOP")
        a(f"s_cmp_ge_u32 s{S_DM0}, 131072")
        a(f"s_cbranch_scc1 KC_LOOP")
        for _ in range(8):
            for x in d_wdma(): a(x)
    a("s_branch KC_LOOP")
    a("KC_SUM:")
    stamp(a, 16)
    for j in range(0, 16, 2): a(f"v_pk_fma_f32 v[{64+j}:{65+j}], v[{84+j}:{85+j}], v[{CGA+j}:{CGA+1+j}], v[{64+j}:{65+j}]")
    a("v_pk_add_f32 v[0:1], v[64:65], v[66:67]")
    a("v_pk_mul_f32 v[2:3], v[64:65], v[64:65]")
    a("v_pk_fma_f32 v[2:3], v[66:67], v[66:67], v[2:3]")
    for j in range(4, 16, 2):
        a(f"v_pk_add_f32 v[0:1], v[0:1], v[{64+j}:{65+j}]")
        a(f"v_pk_fma_f32 v[2:3], v[{64+j}:{65+j}], v[{64+j}:{65+j}], v[2:3]")
    a(f"""
    v_add_f32 v6, v0, v1
    v_add_f32 v7, v2, v3
    s_nop 1
    v_permlane32_swap_b32 v6, v7
    s_nop 0
    v_add_f32 v6, v6, v7
    v_mov_b32 v7, v6
    s_nop 1
    v_permlane16_swap_b32 v6, v7
    s_nop 0
    v_add_f32 v6, v6, v7
    s_nop 1
    v_add_f32_dpp v6, v6, v6 row_ror:8 row_mask:0xf bank_mask:0xf
    ds_write_b32 v80, v6
    """)
    for d in range(8): a(f"v_cvt_pk_bf16_f32 v{CX+d}, v{64+2*d}, v{65+2*d}")
    a("""
    s_waitcnt lgkmcnt(0)
    s_barrier
    ds_read_b128 v[16:19], v81
    ds_read_b128 v[20:23], v81 offset:128
    """)
    for q in range(2):
        a(f"buffer_store_dwordx4 {vr(CX+4*q,4)}, v{VLIN}, s[{SWS}:{SWS+3}], s43 offen offset:{q*1024} sc1")
    a(f"""
    s_waitcnt lgkmcnt(0)
    v_pk_add_f32 v[16:17], v[16:17], v[18:19]
    v_pk_add_f32 v[20:21], v[20:21], v[22:23]
    v_add_f32 v16, v16, v17
    v_add_f32 v20, v20, v21
    v_mul_f32 v16, {f32(1/512)}, v16
    v_mul_f32 v20, {f32(1/512)}, v20
    v_fma_f32 v20, -v16, v16, v20
    v_max_f32 v20, 0, v20
    v_add_f32 v20, {f32(1e-5)}, v20
    v_rsq_f32 v20, v20
    s_nop 0
    v_mul_f32 v16, v16, v20
    v_sub_f32 v21, 0, v16
    """)
    for j in range(0, 16, 2): a(f"v_pk_fma_f32 v[{64+j}:{65+j}], v[{64+j}:{65+j}], v[20:21], v[20:21] op_sel:[0,0,1] op_sel_hi:[1,0,1]")
    for j in range(0, 16, 2): a(f"v_pk_fma_f32 v[{64+j}:{65+j}], v[{64+j}:{65+j}], v[{CCB+j}:{CCB+1+j}], v[{CSB+j}:{CSB+1+j}]")
    for d in range(8):
        a(f"v_cvt_pk_bf16_f32 v{24+d}, v{64+2*d}, v{65+2*d}")
        if d % 4 == 3: a(f"buffer_store_dwordx4 {vr(24+4*(d//4),4)}, v82, s[{SWS}:{SWS+3}], s{44+d//4} offen sc1")
    publish(a, "KC", 46)
    stamp(a, 9)

def gelu_stream(c, pk):
    r = []; n = 0
    for th in range(2):
        for sub in range(2):
            g = ACC + 64*c + th*16 + 8*sub
            u = g + 32
            t = 160 + 8*(n & 1)
            o = 176 + 4*(n % 4); n += 1
            if pk:
                pr = lambda x, k: f"v[{x+k}:{x+k+1}]"
                for k in range(0, 8, 2): r.append((f"v_pk_mul_f32 {pr(t,k)}, {pr(g,k)}, {pr(g,k)}", 4))
                for k in range(0, 8, 2): r.append((f"v_pk_fma_f32 {pr(t,k)}, {pr(t,k)}, v[{VT+8}:{VT+9}], v[{VT+10}:{VT+11}]", 4))
                for k in range(0, 8, 2): r.append((f"v_pk_mul_f32 {pr(t,k)}, {pr(t,k)}, {pr(g,k)}", 4))
                for j in range(8): r.append((f"v_exp_f32 v{t+j}, v{t+j}", 8))
                for k in range(0, 8, 2): r.append((f"v_pk_mul_f32 {pr(g,k)}, {pr(g,k)}, {pr(u,k)}", 4))
                for k in range(0, 8, 2): r.append((f"v_pk_add_f32 {pr(t,k)}, {pr(t,k)}, 1.0 op_sel_hi:[1,0]", 4))
                for j in range(8): r.append((f"v_rcp_f32 v{t+j}, v{t+j}", 8))
                r.append(("s_nop 0", 4))
                for k in range(0, 8, 2): r.append((f"v_pk_mul_f32 {pr(g,k)}, {pr(g,k)}, {pr(t,k)}", 4))
            else:
                for j in range(8): r.append((f"v_mul_f32 v{t+j}, v{g+j}, v{g+j}", 4))
                for j in range(8): r.append((f"v_fma_f32 v{t+j}, v{t+j}, v{VT+8}, v{VT+10}", 5))
                for j in range(8): r.append((f"v_mul_f32 v{t+j}, v{t+j}, v{g+j}", 4))
                for j in range(8):
                    r.append((f"v_exp_f32 v{t+j}, v{t+j}", 8))
                    r.append((f"v_mul_f32 v{g+j}, v{g+j}, v{u+j}", 4))
                for j in range(8): r.append((f"v_add_f32 v{t+j}, 1.0, v{t+j}", 4))
                for j in range(8): r.append((f"v_rcp_f32 v{t+j}, v{t+j}", 8))
                r.append(("s_nop 0", 4))
                for j in range(8): r.append((f"v_mul_f32 v{g+j}, v{g+j}, v{t+j}", 4))
            for d in range(4): r.append((f"v_cvt_pk_bf16_f32 v{o+d}, v{g+2*d}, v{g+2*d+1}", 5))
            r.append((f"buffer_store_dwordx4 {vr(o,4)}, v{VLIN}, s[{SWS}:{SWS+3}], s{44+c} offen offset:{(2*th+sub)*1024} sc1", 12))
    return r

SE = 56
S_EOFF = 60
VE = 160
def e_slot(u):
    sl = u % 6
    if sl < 2: return (61, 131072 + sl*4096)
    return (62, (sl-2)*4096)
VER = 208
def e_read(u, dst):
    sl = u % 6
    rb, off = (VER, sl*4096) if sl < 2 else (VER+4, (sl-2)*4096)
    return [f"ds_read_b64_tr_b16 {dst(4*mt+2*h)}, v{rb+mt} offset:{off + h*2048}" for mt in range(4) for h in range(2)]
def e_read_a(u): return e_read(u, lambda o: ar(16*u+o, 2))
def e_addr(a):
    a("s_add_u32 s30, s61, 131072")
    for x in addr4(VER, "s30") + addr4(VER+4, "s62"): a(x)
def e_setup(a):
    a(f"""
    s_lshl_b32 s61, s{S_W}, 13
    s_lshl_b32 s62, s{S_W}, 14
    s_mul_i32 s{S_EOFF}, s{S_W}, {28*16*1024}
    s_lshr_b32 s63, s{S_TB}, 2
    s_lshl_b32 s63, s63, 7
    s_add_u32 s{S_EOFF}, s{S_EOFF}, s63
    """)
    srd(a, SE, PWD, 1792*1024)
def e_dma(u):
    sb, off = e_slot(u)
    pre = [f"s_add_u32 m0, s{sb}, {off}"]
    d = [f"buffer_load_dwordx4 v{VWO+j}, s[{SE}:{SE+3}], s{S_EOFF} offen offset:{j*1024} lds" for j in range(4)]
    return pre, d, [f"s_add_u32 s{S_EOFF}, s{S_EOFF}, {32*1024}"]
def e_dma_now(a, u):
    pre, d, post = e_dma(u)
    for x in pre + ["s_nop 0"] + d + post: a(x)

def phaseD(a):
    e_addr(a)
    a(f"""
    s_cmp_ge_u32 s{S_TB}, 28
    s_cbranch_scc1 KD_SKIP
    s_lshl_b32 s40, s{S_TG}, 2
    s_add_u32 s40, s40, s{S_W}
    s_lshl_b32 s41, s40, 16
    s_add_u32 s41, s41, {hex(WS_H2)}
    s_lshl_b32 s42, s40, 10
    s_add_u32 s42, s42, {hex(FH)}
    s_mul_i32 s44, s40, {112*2048}
    s_lshl_b32 s45, s{S_FB}, 13
    s_add_u32 s44, s44, s45
    s_add_u32 s44, s44, {hex(WS_G)}
    s_add_u32 s45, s44, 4096
    v_mov_b32 v{VT+8}, {f32(-2*math.log2(math.e)*math.sqrt(2/math.pi)*0.044715)}
    v_mov_b32 v{VT+9}, v{VT+8}
    v_mov_b32 v{VT+10}, {f32(-2*math.log2(math.e)*math.sqrt(2/math.pi))}
    v_mov_b32 v{VT+11}, v{VT+10}
    """)
    for x in addr4(VTR, "0") + addr4(VTR+4, "65536"): a(x)
    order = [(c, uu) for uu in range(8) for c in range(2)] + [(0, uu) for uu in range(8, 16)] + [(1, uu) for uu in range(8, 16)]
    def bload(u):
        r = [f"buffer_load_dwordx4 {ar((4*u+q)*4,4)}, v{VLIN}, s[{SWS}:{SWS+3}], s41 offen offset:{q*1024} sc1" for q in range(4)]
        return r + ["s_add_u32 s41, s41, 4096"]
    def ar_(pos):
        buf = pos & 1; c, uu = order[pos]
        base = VTR + (0 if uu < 8 else 4) + 2*c
        return [f"ds_read_b64_tr_b16 {vr(FA+16*buf+4*mt+2*h,2)}, v{base+(mt&1)} offset:{(uu%8)*8192 + h*4096 + (mt>>1)*2048}" for mt in range(4) for h in range(2)]
    for x in ar_(0): a(x)
    poll(a, "KD", 42, 8, dma=True)
    a(f"""
    KD_WL:
    s_cmp_ge_u32 s{S_DM0}, 131072
    s_cbranch_scc1 KD_WD
    """)
    for _ in range(8):
        for x in d_wdma(): a(x)
    a(f"""
    s_branch KD_WL
    KD_WD:
    """)
    stamp(a, 10)
    vq = VQ()
    NPRE = int(os.environ.get('DPRE', '4'))
    e01 = tuple(map(int, os.environ.get('E01', '12,13').split(',')))
    for u in range(NPRE):
        for x in bload(u): a(x)
        vq.issue(('B', u), 4)
    a(f"s_waitcnt vmcnt({vq.need(('B', 0))}) lgkmcnt(0)")
    g0 = gelu_stream(0, False)
    per = sum(c for _, c in g0) / 7.5
    nb = NPRE
    for pos in range(32):
        c, uu = order[pos]
        head = []; mid = {}; nxt = ar_(pos+1) if pos + 1 < 32 else []
        if pos == 15: head = ["s_barrier"]
        if nb < 16 and pos not in e01:
            b = bload(nb); vq.issue(('B', nb), 4); nb += 1
            mid[1] = b[0:1]; mid[3] = b[1:2]; mid[5] = b[2:3]; mid[6] = b[3:5]
        if XCPF and pos == 14: mid[2] = [CPF]
        edma = {e01[0]:0, e01[1]:1, 15:2, 16:3, 17:4, 18:5, 19:6, 20:7, 21:8, 22:9, 23:10, 24:11, 25:12, 26:13}
        erd = {16:0, 17:1, 20:2, 21:3, 22:4, 23:5, 24:6, 25:7}
        if pos in erd:
            head = head + [f"s_waitcnt vmcnt({vq.need(('E', erd[pos]))})"]
            nxt = nxt + e_read_a(erd[pos])
        if pos in edma:
            pre, d, post = e_dma(edma[pos])
            head = head + pre; mid[1] = d[0:1]; mid[3] = d[1:2]; mid[5] = d[2:3]; mid[6] = d[3:4] + post
            vq.issue(('E', edma[pos]), 4)
        if pos + 1 < 32 and not vq.landed(('B', order[pos+1][1])):
            mid[7] = [f"s_waitcnt vmcnt({vq.need(('B', order[pos+1][1]))})"]
        fill = []
        if pos >= 24:
            fill = take(g0, per*(0.5 if pos == 24 else 1)) if pos < 31 else list(g0)
            if pos == 24: fill = [("s_nop 7", 32), ("s_nop 3", 16)] + fill
        if pos in (0, 8, 16, 24): stamp(a, {0: 20, 8: 22, 16: 23, 24: 30}[pos])
        rb_unit(a, pos, nxt, head, mid, fill, ACC + 64*c, uu == 0, uu=uu)
    stamp(a, 11)
    e_pre(a)
    for x, _ in gelu_stream(1, True): a(x)
    a(f"""
    s_lshl_b32 s46, s{S_TG}, 12
    s_lshl_b32 s47, s{S_FB}, 7
    s_add_u32 s46, s46, s47
    s_add_u32 s46, s46, {hex(FG)}
    """)
    publish(a, "KD", 46)
    a("s_branch KD_DONE")
    a("KD_SKIP:")
    a(f"""
    s_cmp_lg_u32 s2, 255
    s_cbranch_scc1 KD_NOEP
    s_lshl_b32 s44, s{S_W}, 9
    s_add_u32 s44, s44, {hex(FA_)}
    """)
    poll(a, "KEP", 44, 64, stride=8)
    a("s_barrier")
    a(f"s_mov_b32 s44, {hex(WS_EPOCH)}")
    flag_store(a, "KEP", 44)
    a("KD_NOEP:")
    for u in range(6): e_dma_now(a, u)
    a("s_waitcnt vmcnt(0)")
    for u in range(6):
        for x in e_read_a(u): a(x)
    a("s_waitcnt lgkmcnt(0)")
    for u in range(6, 12): e_dma_now(a, u)
    a("s_waitcnt vmcnt(16)")
    for u in range(6, 8):
        for x in e_read_a(u): a(x)
    a("s_waitcnt lgkmcnt(0)")
    for u in range(12, 14): e_dma_now(a, u)
    e_pre(a)
    a("KD_DONE:")
    stamp(a, 12)

EGB, EX1 = 192, 236
def e_pre(a):
    srd(a, SX, POUT, 2048*1024)
    a(f"""
    s_lshl_b32 s40, s{S_G}, 2
    s_and_b32 s30, s{S_TB}, 3
    s_add_u32 s40, s40, s30               ; tb
    s_lshr_b32 s41, s{S_TB}, 2            ; nb
    s_mul_i32 s42, s40, {112*2048}
    s_mul_i32 s30, s{S_W}, {28*2048}
    s_add_u32 s42, s42, s30
    s_add_u32 s42, s42, {hex(WS_G)}
    s_lshl_b32 s43, s{S_G}, 12
    s_mul_i32 s30, s{S_W}, {7*128}
    s_add_u32 s43, s43, s30
    s_add_u32 s43, s43, {hex(FG)}
    v_bfe_u32 v{VT+2}, v{VLIN}, 4, 4
    v_lshlrev_b32 v{VT+2}, 10, v{VT+2}
    v_lshrrev_b32 v{VT+3}, 8, v{VLIN}
    v_lshl_add_u32 v{VT+2}, v{VT+3}, 3, v{VT+2}     ; n*1024 + q*8
    v_lshlrev_b32 v{VT+3}, 4, v{VT+3}               ; q*16
    s_lshl_b32 s32, s40, 16
    s_lshl_b32 s33, s{S_W}, 14
    s_add_u32 s32, s32, s33
    s_lshl_b32 s34, s41, 10
    s_add_u32 s34, s34, s32
    s_add_u32 s34, s34, {hex(WS_X1)}
    s_lshl_b32 s33, s41, 7
    s_add_u32 s32, s32, s33
    s_lshl_b32 s33, s33, 1
    s_add_u32 s33, s33, {WS_MOD + 5*2048}
    buffer_load_dwordx4 {vr(EGB,4)}, v{VT+3}, s[{SWS}:{SWS+3}], s33 offen sc1
    buffer_load_dwordx4 {vr(EGB+4,4)}, v{VT+3}, s[{SWS}:{SWS+3}], s33 offen offset:64 sc1
    buffer_load_dwordx4 {vr(EGB+8,4)}, v{VT+3}, s[{SWS}:{SWS+3}], s33 offen offset:128 sc1
    buffer_load_dwordx4 {vr(EGB+12,4)}, v{VT+3}, s[{SWS}:{SWS+3}], s33 offen offset:192 sc1
    """)

def phaseE(a):
    poll(a, "KE", 43, 7)
    vq = VQ()
    stamp(a, 13)
    def breg(u, q):
        if u < 8: return ar(128 + 16*u + 4*q, 4)
        if u < 12: return vr(64 + 16*(u-8) + 4*q, 4)
        return vr(160 + 16*(u-12) + 4*q, 4)
    def areg(u, j):
        return ar(16*u + 4*j, 4) if u < 8 else vr(FA + 16*(u & 1) + 4*j, 4)
    def bl(u):
        r = [f"buffer_load_dwordx4 {breg(u,q)}, v{VLIN}, s[{SWS}:{SWS+3}], s42 offen offset:{q*1024} sc1" for q in range(4)] + ["s_add_u32 s42, s42, 4096"]
        vq.issue(('B', u, 0), 2); vq.issue(('B', u, 1), 2)
        return r
    NPRE = int(os.environ.get('EPRE', '6'))
    for u in range(NPRE):
        for x in bl(u): a(x)
    for u in (8, 9):
        for x in e_read(u, lambda o: vr(FA + 16*(u & 1) + o, 2)): a(x)
    for u in range(14):
        for kk in range(2):
            a(f"s_waitcnt vmcnt({vq.need(('B', u, kk))})" + (" lgkmcnt(0)" if u >= 8 and kk == 0 else ""))
            ex = []
            if kk == 0 and u + NPRE < 14: ex = bl(u + NPRE)
            if kk == 0 and u + NPRE == 14:
                ex = [f"buffer_load_dwordx4 {vr(EX1,4)}, v{VPS}, s[{SWS}:{SWS+3}], s34 offen sc1",
                      f"buffer_load_dwordx4 {vr(EX1+4,4)}, v{VPS}, s[{SWS}:{SWS+3}], s34 offen offset:512 sc1"]
                vq.issue(('X', 1), 2)
            n = 0
            for tt in (2*kk, 2*kk+1):
                for mt in range(4):
                    d = acc16(ACC, mt, tt)
                    a(mfma16(d, areg(u, mt), breg(u, tt), "0" if u == 0 else d))
                    if n % 2 == 1:
                        for x in (ex[n//2:n//2+1] if n < 7 else ex[3:]): a(x)
                    n += 1
        if 8 <= u < 12:
            for x in e_read(u+2, lambda o: vr(FA + 16*(u & 1) + o, 2)): a(x)
    stamp(a, 14)
    a(f"""
    v_add_u32 v{VT}, s62, v{VLIN}
    s_lshl_b32 s50, s{S_W}, 11
    v_add_u32 v{VT+1}, s50, v{VLIN}
    s_nop 7
    s_nop 1
    """)
    for q in range(16):
        a(f"ds_write_b128 v{VT}, {vr(ACC+4*q,4)} offset:{q*1024}")
    a("s_waitcnt lgkmcnt(0)")
    a("s_barrier")
    for w in range(4):
        for q in range(4):
            a(f"ds_read_b128 {vr(ACC+16*w+4*q,4)}, v{VT+1} offset:{w*16384 + (q>>1)*8192 + (q&1)*1024}")
    a("s_waitcnt vmcnt(0)")
    for d in range(8):
        a(f"v_lshlrev_b32 v{104+2*d}, 16, v{EX1+d}")
        a(f"v_and_b32 v{105+2*d}, 0xffff0000, v{EX1+d}")
    a("s_waitcnt lgkmcnt(0)")
    for k in range(0, 16, 2):
        a(f"v_pk_add_f32 v[{k}:{k+1}], v[{k}:{k+1}], v[{16+k}:{17+k}]")
        a(f"v_pk_add_f32 v[{32+k}:{33+k}], v[{32+k}:{33+k}], v[{48+k}:{49+k}]")
    for k in range(0, 16, 2):
        a(f"v_pk_add_f32 v[{k}:{k+1}], v[{k}:{k+1}], v[{32+k}:{33+k}]")
    for k in range(0, 16, 2):
        a(f"v_pk_fma_f32 v[{k}:{k+1}], v[{k}:{k+1}], v[{EGB+k}:{EGB+1+k}], v[{104+k}:{105+k}]")
    for d in range(8):
        a(f"v_cvt_pk_bf16_f32 v{32+d}, v{2*d}, v{2*d+1}")
    a(f"""
    buffer_store_dwordx2 v[32:33], v{VT+2}, s[{SX}:{SX+3}], s32 offen
    buffer_store_dwordx2 v[34:35], v{VT+2}, s[{SX}:{SX+3}], s32 offen offset:32
    buffer_store_dwordx2 v[36:37], v{VT+2}, s[{SX}:{SX+3}], s32 offen offset:64
    buffer_store_dwordx2 v[38:39], v{VT+2}, s[{SX}:{SX+3}], s32 offen offset:96
    """)
    if STAMP: a("s_waitcnt vmcnt(0)")
    stamp(a, 15)

def finish(a, name, kidx):
    stamp_out(a)
    rt_end(a, kidx, SWS)
    a(f"{name}_END:")
    a("s_endpgm")

def gen():
    a = Asm(); setup(a, "KM", 256)
    phaseB(a); phaseC(a); phaseD(a); phaseE(a); finish(a, "KM", 0); slow_paths(a)
    a("CODE_END:")
    a("s_endpgm")
    return kernel_text(KNAME, a.text(), 512, 256)
```
